```python
import torch

def _softmax(x, axis=-1):
    return torch.softmax(x, dim=axis)
def _gelu(x):
    return torch.nn.functional.gelu(x, approximate="tanh")
def _silu(x):
    return torch.nn.functional.silu(x)
def _sigmoid(x):
    return torch.sigmoid(x)
def _layernorm(x, axis=-1, eps=1e-5):
    m = x.mean(dim=axis, keepdim=True)
    v = x.var(dim=axis, keepdim=True, unbiased=False)
    return (x - m) / torch.sqrt(v + eps)
def _scatter_add(tgt, idx, src, axis=0):
    return tgt.clone().index_add_(axis, idx, src)
def _segment_sum(src, seg, n):
    out = torch.zeros((n,) + src.shape[1:], dtype=src.dtype)
    return out.index_add_(0, seg, src)
def _pad(x, pw):
    flat = tuple(v for pair in reversed(pw) for v in pair)
    return torch.nn.functional.pad(x, flat)

kernel_name = 'standalone__self_sup_conv_stem_wavlm__speech'

def setup_inputs():

    _w = (lambda a: (lambda t: t.to(torch.bfloat16) if t.is_floating_point() else t)(torch.as_tensor(a)))
    B, T, D, K = 2, 16000, 144, 15
    scale = (K * D) ** -0.5
    return {
        "x": _w((lambda *s: torch.randn(*s, dtype=torch.bfloat16) * 0.05)(B, T, D)),
        "w": _w((lambda *s: torch.randn(*s, dtype=torch.bfloat16) * 0.05)(K, D, D) * scale),
        "gn_gamma": _w((lambda *s: torch.randn(*s, dtype=torch.bfloat16) * 0.05)(D) * 0.1 + 1.0),
        "gn_beta": _w((lambda *s: torch.randn(*s, dtype=torch.bfloat16) * 0.05)(D) * 0.1),
    }

def reference(x, w, gn_gamma, gn_beta):
    B, T, D = x.shape
    K = w.shape[0]
    s = 2
    L = (T - K) // s + 1
    h = torch.einsum('blc,cd->bld', x[:, 0:s * L:s, :], w[0])
    for i in range(1, K):
        h = h + torch.einsum('blc,cd->bld', x[:, i:i + s * L:s, :], w[i])
    mu = torch.einsum('bld->bd', h)[:, None, :] / L
    var = torch.einsum('bld->bd', (h - mu) ** 2)[:, None, :] / L
    h = (h - mu) / torch.sqrt(var + 1e-5)
    h = h * gn_gamma[None, None, :] + gn_beta[None, None, :]
    return _gelu(h)
```

```python
import sys, struct, argparse

NAME = "standalone__self_sup_conv_stem_wavlm__speech"
L = 7993
ARR = 12800
WB = 9 * ARR
CLASS_ORDER = [4, 5, 3, 6, 2, 7, 1, 8, 0]
STEPS = [(c, p) for c in CLASS_ORDER for p in range(8 if c <= 4 else 7)]
NS = len(STEPS)
assert NS == 68

def f2u(x): return struct.unpack('<I', struct.pack('<f', x))[0]

class Opt: pass

def lam_of(c): return (c >> 1, 4 + ((c + 1) >> 1))

class Asm:
    def __init__(s): s.lines = []
    def __call__(s, t): s.lines.append("  " + t)
    def label(s, t): s.lines.append(t + ":")
    def c(s, t): s.lines.append("  ; " + t)
    def text(s): return "\n".join(s.lines) + "\n"

class VmQ:
    def __init__(s, a): s.a = a; s.q = []; s.done = 0
    def issue(s, tag):
        s.q.append(tag); assert len(s.q) - s.done <= 63, "vmcnt overflow"
    def wait(s, pred):
        last = -1
        for i, t in enumerate(s.q):
            if pred(t): last = i
        if last < s.done: return
        n = len(s.q) - 1 - last
        s.a(f"s_waitcnt vmcnt({n})")
        s.done = last + 1

def gen(o):
    R = o.ring
    SCR = WB + R * 3072
    PART = SCR
    AB = SCR + 1536
    LDS = AB + 384
    assert LDS <= 163840
    a = Asm()
    xnt = " nt" if o.x_nt else ""
    wnt = " nt" if o.w_nt else ""
    T = o.timing
    a("s_cmp_ge_u32 s2, 256")
    a("s_cbranch_scc1 L_end")
    if T:
        a("s_memtime s[60:61]")
        a("s_memrealtime s[62:63]")
    a("s_load_dwordx8 s[4:11], s[0:1], 0")
    a("s_load_dwordx4 s[12:15], s[0:1], 32")
    a("s_load_dwordx2 s[16:17], s[0:1], 48")
    a("v_lshrrev_b32 v130, 6, v0")
    a("v_and_b32 v129, 63, v0")
    a("v_readfirstlane_b32 s18, v130")
    a("s_and_b32 s44, s2, 7")
    a("s_lshr_b32 s45, s2, 3")
    a("s_lshl_b32 s46, s44, 1")
    a("s_add_u32 s46, s46, s45")
    a("s_sub_u32 s46, s46, 30")
    a("s_mul_i32 s47, s44, 10")
    a("s_cmp_lt_u32 s45, 30")
    a("s_cselect_b32 s46, s45, s46")
    a("s_cselect_b32 s47, s47, 80")
    a("s_cselect_b32 s48, 0, s46")
    a("s_cmp_ge_u32 s48, 12")
    a("s_cbranch_scc1 L_end")
    a("s_mul_i32 s48, s46, 43")
    a("s_lshr_b32 s48, s48, 7")
    a("s_add_u32 s19, s47, s48")
    a("s_mul_i32 s48, s48, 3")
    a("s_sub_u32 s20, s46, s48")
    a("s_cmp_ge_u32 s19, 42")
    a("s_cselect_b32 s21, 1, 0")
    a("s_mul_i32 s48, s21, 42")
    a("s_sub_u32 s22, s19, s48")
    a("s_mul_i32 s23, s21, 3")
    a("s_add_u32 s23, s23, s20")
    a("s_mul_i32 s44, s21, 4608000")
    a("s_mul_i32 s45, s22, 110592")
    a("s_add_u32 s44, s44, s45")
    a("s_sub_u32 s26, 4607712, s45")
    a("s_mov_b32 s27, 0x20000")
    a("s_mul_i32 s46, s20, 96")
    a("s_sub_u32 s30, 622080, s46")
    a("s_mov_b32 s31, 0x20000")
    a("v_lshrrev_b32 v132, 3, v129")
    a("v_and_b32 v133, 2, v132")
    a("v_and_b32 v134, 7, v129")
    a("v_xor_b32 v133, v133, v134")
    a("v_lshlrev_b32 v133, 4, v133")
    a("v_mul_u32_u24 v131, 1152, v132")
    a("v_add_u32 v131, v131, v133")
    a("v_lshrrev_b32 v136, 4, v129")
    a("v_mul_u32_u24 v135, 3, v130")
    a("v_add_u32 v135, v135, v136")
    a("v_lshlrev_b32 v135, 1, v135")
    a("v_and_b32 v133, 1, v132")
    a("v_add_u32 v135, v135, v133")
    a("v_lshlrev_b32 v134, 1, v135")
    a("v_add_u32 v134, s46, v134")
    a("s_waitcnt lgkmcnt(0)")
    a("s_add_u32 s24, s4, s44")
    a("s_addc_u32 s25, s5, 0")
    a("s_add_u32 s28, s6, s46")
    a("s_addc_u32 s29, s7, 0")
    a("s_cmp_ge_u32 s18, 4")
    a("s_cbranch_scc1 L_loader")

    def xload(q, lam, j, tag):
        a(f"s_mov_b32 m0, {lam*ARR + j*1024}")
        a(f"s_mov_b32 s50, {j*9216 + lam*128}")
        if j == 12: a("s_mov_b32 exec_hi, 0")
        a(f"buffer_load_dwordx4 v131, s[24:27], s50 offen{xnt} lds")
        if j == 12: a("s_mov_b32 exec_hi, -1")
        q.issue(tag)

    def gb_load(q):
        a("s_mov_b32 s52, s8"); a("s_mov_b32 s53, s9"); a("s_mov_b32 s54, 288"); a("s_mov_b32 s55, 0x20000")
        a("s_mov_b32 s56, s10"); a("s_mov_b32 s57, s11"); a("s_mov_b32 s58, 288"); a("s_mov_b32 s59, 0x20000")
        a("buffer_load_ushort v137, v134, s[52:55], 0 offen"); q.issue("gb")
        a("buffer_load_ushort v138, v134, s[56:59], 0 offen"); q.issue("gb")

    def common_srds():
        a("s_lshl_b32 s44, s23, 14")
        a("s_add_u32 s36, s16, s44")
        a("s_addc_u32 s37, s17, 0")
        a("s_mov_b32 s38, 16384")
        a("s_mov_b32 s39, 0x20000")
        a("s_lshl_b32 s44, s18, 11")
        a("s_add_u32 s40, s36, s44")
        a("s_addc_u32 s41, s37, 0")
        a("s_mov_b32 s42, 2016")
        a("s_mov_b32 s43, 0x20000")
        a(f"s_mul_i32 s44, s21, {L}")
        a("s_mul_i32 s45, s22, 192")
        a("s_add_u32 s44, s44, s45")
        a("s_mul_i32 s44, s44, 288")
        a("s_mul_i32 s46, s20, 96")
        a("s_add_u32 s44, s44, s46")
        a("s_add_u32 s32, s12, s44")
        a("s_addc_u32 s33, s13, 0")
        a(f"s_sub_u32 s34, {L}, s45")
        a("s_mul_i32 s34, s34, 288")
        a("s_sub_u32 s34, s34, s46")
        a("s_mov_b32 s35, 0x20000")

    a.c("consumer prologue")
    q = VmQ(a)
    la, lb = lam_of(CLASS_ORDER[0])
    a("s_lshl_b32 s44, s18, 10")
    a("s_mul_i32 s45, s18, 9216")
    for jj in range(3):
        for lam in (la, lb):
            a(f"s_add_u32 m0, s44, {lam*ARR + jj*4096}")
            a(f"s_add_u32 s50, s45, {jj*4*9216 + lam*128}")
            a(f"buffer_load_dwordx4 v131, s[24:27], s50 offen{xnt} lds")
    a("s_cmp_ge_u32 s18, 2")
    a("s_cbranch_scc1 L_c_nohalf")
    a("s_cmp_eq_u32 s18, 0")
    a(f"s_mov_b32 s46, {la*ARR + 12*1024}")
    a(f"s_mov_b32 s47, {12*9216 + la*128}")
    a(f"s_cselect_b32 m0, s46, {lb*ARR + 12*1024}")
    a(f"s_cselect_b32 s50, s47, {12*9216 + lb*128}")
    a("s_mov_b32 exec_hi, 0")
    a(f"buffer_load_dwordx4 v131, s[24:27], s50 offen{xnt} lds")
    a("s_mov_b32 exec_hi, -1")
    a.label("L_c_nohalf")
    gb_load(q)
    common_srds()
    a("v_and_b32 v139, 15, v129")
    a("v_mul_u32_u24 v140, 3, v139")
    a("v_mul_u32_u24 v141, 48, v130")
    a("v_add_u32 v140, v140, v141")
    for s in range(8):
        a(f"v_add_u32 v141, {s}, v140")
        a("v_lshrrev_b32 v142, 1, v141")
        a("v_and_b32 v141, 1, v141")
        a("v_and_b32 v143, 2, v142")
        a("v_xor_b32 v143, v143, v136")
        a("v_lshlrev_b32 v143, 4, v143")
        a("v_lshl_add_u32 v143, v142, 7, v143")
        a(f"v_mul_u32_u24 v142, {4*ARR+64}, v141")
        a(f"v_add_u32 v{112+s}, v143, v142")
        a(f"v_mul_u32_u24 v142, {5*ARR-64}, v141")
        a(f"v_add3_u32 v{120+s}, v143, v142, 64")
    a("v_lshrrev_b32 v141, 1, v136")
    a("v_lshlrev_b32 v141, 4, v141")
    a("v_and_b32 v142, 1, v136")
    a("v_lshl_add_u32 v141, v142, 2, v141")
    a("v_bfe_u32 v142, v129, 2, 2")
    a("v_add_u32 v141, v141, v142")
    a("v_mul_u32_u24 v141, 96, v141")
    a("v_and_b32 v142, 3, v129")
    a("v_mul_u32_u24 v142, 24, v142")
    a("v_add_u32 v141, v141, v142")
    a(f"v_add_u32 v128, {WB}, v141")
    for i in range(36): a(f"v_mov_b32 v{i}, 0")
    a("s_waitcnt vmcnt(0)")
    a("s_barrier")

    def reads_for(n):
        if n >= NS: return []
        c, p = STEPS[n]
        r = []
        bb = 76 + 12 * (n % 3)
        for nt in range(3):
            for kh in range(2):
                d = bb + 4*nt + 2*kh
                r.append(f"ds_read_b64_tr_b16 v[{d}:{d+1}], v128 offset:{(n % R)*3072 + kh*768 + 8*nt}")
        ss = [0, 1, 2] if p == 0 else [p + 2]
        xr = []
        for s in ss:
            d = 36 + 4*s
            xr.append(f"ds_read_b128 v[{d}:{d+3}], v{112 + 8*(c & 1) + (s & 7)} offset:{(c >> 1)*ARR + (512 if s >= 8 else 0)}")
        return xr + r
    r0 = reads_for(0); r1 = reads_for(1)
    for t in r0: a(t)
    a("s_waitcnt lgkmcnt(4)")
    for t in r1: a(t)
    prev = len(r1)
    for n in range(NS):
        c, p = STEPS[n]
        a.c(f"step {n}: class {c} p {p}")
        a(f"s_waitcnt lgkmcnt({prev})")
        a("s_barrier")
        rd = reads_for(n + 2)
        prev = len(rd)
        bb = 76 + 12 * (n % 3)
        for t in range(3):
            for nt in range(3):
                acc = 12*t + 4*nt
                f = 36 + 4*(p + t)
                a(f"v_mfma_f32_16x16x32_bf16 v[{acc}:{acc+3}], v[{bb+4*nt}:{bb+4*nt+3}], v[{f}:{f+3}], v[{acc}:{acc+3}]")
                if rd: a(rd.pop(0))
        assert not rd
    a.c("stats")
    a("s_nop 7")
    a("s_cmp_lg_u32 s22, 41")
    a("s_cbranch_scc1 L_c_nomask")
    for t in range(3):
        a(f"v_cmp_gt_u32 vcc, {L - 41*192 - t}, v140")
        a("s_nop 1")
        for i in range(12): a(f"v_cndmask_b32 v{12*t+i}, 0, v{12*t+i}, vcc")
    a.label("L_c_nomask")
    S1, S2 = 36, 48
    for i in range(6): a(f"v_pk_add_f32 v[{S1+2*i}:{S1+2*i+1}], v[{2*i}:{2*i+1}], v[{12+2*i}:{12+2*i+1}]")
    for i in range(6): a(f"v_pk_mul_f32 v[{S2+2*i}:{S2+2*i+1}], v[{2*i}:{2*i+1}], v[{2*i}:{2*i+1}]")
    for i in range(6): a(f"v_pk_add_f32 v[{S1+2*i}:{S1+2*i+1}], v[{S1+2*i}:{S1+2*i+1}], v[{24+2*i}:{24+2*i+1}]")
    for t in (1, 2):
        for i in range(6): a(f"v_pk_fma_f32 v[{S2+2*i}:{S2+2*i+1}], v[{12*t+2*i}:{12*t+2*i+1}], v[{12*t+2*i}:{12*t+2*i+1}], v[{S2+2*i}:{S2+2*i+1}]")
    P, Q, RR = 60, 66, 72
    for m in range(6):
        a(f"v_add_f32_dpp v{P+m}, v{S1+2*m}, v{S1+2*m} row_shl:8 row_mask:0xf bank_mask:0x3")
        a(f"v_add_f32_dpp v{P+m}, v{S1+2*m+1}, v{S1+2*m+1} row_shr:8 row_mask:0xf bank_mask:0xc")
    for m in range(6):
        a(f"v_add_f32_dpp v{Q+m}, v{S2+2*m}, v{S2+2*m} row_shl:8 row_mask:0xf bank_mask:0x3")
        a(f"v_add_f32_dpp v{Q+m}, v{S2+2*m+1}, v{S2+2*m+1} row_shr:8 row_mask:0xf bank_mask:0xc")
    for m in range(6): a(f"v_add_f32_dpp v{RR+m}, v{P+m}, v{P+m} row_shl:4 row_mask:0xf bank_mask:0x5")
    for m in range(6): a(f"v_add_f32_dpp v{RR+m}, v{Q+m}, v{Q+m} row_shr:4 row_mask:0xf bank_mask:0xa")
    for m in range(6): a(f"v_add_f32_dpp v{RR+m}, v{RR+m}, v{RR+m} quad_perm:[2,3,0,1] row_mask:0xf bank_mask:0xf")
    for m in range(6): a(f"v_add_f32_dpp v{RR+m}, v{RR+m}, v{RR+m} quad_perm:[1,0,3,2] row_mask:0xf bank_mask:0xf")
    a("v_mul_u32_u24 v141, 384, v130")
    a("v_mul_u32_u24 v142, 96, v136")
    a("v_and_b32 v143, 12, v139")
    a("v_add3_u32 v141, v141, v142, v143")
    a(f"v_add_u32 v141, {PART}, v141")
    for m in range(0, 6, 2):
        a(f"ds_write2_b32 v141, v{RR+m}, v{RR+m+1} offset0:{4*m} offset1:{4*m+4}")
    a("s_waitcnt lgkmcnt(0)")
    a("s_barrier")
    a("s_branch L_gather")

    a.label("L_loader")
    common_srds()
    a("s_cmp_eq_u32 s18, 7")
    a("s_cbranch_scc1 L_xloader")
    a.c("W loader: instruction i = wave-4 of every step")
    q = VmQ(a)
    a("v_subrev_u32 v140, 256, v0")
    a("v_mul_u32_u24 v141, 171, v140")
    a("v_lshrrev_b32 v141, 10, v141")
    a("v_mul_u32_u24 v142, 6, v141")
    a("v_sub_u32 v142, v140, v142")
    a("v_and_b32 v143, 0x13, v141")
    a("v_and_b32 v144, 4, v141")
    a("v_lshl_add_u32 v143, v144, 1, v143")
    a("v_and_b32 v144, 8, v141")
    a("v_lshrrev_b32 v144, 1, v144")
    a("v_add_u32 v143, v143, v144")
    a("v_mul_u32_u24 v143, 288, v143")
    a("v_lshl_add_u32 v139, v142, 4, v143")
    a("s_sub_u32 s51, s18, 4")
    a("s_lshl_b32 s51, s51, 10")
    def wload(n):
        c, p = STEPS[n]
        a(f"s_add_u32 m0, s51, {WB + (n % R)*3072}")
        a(f"s_mov_b32 s50, {(288*p + 32*c)*288}")
        a(f"buffer_load_dwordx4 v139, s[28:31], s50 offen{wnt} lds")
        q.issue(("W", n))
    for n in range(2): wload(n)
    gb_load(q)
    for n in range(2, R): wload(n)
    q.wait(lambda t: t in (("W", 0), ("W", 1)))
    if T: a("s_memtime s[64:65]")
    a("s_barrier")
    q.wait(lambda t: t == ("W", 2))
    stamp = 66
    for n in range(NS):
        a("s_barrier")
        if T and n in o.stamps:
            a(f"s_memtime s[{stamp}:{stamp+1}]"); stamp += 2
        if n + R < NS: wload(n + R)
        q.wait(lambda t: t == ("W", n + 3))
    a("s_waitcnt vmcnt(0)")
    a("s_barrier")
    if T: a("s_memtime s[86:87]")
    a("s_cmp_lg_u32 s18, 4")
    a("s_cbranch_scc1 L_gather")
    a.c("publisher: wave 4, lanes 0..23")
    a("s_mov_b64 exec, 0xffffff")
    a(f"v_lshlrev_b32 v140, 4, v129")
    a(f"v_add_u32 v140, {PART}, v140")
    for w in range(4): a(f"ds_read_b128 v[{40+4*w}:{43+4*w}], v140 offset:{384*w}")
    a("v_mul_u32_u24 v141, 43, v129")
    a("v_lshrrev_b32 v141, 7, v141")
    a("v_mul_u32_u24 v142, 2000, v141")
    a("v_lshl_add_u32 v142, v129, 4, v142")
    a("s_mul_i32 s50, s22, 48")
    a("s_waitcnt lgkmcnt(0)")
    a("v_pk_add_f32 v[40:41], v[40:41], v[44:45]")
    a("v_pk_add_f32 v[42:43], v[42:43], v[46:47]")
    a("v_pk_add_f32 v[48:49], v[48:49], v[52:53]")
    a("v_pk_add_f32 v[50:51], v[50:51], v[54:55]")
    a("v_pk_add_f32 v[40:41], v[40:41], v[48:49]")
    a("v_pk_add_f32 v[42:43], v[42:43], v[50:51]")
    for i in range(4): a(f"v_min_u32 v{40+i}, -2, v{40+i}")
    a("buffer_store_dwordx4 v[40:43], v142, s[36:39], s50 offen sc1")
    a("s_mov_b64 exec, -1")
    a("s_branch L_gather")

    a.label("L_xloader")
    q = VmQ(a)
    a.c("clear this workgroup's hand-off words")
    a("s_mov_b64 exec, 0xffffff")
    a("v_mul_u32_u24 v141, 43, v129")
    a("v_lshrrev_b32 v141, 7, v141")
    a("v_mul_u32_u24 v142, 2000, v141")
    a("v_lshl_add_u32 v142, v129, 4, v142")
    a("s_mul_i32 s50, s22, 48")
    for i in range(4): a(f"v_mov_b32 v{40+i}, -1")
    a("buffer_store_dwordx4 v[40:43], v142, s[36:39], s50 offen sc1"); q.issue("clr")
    a("s_mov_b64 exec, -1")
    gb_load(q)
    order = []
    seen = set(lam_of(CLASS_ORDER[0]))
    need = {}
    n0 = 0
    for c in CLASS_ORDER:
        for lam in lam_of(c):
            if lam not in seen:
                seen.add(lam); order.append(lam); need[lam] = n0 - 2
        n0 += 8 if c <= 4 else 7
    pend = [(lam, j) for lam in order for j in range(13)]
    for _ in range(13):
        lam, j = pend.pop(0); xload(q, lam, j, lam)
    q.wait(lambda t: t == "clr")
    a("s_lshl_b32 s44, s23, 5")
    a("v_mov_b32 v140, s44")
    a("v_mov_b32 v141, 1")
    a("s_mov_b64 exec, 1")
    a("global_atomic_add v140, v141, s[14:15]"); q.issue("atom")
    a("s_mov_b64 exec, -1")
    a("s_barrier")
    for n in range(NS):
        q.wait(lambda t: t in need and need[t] <= n)
        a("s_barrier")
        for _ in range(o.xrate):
            if pend:
                lam, j = pend.pop(0); xload(q, lam, j, lam)
        if n == NS - R + 1:
            a("global_load_dword v142, v140, s[14:15] sc1"); q.issue("cnt")
    assert not pend
    a("s_mov_b32 s45, 0")
    a.label("L_cnt_wait")
    a("s_waitcnt vmcnt(0)")
    a("v_readfirstlane_b32 s44, v142")
    a("s_nop 1")
    a("s_cmp_ge_u32 s44, 42")
    a("s_cbranch_scc1 L_cnt_ok")
    a("s_add_u32 s45, s45, 1")
    a("s_cmp_ge_u32 s45, 0x100000")
    a("s_cbranch_scc1 L_cnt_ok")
    a("s_sleep 2")
    a("global_load_dword v142, v140, s[14:15] sc1")
    a("s_branch L_cnt_wait")
    a.label("L_cnt_ok")
    a("s_barrier")

    a.label("L_gather")
    a("s_mov_b32 exec_hi, 0xffff")
    a("v_and_b32 v139, 15, v129")
    a("v_mul_u32_u24 v141, 48, v139")
    a("v_lshl_add_u32 v141, v136, 4, v141")
    a("s_mov_b32 s45, 0")
    a.label("L_poll")
    for k in range(3): a(f"buffer_load_dwordx4 v[{40+4*k}:{43+4*k}], v141, s[40:43], 0 offen offset:{768*k} sc1")
    a("s_waitcnt vmcnt(0)")
    a("v_max3_u32 v52, v40, v41, v42")
    a("v_max3_u32 v53, v43, v44, v45")
    a("v_max3_u32 v54, v46, v47, v48")
    a("v_max3_u32 v55, v49, v50, v51")
    a("v_max3_u32 v52, v52, v53, v54")
    a("v_max_u32 v52, v52, v55")
    a("v_cmp_eq_u32 vcc, -1, v52")
    a("s_add_u32 s45, s45, 1")
    a("s_cmp_lt_u32 s45, 0x100000")
    a("s_cselect_b64 s[46:47], -1, 0")
    a("s_and_b64 vcc, vcc, s[46:47]")
    a("s_cbranch_vccnz L_poll")
    if T: a("s_memtime s[88:89]")
    a("v_pk_add_f32 v[40:41], v[40:41], v[44:45]")
    a("v_pk_add_f32 v[42:43], v[42:43], v[46:47]")
    a("v_pk_add_f32 v[40:41], v[40:41], v[48:49]")
    a("v_pk_add_f32 v[42:43], v[42:43], v[50:51]")
    a("v_lshlrev_b32 v137, 16, v137")
    a("v_lshlrev_b32 v138, 16, v138")
    a("v_add_f32_dpp v44, v40, v40 row_shl:8 row_mask:0xf bank_mask:0x3")
    a("v_add_f32_dpp v44, v42, v42 row_shr:8 row_mask:0xf bank_mask:0xc")
    a("v_add_f32_dpp v45, v41, v41 row_shl:8 row_mask:0xf bank_mask:0x3")
    a("v_add_f32_dpp v45, v43, v43 row_shr:8 row_mask:0xf bank_mask:0xc")
    a("v_lshlrev_b32 v142, 2, v135")
    a(f"v_add_u32 v142, {AB}, v142")
    a("v_add_f32_dpp v46, v44, v44 row_shl:4 row_mask:0xf bank_mask:0x5")
    a("v_add_f32_dpp v46, v45, v45 row_shr:4 row_mask:0xf bank_mask:0xa")
    a(f"s_mov_b32 s44, {f2u(1.0/L):#x}")
    a("s_nop 0")
    a("v_add_f32_dpp v46, v46, v46 quad_perm:[2,3,0,1] row_mask:0xf bank_mask:0xf")
    a("s_nop 1")
    a("v_add_f32_dpp v46, v46, v46 quad_perm:[1,0,3,2] row_mask:0xf bank_mask:0xf")
    a("v_mul_f32 v46, s44, v46")
    a("s_nop 1")
    a("v_mov_b32_dpp v47, v46 row_shl:4 row_mask:0xf bank_mask:0xf")
    a("v_fma_f32 v47, -v46, v46, v47")
    a("v_max_f32 v47, 0, v47")
    a(f"v_add_f32 v47, {f2u(1e-5):#x}, v47")
    a("v_rsq_f32 v47, v47")
    a("s_mov_b32 exec_lo, 0x01010101")
    a("s_mov_b32 exec_hi, 0x00000101")
    a("v_mul_f32 v47, v137, v47")
    a("v_fma_f32 v46, -v46, v47, v138")
    a("ds_write2_b32 v142, v47, v46 offset0:0 offset1:48")
    a("s_mov_b64 exec, -1")
    a("s_waitcnt lgkmcnt(0)")
    a("s_barrier")
    a("s_cmp_ge_u32 s18, 4")
    a("s_cbranch_scc1 L_fin_loader" if T else "s_cbranch_scc1 L_end")

    a("v_mul_u32_u24 v141, 48, v136")
    a(f"v_add_u32 v141, {AB}, v141")
    for k in range(3): a(f"ds_read_b128 v[{40+4*k}:{43+4*k}], v141 offset:{16*k}")
    for k in range(3): a(f"ds_read_b128 v[{52+4*k}:{55+4*k}], v141 offset:{192+16*k}")
    C0 = -2.0 * 0.7978845608028654 * 1.4426950408889634
    C1 = C0 * 0.044715
    a(f"v_mov_b32 v64, {f2u(C0):#x}"); a(f"v_mov_b32 v65, {f2u(C0):#x}")
    a(f"v_mov_b32 v66, {f2u(C1):#x}"); a(f"v_mov_b32 v67, {f2u(C1):#x}")
    a("v_mov_b32 v68, 1.0"); a("v_mov_b32 v69, 1.0")
    a("v_mul_u32_u24 v142, 288, v140")
    a("v_mul_u32_u24 v143, 24, v136")
    a("v_add_u32 v142, v142, v143")
    a("s_waitcnt lgkmcnt(0)")
    for t in range(3):
        Y = 12*t; U = 72; O = 84 + 6*t
        O = [84, 92, 100][t]
        for i in range(6): a(f"v_pk_fma_f32 v[{Y+2*i}:{Y+2*i+1}], v[{Y+2*i}:{Y+2*i+1}], v[{40+2*i}:{41+2*i}], v[{52+2*i}:{53+2*i}]")
        for i in range(6): a(f"v_pk_mul_f32 v[{U+2*i}:{U+2*i+1}], v[{Y+2*i}:{Y+2*i+1}], v[{Y+2*i}:{Y+2*i+1}]")
        for i in range(6): a(f"v_pk_fma_f32 v[{U+2*i}:{U+2*i+1}], v[{U+2*i}:{U+2*i+1}], v[66:67], v[64:65]")
        for i in range(6): a(f"v_pk_mul_f32 v[{U+2*i}:{U+2*i+1}], v[{U+2*i}:{U+2*i+1}], v[{Y+2*i}:{Y+2*i+1}]")
        for i in range(12): a(f"v_exp_f32 v{U+i}, v{U+i}")
        for i in range(6): a(f"v_pk_add_f32 v[{U+2*i}:{U+2*i+1}], v[{U+2*i}:{U+2*i+1}], v[68:69]")
        for i in range(12): a(f"v_rcp_f32 v{U+i}, v{U+i}")
        for i in range(6): a(f"v_pk_mul_f32 v[{Y+2*i}:{Y+2*i+1}], v[{Y+2*i}:{Y+2*i+1}], v[{U+2*i}:{U+2*i+1}]")
        for i in range(6): a(f"v_cvt_pk_bf16_f32 v{O+i}, v{Y+2*i}, v{Y+2*i+1}")
        a(f"buffer_store_dwordx4 v[{O}:{O+3}], v142, s[32:35], 0 offen offset:{288*t}{o.stflag}")
        a(f"buffer_store_dwordx2 v[{O+4}:{O+5}], v142, s[32:35], 0 offen offset:{288*t+16}{o.stflag}")
    if T:
        a("s_memtime s[64:65]")
        a("s_waitcnt vmcnt(0)")
        a("s_memtime s[66:67]")
        a("s_memrealtime s[68:69]")
        a("s_cmp_lg_u32 s18, 0")
        a("s_cbranch_scc1 L_end")
        a("s_waitcnt lgkmcnt(0)")
        a("s_lshl_b32 s44, s2, 7")
        a("s_add_u32 s44, s44, 0x100040")
        a("v_mov_b32 v40, s60"); a("v_mov_b32 v41, s62"); a("v_mov_b32 v42, s64"); a("v_mov_b32 v43, s66")
        a("v_mov_b32 v44, s68"); a("v_mov_b32 v45, s88"); a("v_mov_b32 v46, 0"); a("v_mov_b32 v47, 0")
        a("v_mov_b32 v48, s44")
        a("s_mov_b64 exec, 1")
        a("global_store_dwordx4 v48, v[40:43], s[16:17]")
        a("global_store_dwordx4 v48, v[44:47], s[16:17] offset:16")
        a("s_endpgm")
        a.label("L_fin_loader")
        a("s_cmp_lg_u32 s18, 5")
        a("s_cbranch_scc1 L_end")
        a("s_memtime s[90:91]")
        a("s_waitcnt lgkmcnt(0)")
        a("s_lshl_b32 s44, s2, 7")
        a("s_add_u32 s44, s44, 0x100000")
        regs = [60, 64] + list(range(66, 86, 2)) + [86, 88, 90, 62]
        for i, r in enumerate(regs): a(f"v_mov_b32 v{40+i}, s{r}")
        a("v_mov_b32 v60, s44")
        a("s_mov_b64 exec, 1")
        for k in range(4): a(f"global_store_dwordx4 v60, v[{40+4*k}:{43+4*k}], s[16:17] offset:{16*k}")
    a.label("L_end")
    a("s_endpgm")

    hdr = f"""; Fused strided conv1d (im2col GEMM on MFMA) + per-channel norm over time + tanh-GELU.
; @launch grid=(256,1,1) block=(512,1,1) lds={LDS}
.amdgcn_target "amdgcn-amd-amdhsa--gfx950"
.text
.globl {NAME}_kernel
.p2align 8
.type {NAME}_kernel,@function
{NAME}_kernel:
"""
    ftr = f""".section .rodata,"a"
.p2align 6
.amdhsa_kernel {NAME}_kernel
  .amdhsa_next_free_vgpr 152
  .amdhsa_next_free_sgpr 96
  .amdhsa_accum_offset 152
  .amdhsa_group_segment_fixed_size 0
  .amdhsa_kernarg_size 56
  .amdhsa_float_denorm_mode_32 3
  .amdhsa_user_sgpr_count 2
  .amdhsa_user_sgpr_kernarg_segment_ptr 1
  .amdhsa_system_sgpr_workgroup_id_x 1
.end_amdhsa_kernel
"""
    return hdr + a.text() + ftr

if __name__ == "__main__":
    ap = argparse.ArgumentParser()
    ap.add_argument("-o", default=f"cdna_kernels/{NAME}.s")
    ap.add_argument("--timing", action="store_true")
    ap.add_argument("--ring", type=int, default=15)
    ap.add_argument("--xrate", type=int, default=2)
    ap.add_argument("--x_nt", type=int, default=1)
    ap.add_argument("--w_nt", type=int, default=0)
    ap.add_argument("--stflag", default="")
    o = ap.parse_args()
    o.stamps = [0, 4, 8, 16, 24, 32, 40, 50, 60, 67]
    if o.stflag: o.stflag = " " + o.stflag
    open(o.o, "w").write(gen(o))
```

```python
import sys, struct, argparse

NAME = "standalone__self_sup_conv_stem_wavlm__speech"
L = 7993
ARR = 12800
WB = 9 * ARR
CLASS_ORDER = [4, 5, 3, 6, 2, 7, 1, 8, 0]
STEPS = [(c, p) for c in CLASS_ORDER for p in range(8 if c <= 4 else 7)]
NS = len(STEPS)
assert NS == 68

def f2u(x): return struct.unpack('<I', struct.pack('<f', x))[0]

class Opt: pass

def lam_of(c): return (c >> 1, 4 + ((c + 1) >> 1))

class Asm:
    def __init__(s): s.lines = []
    def __call__(s, t): s.lines.append("  " + t)
    def label(s, t): s.lines.append(t + ":")
    def c(s, t): s.lines.append("  ; " + t)
    def text(s): return "\n".join(s.lines) + "\n"

class VmQ:
    def __init__(s, a): s.a = a; s.q = []; s.done = 0
    def issue(s, tag):
        s.q.append(tag); assert len(s.q) - s.done <= 63, "vmcnt overflow"
    def wait(s, pred):
        last = -1
        for i, t in enumerate(s.q):
            if pred(t): last = i
        if last < s.done: return
        n = len(s.q) - 1 - last
        s.a(f"s_waitcnt vmcnt({n})")
        s.done = last + 1

def gen(o):
    R = o.ring
    SCR = WB + R * 3072
    PART = SCR
    AB = SCR + 1536
    LDS = AB + 384
    assert LDS <= 163840
    a = Asm()
    xnt = " nt" if o.x_nt else ""
    wnt = " nt" if o.w_nt else ""
    T = o.timing
    a("s_cmp_ge_u32 s2, 256")
    a("s_cbranch_scc1 L_end")
    if T:
        a("s_memtime s[60:61]")
        a("s_memrealtime s[62:63]")
    a("s_load_dwordx8 s[4:11], s[0:1], 0")
    a("s_load_dwordx4 s[12:15], s[0:1], 32")
    a("s_load_dwordx2 s[16:17], s[0:1], 48")
    a("v_lshrrev_b32 v130, 6, v0")
    a("v_and_b32 v129, 63, v0")
    a("v_readfirstlane_b32 s18, v130")
    a("s_and_b32 s44, s2, 7")
    a("s_lshr_b32 s45, s2, 3")
    a("s_lshl_b32 s46, s44, 1")
    a("s_add_u32 s46, s46, s45")
    a("s_sub_u32 s46, s46, 30")
    a("s_mul_i32 s47, s44, 10")
    a("s_cmp_lt_u32 s45, 30")
    a("s_cselect_b32 s46, s45, s46")
    a("s_cselect_b32 s47, s47, 80")
    a("s_cselect_b32 s48, 0, s46")
    a("s_cmp_ge_u32 s48, 12")
    a("s_cbranch_scc1 L_end")
    a("s_mul_i32 s48, s46, 43")
    a("s_lshr_b32 s48, s48, 7")
    a("s_add_u32 s19, s47, s48")
    a("s_mul_i32 s48, s48, 3")
    a("s_sub_u32 s20, s46, s48")
    a("s_cmp_ge_u32 s19, 42")
    a("s_cselect_b32 s21, 1, 0")
    a("s_mul_i32 s48, s21, 42")
    a("s_sub_u32 s22, s19, s48")
    a("s_mul_i32 s23, s21, 3")
    a("s_add_u32 s23, s23, s20")
    a("s_mul_i32 s44, s21, 4608000")
    a("s_mul_i32 s45, s22, 110592")
    a("s_add_u32 s44, s44, s45")
    a("s_sub_u32 s26, 4607712, s45")
    a("s_mov_b32 s27, 0x20000")
    a("s_mul_i32 s46, s20, 96")
    a("s_sub_u32 s30, 622080, s46")
    a("s_mov_b32 s31, 0x20000")
    a("v_lshrrev_b32 v132, 3, v129")
    a("v_and_b32 v133, 2, v132")
    a("v_and_b32 v134, 7, v129")
    a("v_xor_b32 v133, v133, v134")
    a("v_lshlrev_b32 v133, 4, v133")
    a("v_mul_u32_u24 v131, 1152, v132")
    a("v_add_u32 v131, v131, v133")
    a("v_lshrrev_b32 v136, 4, v129")
    a("v_mul_u32_u24 v135, 3, v130")
    a("v_add_u32 v135, v135, v136")
    a("v_lshlrev_b32 v135, 1, v135")
    a("v_and_b32 v133, 1, v132")
    a("v_add_u32 v135, v135, v133")
    a("v_lshlrev_b32 v134, 1, v135")
    a("v_add_u32 v134, s46, v134")
    a("s_waitcnt lgkmcnt(0)")
    a("s_add_u32 s24, s4, s44")
    a("s_addc_u32 s25, s5, 0")
    a("s_add_u32 s28, s6, s46")
    a("s_addc_u32 s29, s7, 0")
    a("s_cmp_ge_u32 s18, 4")
    a("s_cbranch_scc1 L_loader")

    def xload(q, lam, j, tag):
        a(f"s_mov_b32 m0, {lam*ARR + j*1024}")
        a(f"s_mov_b32 s50, {j*9216 + lam*128}")
        if j == 12: a("s_mov_b32 exec_hi, 0")
        a(f"buffer_load_dwordx4 v131, s[24:27], s50 offen{xnt} lds")
        if j == 12: a("s_mov_b32 exec_hi, -1")
        q.issue(tag)

    def gb_load(q):
        a("s_mov_b32 s52, s8"); a("s_mov_b32 s53, s9"); a("s_mov_b32 s54, 288"); a("s_mov_b32 s55, 0x20000")
        a("s_mov_b32 s56, s10"); a("s_mov_b32 s57, s11"); a("s_mov_b32 s58, 288"); a("s_mov_b32 s59, 0x20000")
        a("buffer_load_ushort v137, v134, s[52:55], 0 offen"); q.issue("gb")
        a("buffer_load_ushort v138, v134, s[56:59], 0 offen"); q.issue("gb")

    def common_srds():
        a("s_lshl_b32 s44, s23, 14")
        a("s_add_u32 s36, s16, s44")
        a("s_addc_u32 s37, s17, 0")
        a("s_mov_b32 s38, 16384")
        a("s_mov_b32 s39, 0x20000")
        a("s_lshl_b32 s44, s18, 11")
        a("s_add_u32 s40, s36, s44")
        a("s_addc_u32 s41, s37, 0")
        a("s_mov_b32 s42, 2016")
        a("s_mov_b32 s43, 0x20000")
        a(f"s_mul_i32 s44, s21, {L}")
        a("s_mul_i32 s45, s22, 192")
        a("s_add_u32 s44, s44, s45")
        a("s_mul_i32 s44, s44, 288")
        a("s_mul_i32 s46, s20, 96")
        a("s_add_u32 s44, s44, s46")
        a("s_add_u32 s32, s12, s44")
        a("s_addc_u32 s33, s13, 0")
        a(f"s_sub_u32 s34, {L}, s45")
        a("s_mul_i32 s34, s34, 288")
        a("s_sub_u32 s34, s34, s46")
        a("s_mov_b32 s35, 0x20000")

    a.c("consumer prologue")
    q = VmQ(a)
    la, lb = lam_of(CLASS_ORDER[0])
    a("s_lshl_b32 s44, s18, 10")
    a("s_mul_i32 s45, s18, 9216")
    for jj in range(3):
        for lam in (la, lb):
            a(f"s_add_u32 m0, s44, {lam*ARR + jj*4096}")
            a(f"s_add_u32 s50, s45, {jj*4*9216 + lam*128}")
            a(f"buffer_load_dwordx4 v131, s[24:27], s50 offen{xnt} lds")
    a("s_cmp_ge_u32 s18, 2")
    a("s_cbranch_scc1 L_c_nohalf")
    a("s_cmp_eq_u32 s18, 0")
    a(f"s_mov_b32 s46, {la*ARR + 12*1024}")
    a(f"s_mov_b32 s47, {12*9216 + la*128}")
    a(f"s_cselect_b32 m0, s46, {lb*ARR + 12*1024}")
    a(f"s_cselect_b32 s50, s47, {12*9216 + lb*128}")
    a("s_mov_b32 exec_hi, 0")
    a(f"buffer_load_dwordx4 v131, s[24:27], s50 offen{xnt} lds")
    a("s_mov_b32 exec_hi, -1")
    a.label("L_c_nohalf")
    gb_load(q)
    common_srds()
    a("v_and_b32 v139, 15, v129")
    a("v_mul_u32_u24 v140, 3, v139")
    a("v_mul_u32_u24 v141, 48, v130")
    a("v_add_u32 v140, v140, v141")
    for s in range(8):
        a(f"v_add_u32 v141, {s}, v140")
        a("v_lshrrev_b32 v142, 1, v141")
        a("v_and_b32 v141, 1, v141")
        a("v_and_b32 v143, 2, v142")
        a("v_xor_b32 v143, v143, v136")
        a("v_lshlrev_b32 v143, 4, v143")
        a("v_lshl_add_u32 v143, v142, 7, v143")
        a(f"v_mul_u32_u24 v142, {4*ARR+64}, v141")
        a(f"v_add_u32 v{112+s}, v143, v142")
        a(f"v_mul_u32_u24 v142, {5*ARR-64}, v141")
        a(f"v_add3_u32 v{120+s}, v143, v142, 64")
    a("v_lshrrev_b32 v141, 1, v136")
    a("v_lshlrev_b32 v141, 4, v141")
    a("v_and_b32 v142, 1, v136")
    a("v_lshl_add_u32 v141, v142, 2, v141")
    a("v_bfe_u32 v142, v129, 2, 2")
    a("v_add_u32 v141, v141, v142")
    a("v_mul_u32_u24 v141, 96, v141")
    a("v_and_b32 v142, 3, v129")
    a("v_mul_u32_u24 v142, 24, v142")
    a("v_add_u32 v141, v141, v142")
    a(f"v_add_u32 v128, {WB}, v141")
    for i in range(36): a(f"v_mov_b32 v{i}, 0")
    a("s_waitcnt vmcnt(0)")
    a("s_barrier")

    def reads_for(n):
        if n >= NS: return []
        c, p = STEPS[n]
        r = []
        bb = 76 + 12 * (n % 3)
        for nt in range(3):
            for kh in range(2):
                d = bb + 4*nt + 2*kh
                r.append(f"ds_read_b64_tr_b16 v[{d}:{d+1}], v128 offset:{(n % R)*3072 + kh*768 + 8*nt}")
        ss = [0, 1, 2] if p == 0 else [p + 2]
        xr = []
        for s in ss:
            d = 36 + 4*s
            xr.append(f"ds_read_b128 v[{d}:{d+3}], v{112 + 8*(c & 1) + (s & 7)} offset:{(c >> 1)*ARR + (512 if s >= 8 else 0)}")
        return xr + r
    r0 = reads_for(0); r1 = reads_for(1)
    for t in r0: a(t)
    a("s_waitcnt lgkmcnt(4)")
    for t in r1: a(t)
    prev = len(r1)
    for n in range(NS):
        c, p = STEPS[n]
        a.c(f"step {n}: class {c} p {p}")
        a(f"s_waitcnt lgkmcnt({prev})")
        a("s_barrier")
        rd = reads_for(n + 2)
        prev = len(rd)
        bb = 76 + 12 * (n % 3)
        for t in range(3):
            for nt in range(3):
                acc = 12*t + 4*nt
                f = 36 + 4*(p + t)
                a(f"v_mfma_f32_16x16x32_bf16 v[{acc}:{acc+3}], v[{bb+4*nt}:{bb+4*nt+3}], v[{f}:{f+3}], v[{acc}:{acc+3}]")
                if rd: a(rd.pop(0))
        assert not rd
    a.c("stats")
    a("s_nop 7")
    a("s_cmp_lg_u32 s22, 41")
    a("s_cbranch_scc1 L_c_nomask")
    for t in range(3):
        a(f"v_cmp_gt_u32 vcc, {L - 41*192 - t}, v140")
        a("s_nop 1")
        for i in range(12): a(f"v_cndmask_b32 v{12*t+i}, 0, v{12*t+i}, vcc")
    a.label("L_c_nomask")
    S1, S2 = 36, 48
    for i in range(6): a(f"v_pk_add_f32 v[{S1+2*i}:{S1+2*i+1}], v[{2*i}:{2*i+1}], v[{12+2*i}:{12+2*i+1}]")
    for i in range(6): a(f"v_pk_mul_f32 v[{S2+2*i}:{S2+2*i+1}], v[{2*i}:{2*i+1}], v[{2*i}:{2*i+1}]")
    for i in range(6): a(f"v_pk_add_f32 v[{S1+2*i}:{S1+2*i+1}], v[{S1+2*i}:{S1+2*i+1}], v[{24+2*i}:{24+2*i+1}]")
    for t in (1, 2):
        for i in range(6): a(f"v_pk_fma_f32 v[{S2+2*i}:{S2+2*i+1}], v[{12*t+2*i}:{12*t+2*i+1}], v[{12*t+2*i}:{12*t+2*i+1}], v[{S2+2*i}:{S2+2*i+1}]")
    P, Q, RR = 60, 66, 72
    for m in range(6):
        a(f"v_add_f32_dpp v{P+m}, v{S1+2*m}, v{S1+2*m} row_shl:8 row_mask:0xf bank_mask:0x3")
        a(f"v_add_f32_dpp v{P+m}, v{S1+2*m+1}, v{S1+2*m+1} row_shr:8 row_mask:0xf bank_mask:0xc")
    for m in range(6):
        a(f"v_add_f32_dpp v{Q+m}, v{S2+2*m}, v{S2+2*m} row_shl:8 row_mask:0xf bank_mask:0x3")
        a(f"v_add_f32_dpp v{Q+m}, v{S2+2*m+1}, v{S2+2*m+1} row_shr:8 row_mask:0xf bank_mask:0xc")
    for m in range(6): a(f"v_add_f32_dpp v{RR+m}, v{P+m}, v{P+m} row_shl:4 row_mask:0xf bank_mask:0x5")
    for m in range(6): a(f"v_add_f32_dpp v{RR+m}, v{Q+m}, v{Q+m} row_shr:4 row_mask:0xf bank_mask:0xa")
    for m in range(6): a(f"v_add_f32_dpp v{RR+m}, v{RR+m}, v{RR+m} quad_perm:[2,3,0,1] row_mask:0xf bank_mask:0xf")
    for m in range(6): a(f"v_add_f32_dpp v{RR+m}, v{RR+m}, v{RR+m} quad_perm:[1,0,3,2] row_mask:0xf bank_mask:0xf")
    a("v_mul_u32_u24 v141, 384, v130")
    a("v_mul_u32_u24 v142, 96, v136")
    a("v_and_b32 v143, 12, v139")
    a("v_add3_u32 v141, v141, v142, v143")
    a(f"v_add_u32 v141, {PART}, v141")
    for m in range(0, 6, 2):
        a(f"ds_write2_b32 v141, v{RR+m}, v{RR+m+1} offset0:{4*m} offset1:{4*m+4}")
    a("s_waitcnt lgkmcnt(0)")
    a("s_barrier")
    a("s_branch L_gather")

    a.label("L_loader")
    common_srds()
    a("s_cmp_eq_u32 s18, 7")
    a("s_cbranch_scc1 L_xloader")
    a.c("W loader: instruction i = wave-4 of every step")
    q = VmQ(a)
    a("v_subrev_u32 v140, 256, v0")
    a("v_mul_u32_u24 v141, 171, v140")
    a("v_lshrrev_b32 v141, 10, v141")
    a("v_mul_u32_u24 v142, 6, v141")
    a("v_sub_u32 v142, v140, v142")
    a("v_and_b32 v143, 0x13, v141")
    a("v_and_b32 v144, 4, v141")
    a("v_lshl_add_u32 v143, v144, 1, v143")
    a("v_and_b32 v144, 8, v141")
    a("v_lshrrev_b32 v144, 1, v144")
    a("v_add_u32 v143, v143, v144")
    a("v_mul_u32_u24 v143, 288, v143")
    a("v_lshl_add_u32 v139, v142, 4, v143")
    a("s_sub_u32 s51, s18, 4")
    a("s_lshl_b32 s51, s51, 10")
    def wload(n):
        c, p = STEPS[n]
        a(f"s_add_u32 m0, s51, {WB + (n % R)*3072}")
        a(f"s_mov_b32 s50, {(288*p + 32*c)*288}")
        a(f"buffer_load_dwordx4 v139, s[28:31], s50 offen{wnt} lds")
        q.issue(("W", n))
    for n in range(2): wload(n)
    gb_load(q)
    for n in range(2, R): wload(n)
    q.wait(lambda t: t in (("W", 0), ("W", 1)))
    if T: a("s_memtime s[64:65]")
    a("s_barrier")
    q.wait(lambda t: t == ("W", 2))
    stamp = 66
    for n in range(NS):
        a("s_barrier")
        if T and n in o.stamps:
            a(f"s_memtime s[{stamp}:{stamp+1}]"); stamp += 2
        if n + R < NS: wload(n + R)
        q.wait(lambda t: t == ("W", n + 3))
    a("s_waitcnt vmcnt(0)")
    a("s_barrier")
    if T: a("s_memtime s[86:87]")
    a("s_cmp_lg_u32 s18, 4")
    a("s_cbranch_scc1 L_gather")
    a.c("publisher: wave 4, lanes 0..23")
    a("s_mov_b64 exec, 0xffffff")
    a(f"v_lshlrev_b32 v140, 4, v129")
    a(f"v_add_u32 v140, {PART}, v140")
    for w in range(4): a(f"ds_read_b128 v[{40+4*w}:{43+4*w}], v140 offset:{384*w}")
    a("v_mul_u32_u24 v141, 43, v129")
    a("v_lshrrev_b32 v141, 7, v141")
    a("v_mul_u32_u24 v142, 2000, v141")
    a("v_lshl_add_u32 v142, v129, 4, v142")
    a("s_mul_i32 s50, s22, 48")
    a("s_waitcnt lgkmcnt(0)")
    a("v_pk_add_f32 v[40:41], v[40:41], v[44:45]")
    a("v_pk_add_f32 v[42:43], v[42:43], v[46:47]")
    a("v_pk_add_f32 v[48:49], v[48:49], v[52:53]")
    a("v_pk_add_f32 v[50:51], v[50:51], v[54:55]")
    a("v_pk_add_f32 v[40:41], v[40:41], v[48:49]")
    a("v_pk_add_f32 v[42:43], v[42:43], v[50:51]")
    for i in range(4): a(f"v_min_u32 v{40+i}, -2, v{40+i}")
    a("buffer_store_dwordx4 v[40:43], v142, s[36:39], s50 offen sc1")
    a("s_mov_b64 exec, -1")
    a("s_branch L_gather")

    a.label("L_xloader")
    q = VmQ(a)
    a.c("clear this workgroup's hand-off words")
    a("s_mov_b64 exec, 0xffffff")
    a("v_mul_u32_u24 v141, 43, v129")
    a("v_lshrrev_b32 v141, 7, v141")
    a("v_mul_u32_u24 v142, 2000, v141")
    a("v_lshl_add_u32 v142, v129, 4, v142")
    a("s_mul_i32 s50, s22, 48")
    for i in range(4): a(f"v_mov_b32 v{40+i}, -1")
    a("buffer_store_dwordx4 v[40:43], v142, s[36:39], s50 offen sc1"); q.issue("clr")
    a("s_mov_b64 exec, -1")
    gb_load(q)
    order = []
    seen = set(lam_of(CLASS_ORDER[0]))
    need = {}
    n0 = 0
    for c in CLASS_ORDER:
        for lam in lam_of(c):
            if lam not in seen:
                seen.add(lam); order.append(lam); need[lam] = n0 - 2
        n0 += 8 if c <= 4 else 7
    pend = [(lam, j) for lam in order for j in range(13)]
    for _ in range(13):
        lam, j = pend.pop(0); xload(q, lam, j, lam)
    q.wait(lambda t: t == "clr")
    a("s_lshl_b32 s44, s23, 5")
    a("v_mov_b32 v140, s44")
    a("v_mov_b32 v141, 1")
    a("s_mov_b64 exec, 1")
    a("global_atomic_add v140, v141, s[14:15]"); q.issue("atom")
    a("s_mov_b64 exec, -1")
    a("s_barrier")
    for n in range(NS):
        q.wait(lambda t: t in need and need[t] <= n)
        a("s_barrier")
        for _ in range(o.xrate):
            if pend:
                lam, j = pend.pop(0); xload(q, lam, j, lam)
        if n == NS - R + 1:
            a("global_load_dword v142, v140, s[14:15] sc1"); q.issue("cnt")
    assert not pend
    a("s_mov_b32 s45, 0")
    a.label("L_cnt_wait")
    a("s_waitcnt vmcnt(0)")
    a("v_readfirstlane_b32 s44, v142")
    a("s_nop 1")
    a("s_cmp_ge_u32 s44, 42")
    a("s_cbranch_scc1 L_cnt_ok")
    a("s_add_u32 s45, s45, 1")
    a("s_cmp_ge_u32 s45, 0x100000")
    a("s_cbranch_scc1 L_cnt_ok")
    a("s_sleep 2")
    a("global_load_dword v142, v140, s[14:15] sc1")
    a("s_branch L_cnt_wait")
    a.label("L_cnt_ok")
    a("s_barrier")

    a.label("L_gather")
    a("s_mov_b32 exec_hi, 0xffff")
    a("v_and_b32 v139, 15, v129")
    a("v_mul_u32_u24 v141, 48, v139")
    a("v_lshl_add_u32 v141, v136, 4, v141")
    a("s_mov_b32 s45, 0")
    a.label("L_poll")
    for k in range(3): a(f"buffer_load_dwordx4 v[{40+4*k}:{43+4*k}], v141, s[40:43], 0 offen offset:{768*k} sc1")
    a("s_waitcnt vmcnt(0)")
    a("v_max3_u32 v52, v40, v41, v42")
    a("v_max3_u32 v53, v43, v44, v45")
    a("v_max3_u32 v54, v46, v47, v48")
    a("v_max3_u32 v55, v49, v50, v51")
    a("v_max3_u32 v52, v52, v53, v54")
    a("v_max_u32 v52, v52, v55")
    a("v_cmp_eq_u32 vcc, -1, v52")
    a("s_add_u32 s45, s45, 1")
    a("s_cmp_lt_u32 s45, 0x100000")
    a("s_cselect_b64 s[46:47], -1, 0")
    a("s_and_b64 vcc, vcc, s[46:47]")
    a("s_cbranch_vccnz L_poll")
    if T: a("s_memtime s[88:89]")
    a("v_pk_add_f32 v[40:41], v[40:41], v[44:45]")
    a("v_pk_add_f32 v[42:43], v[42:43], v[46:47]")
    a("v_pk_add_f32 v[40:41], v[40:41], v[48:49]")
    a("v_pk_add_f32 v[42:43], v[42:43], v[50:51]")
    a("v_lshlrev_b32 v137, 16, v137")
    a("v_lshlrev_b32 v138, 16, v138")
    a("v_add_f32_dpp v44, v40, v40 row_shl:8 row_mask:0xf bank_mask:0x3")
    a("v_add_f32_dpp v44, v42, v42 row_shr:8 row_mask:0xf bank_mask:0xc")
    a("v_add_f32_dpp v45, v41, v41 row_shl:8 row_mask:0xf bank_mask:0x3")
    a("v_add_f32_dpp v45, v43, v43 row_shr:8 row_mask:0xf bank_mask:0xc")
    a("v_lshlrev_b32 v142, 2, v135")
    a(f"v_add_u32 v142, {AB}, v142")
    a("v_add_f32_dpp v46, v44, v44 row_shl:4 row_mask:0xf bank_mask:0x5")
    a("v_add_f32_dpp v46, v45, v45 row_shr:4 row_mask:0xf bank_mask:0xa")
    a(f"s_mov_b32 s44, {f2u(1.0/L):#x}")
    a("s_nop 0")
    a("v_add_f32_dpp v46, v46, v46 quad_perm:[2,3,0,1] row_mask:0xf bank_mask:0xf")
    a("s_nop 1")
    a("v_add_f32_dpp v46, v46, v46 quad_perm:[1,0,3,2] row_mask:0xf bank_mask:0xf")
    a("v_mul_f32 v46, s44, v46")
    a("s_nop 1")
    a("v_mov_b32_dpp v47, v46 row_shl:4 row_mask:0xf bank_mask:0xf")
    a("v_fma_f32 v47, -v46, v46, v47")
    a("v_max_f32 v47, 0, v47")
    a(f"v_add_f32 v47, {f2u(1e-5):#x}, v47")
    a("v_rsq_f32 v47, v47")
    a("s_mov_b32 exec_lo, 0x01010101")
    a("s_mov_b32 exec_hi, 0x00000101")
    a("v_mul_f32 v47, v137, v47")
    a("v_fma_f32 v46, -v46, v47, v138")
    a("ds_write2_b32 v142, v47, v46 offset0:0 offset1:48")
    a("s_mov_b64 exec, -1")
    a("s_waitcnt lgkmcnt(0)")
    a("s_barrier")
    a("s_cmp_ge_u32 s18, 4")
    a("s_cbranch_scc1 L_fin_loader" if T else "s_cbranch_scc1 L_end")

    a("v_mul_u32_u24 v141, 48, v136")
    a(f"v_add_u32 v141, {AB}, v141")
    for k in range(3): a(f"ds_read_b128 v[{40+4*k}:{43+4*k}], v141 offset:{16*k}")
    for k in range(3): a(f"ds_read_b128 v[{52+4*k}:{55+4*k}], v141 offset:{192+16*k}")
    C0 = -2.0 * 0.7978845608028654 * 1.4426950408889634
    C1 = C0 * 0.044715
    a(f"v_mov_b32 v64, {f2u(C0):#x}"); a(f"v_mov_b32 v65, {f2u(C0):#x}")
    a(f"v_mov_b32 v66, {f2u(C1):#x}"); a(f"v_mov_b32 v67, {f2u(C1):#x}")
    a("v_mov_b32 v68, 1.0"); a("v_mov_b32 v69, 1.0")
    a("v_mul_u32_u24 v142, 288, v140")
    a("v_mul_u32_u24 v143, 24, v136")
    a("v_add_u32 v142, v142, v143")
    a("s_waitcnt lgkmcnt(0)")
    for t in range(3):
        Y = 12*t; U = 72; O = 84 + 6*t
        O = [84, 92, 100][t]
        for i in range(6): a(f"v_pk_fma_f32 v[{Y+2*i}:{Y+2*i+1}], v[{Y+2*i}:{Y+2*i+1}], v[{40+2*i}:{41+2*i}], v[{52+2*i}:{53+2*i}]")
        for i in range(6): a(f"v_pk_mul_f32 v[{U+2*i}:{U+2*i+1}], v[{Y+2*i}:{Y+2*i+1}], v[{Y+2*i}:{Y+2*i+1}]")
        for i in range(6): a(f"v_pk_fma_f32 v[{U+2*i}:{U+2*i+1}], v[{U+2*i}:{U+2*i+1}], v[66:67], v[64:65]")
        for i in range(6): a(f"v_pk_mul_f32 v[{U+2*i}:{U+2*i+1}], v[{U+2*i}:{U+2*i+1}], v[{Y+2*i}:{Y+2*i+1}]")
        for i in range(12): a(f"v_exp_f32 v{U+i}, v{U+i}")
        for i in range(6): a(f"v_pk_add_f32 v[{U+2*i}:{U+2*i+1}], v[{U+2*i}:{U+2*i+1}], v[68:69]")
        for i in range(12): a(f"v_rcp_f32 v{U+i}, v{U+i}")
        for i in range(6): a(f"v_pk_mul_f32 v[{Y+2*i}:{Y+2*i+1}], v[{Y+2*i}:{Y+2*i+1}], v[{U+2*i}:{U+2*i+1}]")
        for i in range(6): a(f"v_cvt_pk_bf16_f32 v{O+i}, v{Y+2*i}, v{Y+2*i+1}")
        a(f"buffer_store_dwordx4 v[{O}:{O+3}], v142, s[32:35], 0 offen offset:{288*t}{o.stflag}")
        a(f"buffer_store_dwordx2 v[{O+4}:{O+5}], v142, s[32:35], 0 offen offset:{288*t+16}{o.stflag}")
    if T:
        a("s_memtime s[64:65]")
        a("s_waitcnt vmcnt(0)")
        a("s_memtime s[66:67]")
        a("s_memrealtime s[68:69]")
        a("s_cmp_lg_u32 s18, 0")
        a("s_cbranch_scc1 L_end")
        a("s_waitcnt lgkmcnt(0)")
        a("s_lshl_b32 s44, s2, 7")
        a("s_add_u32 s44, s44, 0x100040")
        a("v_mov_b32 v40, s60"); a("v_mov_b32 v41, s62"); a("v_mov_b32 v42, s64"); a("v_mov_b32 v43, s66")
        a("v_mov_b32 v44, s68"); a("v_mov_b32 v45, s88"); a("v_mov_b32 v46, 0"); a("v_mov_b32 v47, 0")
        a("v_mov_b32 v48, s44")
        a("s_mov_b64 exec, 1")
        a("global_store_dwordx4 v48, v[40:43], s[16:17]")
        a("global_store_dwordx4 v48, v[44:47], s[16:17] offset:16")
        if o.dbg:
            a("v_mov_b32 v50, 0")
            a("s_not_b32 s44, s62"); a("v_mov_b32 v51, s44"); a("global_atomic_umax v50, v51, s[14:15] offset:4")
            a("v_mov_b32 v52, s68"); a("global_atomic_umax v50, v52, s[14:15] offset:8")
            a("s_sub_u32 s44, s66, s60"); a("v_mov_b32 v53, s44"); a("global_atomic_umax v50, v53, s[14:15] offset:12")
            a("v_mov_b32 v54, s62"); a("global_atomic_umax v50, v54, s[14:15] offset:28")
        a("s_endpgm")
        a.label("L_fin_loader")
        a("s_cmp_lg_u32 s18, 5")
        a("s_cbranch_scc1 L_end")
        a("s_memtime s[90:91]")
        a("s_waitcnt lgkmcnt(0)")
        a("s_lshl_b32 s44, s2, 7")
        a("s_add_u32 s44, s44, 0x100000")
        regs = [60, 64] + list(range(66, 86, 2)) + [86, 88, 90, 62]
        for i, r in enumerate(regs): a(f"v_mov_b32 v{40+i}, s{r}")
        a("v_mov_b32 v60, s44")
        a("s_mov_b64 exec, 1")
        for k in range(4): a(f"global_store_dwordx4 v60, v[{40+4*k}:{43+4*k}], s[16:17] offset:{16*k}")
        if o.dbg:
            a("v_mov_b32 v70, 0")
            for k, (r, off) in enumerate([(64, 16), (86, 20), (88, 24), (66, 36), (70, 40), (76, 44), (84, 48)]):
                a(f"s_sub_u32 s44, s{r}, s60"); a(f"v_mov_b32 v{71+k}, s44"); a(f"global_atomic_umax v70, v{71+k}, s[14:15] offset:{off}")
    a.label("L_end")
    a("s_endpgm")

    hdr = f"""; Fused strided conv1d (im2col GEMM on MFMA) + per-channel norm over time + tanh-GELU.
; @launch grid=(256,1,1) block=(512,1,1) lds={LDS}
.amdgcn_target "amdgcn-amd-amdhsa--gfx950"
.text
.globl {NAME}_kernel
.p2align 8
.type {NAME}_kernel,@function
{NAME}_kernel:
"""
    ftr = f""".section .rodata,"a"
.p2align 6
.amdhsa_kernel {NAME}_kernel
  .amdhsa_next_free_vgpr 152
  .amdhsa_next_free_sgpr 96
  .amdhsa_accum_offset 152
  .amdhsa_group_segment_fixed_size 0
  .amdhsa_kernarg_size 56
  .amdhsa_float_denorm_mode_32 3
  .amdhsa_user_sgpr_count 2
  .amdhsa_user_sgpr_kernarg_segment_ptr 1
  .amdhsa_system_sgpr_workgroup_id_x 1
.end_amdhsa_kernel
"""
    return hdr + a.text() + ftr

if __name__ == "__main__":
    ap = argparse.ArgumentParser()
    ap.add_argument("-o", default=f"cdna_kernels/{NAME}.s")
    ap.add_argument("--timing", action="store_true")
    ap.add_argument("--dbg", action="store_true")
    ap.add_argument("--ring", type=int, default=15)
    ap.add_argument("--xrate", type=int, default=2)
    ap.add_argument("--x_nt", type=int, default=1)
    ap.add_argument("--w_nt", type=int, default=0)
    ap.add_argument("--stflag", default="")
    o = ap.parse_args()
    o.stamps = [0, 4, 8, 16, 24, 32, 40, 50, 60, 67]
    if o.stflag: o.stflag = " " + o.stflag
    open(o.o, "w").write(gen(o))
```

```python
import sys, struct, argparse

NAME = "standalone__self_sup_conv_stem_wavlm__speech"
L = 7993
ARR = 12800
WB = 9 * ARR
CLASS_ORDER = [4, 5, 3, 6, 2, 7, 1, 8, 0]
STEPS = [(c, p) for c in CLASS_ORDER for p in range(8 if c <= 4 else 7)]
NS = len(STEPS)
def f2u(x): return struct.unpack('<I', struct.pack('<f', x))[0]
def lam_of(c): return (c >> 1, 4 + ((c + 1) >> 1))
NEED = {}
_n = 0
for _c in CLASS_ORDER:
    for _l in lam_of(_c): NEED.setdefault(_l, _n - 2)
    _n += 8 if _c <= 4 else 7
LAM_ORDER = sorted(NEED, key=lambda l: NEED[l])

class Asm:
    def __init__(s): s.lines = []
    def __call__(s, t): s.lines.append("  " + t)
    def label(s, t): s.lines.append(t + ":")
    def c(s, t): s.lines.append("  ; " + t)
    def text(s): return "\n".join(s.lines) + "\n"

class VmQ:
    def __init__(s, a): s.a = a; s.q = []; s.done = 0
    def issue(s, tag):
        s.q.append(tag); assert len(s.q) - s.done <= 63, "vmcnt overflow"
    def wait(s, pred):
        last = -1
        for i, t in enumerate(s.q):
            if pred(t): last = i
        if last < s.done: return
        s.a(f"s_waitcnt vmcnt({len(s.q) - 1 - last})")
        s.done = last + 1

def gen(o):
    R = o.ring
    PART = WB + R * 3072
    AB = PART + 1536
    LDS = AB + 384
    assert LDS <= 163840
    a = Asm()
    xnt = " nt" if o.x_nt else ""
    xont = " nt" if o.xo_nt else ""
    wnt = " nt" if o.w_nt else ""
    T = o.timing
    bursts = o.bursts
    a("s_cmp_ge_u32 s2, 256")
    a("s_cbranch_scc1 L_end")
    a("s_load_dwordx8 s[4:11], s[0:1], 0")
    a("s_load_dwordx4 s[12:15], s[0:1], 32")
    a("s_load_dwordx2 s[16:17], s[0:1], 48")
    if T:
        a("s_memtime s[60:61]")
        a("s_memrealtime s[62:63]")
    a("v_lshrrev_b32 v130, 6, v0")
    a("v_and_b32 v129, 63, v0")
    a("v_readfirstlane_b32 s18, v130")
    a("s_and_b32 s44, s2, 7")
    a("s_lshr_b32 s49, s2, 3")
    a("s_lshl_b32 s46, s44, 1")
    a("s_add_u32 s46, s46, s49")
    a("s_sub_u32 s46, s46, 30")
    a("s_mul_i32 s47, s44, 10")
    a("s_cmp_lt_u32 s49, 30")
    a("s_cselect_b32 s46, s49, s46")
    a("s_cselect_b32 s47, s47, 80")
    a("s_cselect_b32 s48, 0, s46")
    a("s_cmp_ge_u32 s48, 12")
    a("s_cbranch_scc1 L_end")
    a("s_mul_i32 s48, s46, 43")
    a("s_lshr_b32 s48, s48, 7")
    a("s_add_u32 s19, s47, s48")
    a("s_mul_i32 s48, s48, 3")
    a("s_sub_u32 s20, s46, s48")
    a("s_cmp_ge_u32 s19, 42")
    a("s_cselect_b32 s21, 1, 0")
    a("s_cselect_b32 s48, 42, 0")
    a("s_cselect_b32 s23, 3, 0")
    a("s_cselect_b32 s44, 4608000, 0")
    a("s_sub_u32 s22, s19, s48")
    a("s_add_u32 s23, s23, s20")
    a("s_mul_i32 s45, s22, 110592")
    a("s_add_u32 s44, s44, s45")
    a("s_sub_u32 s26, 4607712, s45")
    a("s_mov_b32 s27, 0x20000")
    a("v_lshrrev_b32 v136, 4, v129")
    a("s_cmp_lt_u32 s18, 4")
    a("s_cbranch_scc1 L_xsetup")
    a("s_cmp_lt_u32 s18, 7")
    a("s_cbranch_scc1 L_wloader")
    a.label("L_xsetup")
    a("v_lshrrev_b32 v132, 3, v129")
    a("v_and_b32 v133, 2, v132")
    a("v_and_b32 v134, 7, v129")
    a("v_xor_b32 v133, v133, v134")
    a("v_lshlrev_b32 v133, 4, v133")
    a("v_mul_u32_u24 v131, 1152, v132")
    a("v_add_u32 v131, v131, v133")
    a("s_add_u32 s46, s20, 1")
    a("s_cmp_eq_u32 s46, 3")
    a("s_cselect_b32 s46, 0, s46")
    a("s_add_u32 s47, s20, s46")
    a("s_sub_u32 s47, 3, s47")
    a("s_lshl_b32 s92, s20, 10"); a("s_lshl_b32 s93, s46, 10"); a("s_lshl_b32 s94, s47, 10")
    a("s_mul_i32 s95, s20, 9216"); a("s_mul_i32 s96, s46, 9216"); a("s_mul_i32 s97, s47, 9216")
    a("s_cmp_eq_u32 s18, 7")
    a("s_cbranch_scc1 L_xloader")

    def pub_srd():
        a("s_lshl_b32 s44, s23, 14")
        a("s_add_u32 s36, s16, s44")
        a("s_addc_u32 s37, s17, 0")
        a("s_mov_b32 s38, 16128")
        a("s_mov_b32 s39, 0x20000")

    a.c("consumer prologue: wave w loads piece m = w of the first arrays")
    a("s_mul_i32 s46, s18, 3072")
    a("s_mul_i32 s47, s18, 27648")
    for d in range(3):
        a(f"s_add_u32 s{92+d}, s{92+d}, s46")
        a(f"s_add_u32 s{95+d}, s{95+d}, s47")
    a("s_waitcnt lgkmcnt(0)")
    a("s_add_u32 s24, s4, s44")
    a("s_addc_u32 s25, s5, 0")
    def cload(lam, d):
        a(f"s_add_u32 m0, s{92+d}, {lam*ARR}")
        a(f"s_add_u32 s50, s{95+d}, {lam*128}")
        a(f"buffer_load_dwordx4 v131, s[24:27], s50 offen{xnt if d == 0 else xont} lds")
    for lam in bursts[0][0]: cload(lam, 0)
    a("s_barrier")
    for d in (1, 2):
        for lam in LAM_ORDER[:2]: cload(lam, d)
    pub_srd()
    a("s_cmp_lg_u32 s18, 0")
    a("s_cbranch_scc1 L_c_noclr")
    a.c("wave 0 clears this workgroup's hand-off words")
    a("s_mov_b64 exec, 0xffffff")
    a("v_lshlrev_b32 v142, 4, v129")
    a("s_mul_i32 s50, s22, 384")
    for i in range(4): a(f"v_mov_b32 v{40+i}, -1")
    a("buffer_store_dwordx4 v[40:43], v142, s[36:39], s50 offen sc1")
    a("s_mov_b64 exec, -1")
    a.label("L_c_noclr")
    a(f"s_mul_i32 s44, s21, {L}")
    a("s_mul_i32 s45, s22, 192")
    a("s_add_u32 s44, s44, s45")
    a("s_mul_i32 s44, s44, 288")
    a("s_mul_i32 s46, s20, 96")
    a("s_add_u32 s44, s44, s46")
    a("s_add_u32 s32, s12, s44")
    a("s_addc_u32 s33, s13, 0")
    a(f"s_sub_u32 s34, {L}, s45")
    a("s_mul_i32 s34, s34, 288")
    a("s_sub_u32 s34, s34, s46")
    a("s_mov_b32 s35, 0x20000")
    a("v_and_b32 v139, 15, v129")
    a("v_mul_u32_u24 v140, 3, v139")
    a("v_mul_u32_u24 v141, 48, v130")
    a("v_add_u32 v140, v140, v141")
    for s in range(8):
        a(f"v_add_u32 v141, {s}, v140")
        a("v_lshrrev_b32 v142, 1, v141")
        a("v_and_b32 v141, 1, v141")
        a("v_and_b32 v143, 2, v142")
        a("v_xor_b32 v143, v143, v136")
        a("v_lshlrev_b32 v143, 4, v143")
        a("v_lshl_add_u32 v143, v142, 7, v143")
        a(f"v_mul_u32_u24 v142, {4*ARR+64}, v141")
        a(f"v_add_u32 v{112+s}, v143, v142")
        a(f"v_mul_u32_u24 v142, {5*ARR-64}, v141")
        a(f"v_add3_u32 v{120+s}, v143, v142, 64")
    a("v_lshrrev_b32 v141, 1, v136")
    a("v_lshlrev_b32 v141, 4, v141")
    a("v_and_b32 v142, 1, v136")
    a("v_lshl_add_u32 v141, v142, 2, v141")
    a("v_bfe_u32 v142, v129, 2, 2")
    a("v_add_u32 v141, v141, v142")
    a("v_mul_u32_u24 v141, 96, v141")
    a("v_and_b32 v142, 3, v129")
    a("v_mul_u32_u24 v142, 24, v142")
    a("v_add_u32 v141, v141, v142")
    a(f"v_add_u32 v128, {WB}, v141")
    for i in range(36): a(f"v_mov_b32 v{i}, 0")
    a("s_waitcnt vmcnt(0)")
    a("s_cmp_lg_u32 s18, 0")
    a("s_cbranch_scc1 L_c_noatom")
    a("s_lshl_b32 s44, s23, 5")
    a("v_mov_b32 v141, s44")
    a("v_mov_b32 v142, 1")
    a("s_mov_b64 exec, 1")
    a("global_atomic_add v141, v142, s[14:15]")
    a("s_mov_b64 exec, -1")
    a.label("L_c_noatom")
    a("s_barrier")

    def reads_for(n):
        if n >= NS: return []
        c, p = STEPS[n]
        r = []
        bb = 76 + 12 * (n % 3)
        for nt in range(3):
            for kh in range(2):
                d = bb + 4*nt + 2*kh
                r.append(f"ds_read_b64_tr_b16 v[{d}:{d+1}], v128 offset:{(n % R)*3072 + kh*768 + 8*nt}")
        xr = []
        for s in ([0, 1, 2] if p == 0 else [p + 2]):
            d = 36 + 4*s
            xr.append(f"ds_read_b128 v[{d}:{d+3}], v{112 + 8*(c & 1) + (s & 7)} offset:{(c >> 1)*ARR + (512 if s >= 8 else 0)}")
        return xr + r
    r0 = reads_for(0); r1 = reads_for(1)
    for t in r0: a(t)
    a("s_waitcnt lgkmcnt(4)")
    for t in r1: a(t)
    prev = len(r1)
    for n in range(NS):
        c, p = STEPS[n]
        a.c(f"step {n}: class {c} p {p}")
        a(f"s_waitcnt lgkmcnt({prev})")
        a("s_barrier")
        rd = reads_for(n + 2)
        prev = len(rd)
        bb = 76 + 12 * (n % 3)
        for t in range(3):
            for nt in range(3):
                acc = 12*t + 4*nt
                f = 36 + 4*(p + t)
                a(f"v_mfma_f32_16x16x32_bf16 v[{acc}:{acc+3}], v[{bb+4*nt}:{bb+4*nt+3}], v[{f}:{f+3}], v[{acc}:{acc+3}]")
                if rd: a(rd.pop(0))
        assert not rd
    a.c("stats")
    a("v_mul_u32_u24 v141, 384, v130")
    a("v_mul_u32_u24 v142, 96, v136")
    a("v_and_b32 v143, 12, v139")
    a("v_add3_u32 v141, v141, v142, v143")
    a(f"v_add_u32 v141, {PART}, v141")
    a("s_nop 1")
    a("s_cmp_lg_u32 s22, 41")
    a("s_cbranch_scc1 L_c_nomask")
    for t in range(3):
        a(f"v_cmp_gt_u32 vcc, {L - 41*192 - t}, v140")
        a("s_nop 1")
        for i in range(12): a(f"v_cndmask_b32 v{12*t+i}, 0, v{12*t+i}, vcc")
    a.label("L_c_nomask")
    S1, S2 = 36, 48
    for i in range(6): a(f"v_pk_add_f32 v[{S1+2*i}:{S1+2*i+1}], v[{2*i}:{2*i+1}], v[{12+2*i}:{12+2*i+1}]")
    for i in range(6): a(f"v_pk_mul_f32 v[{S2+2*i}:{S2+2*i+1}], v[{2*i}:{2*i+1}], v[{2*i}:{2*i+1}]")
    for i in range(6): a(f"v_pk_fma_f32 v[{S2+2*i}:{S2+2*i+1}], v[{12+2*i}:{12+2*i+1}], v[{12+2*i}:{12+2*i+1}], v[{S2+2*i}:{S2+2*i+1}]")
    for i in range(6): a(f"v_pk_add_f32 v[{S1+2*i}:{S1+2*i+1}], v[{S1+2*i}:{S1+2*i+1}], v[{24+2*i}:{24+2*i+1}]")
    for i in range(6): a(f"v_pk_fma_f32 v[{S2+2*i}:{S2+2*i+1}], v[{24+2*i}:{24+2*i+1}], v[{24+2*i}:{24+2*i+1}], v[{S2+2*i}:{S2+2*i+1}]")
    P, Q, RR = 60, 66, 72
    for m in range(6):
        a(f"v_add_f32_dpp v{P+m}, v{S1+2*m}, v{S1+2*m} row_shl:8 row_mask:0xf bank_mask:0x3")
        a(f"v_add_f32_dpp v{P+m}, v{S1+2*m+1}, v{S1+2*m+1} row_shr:8 row_mask:0xf bank_mask:0xc")
    for m in range(6):
        a(f"v_add_f32_dpp v{Q+m}, v{S2+2*m}, v{S2+2*m} row_shl:8 row_mask:0xf bank_mask:0x3")
        a(f"v_add_f32_dpp v{Q+m}, v{S2+2*m+1}, v{S2+2*m+1} row_shr:8 row_mask:0xf bank_mask:0xc")
    for m in range(6): a(f"v_add_f32_dpp v{RR+m}, v{P+m}, v{P+m} row_shl:4 row_mask:0xf bank_mask:0x5")
    for m in range(6): a(f"v_add_f32_dpp v{RR+m}, v{Q+m}, v{Q+m} row_shr:4 row_mask:0xf bank_mask:0xa")
    for m in range(6): a(f"v_add_f32_dpp v{RR+m}, v{RR+m}, v{RR+m} quad_perm:[2,3,0,1] row_mask:0xf bank_mask:0xf")
    for m in range(6): a(f"v_add_f32_dpp v{RR+m}, v{RR+m}, v{RR+m} quad_perm:[1,0,3,2] row_mask:0xf bank_mask:0xf")
    for m in range(0, 6, 2):
        a(f"ds_write2_b32 v141, v{RR+m}, v{RR+m+1} offset0:{4*m} offset1:{4*m+4}")
    a("s_waitcnt lgkmcnt(0)")
    a("s_barrier")
    C0 = -2.0 * 0.7978845608028654 * 1.4426950408889634
    C1 = C0 * 0.044715
    a(f"v_mov_b32 v64, {f2u(C0):#x}"); a(f"v_mov_b32 v65, {f2u(C0):#x}")
    a(f"v_mov_b32 v66, {f2u(C1):#x}"); a(f"v_mov_b32 v67, {f2u(C1):#x}")
    a("v_mov_b32 v68, 1.0"); a("v_mov_b32 v69, 1.0")
    a("v_mul_u32_u24 v142, 288, v140")
    a("v_mul_u32_u24 v143, 24, v136")
    a("v_add_u32 v142, v142, v143")
    a("v_mul_u32_u24 v141, 48, v136")
    a(f"v_add_u32 v141, {AB}, v141")
    if o.dry:
        a("s_mov_b32 s45, 0")
        a("s_branch L_gelu")
        a.label("L_gelu_real")
        a("s_mov_b32 s45, 1")
    a("s_barrier")
    if T: a("s_memtime s[88:89]")
    for k in range(3): a(f"ds_read_b128 v[{40+4*k}:{43+4*k}], v141 offset:{16*k}")
    for k in range(3): a(f"ds_read_b128 v[{52+4*k}:{55+4*k}], v141 offset:{192+16*k}")
    a("s_waitcnt lgkmcnt(0)")
    a.label("L_gelu")
    for t in range(3):
        H = 12*t; Y = 72; U = 84; O = [96, 104, 112][t]
        for i in range(6): a(f"v_pk_fma_f32 v[{Y+2*i}:{Y+2*i+1}], v[{H+2*i}:{H+2*i+1}], v[{40+2*i}:{41+2*i}], v[{52+2*i}:{53+2*i}]")
        for i in range(6): a(f"v_pk_mul_f32 v[{U+2*i}:{U+2*i+1}], v[{Y+2*i}:{Y+2*i+1}], v[{Y+2*i}:{Y+2*i+1}]")
        for i in range(6): a(f"v_pk_fma_f32 v[{U+2*i}:{U+2*i+1}], v[{U+2*i}:{U+2*i+1}], v[66:67], v[64:65]")
        for i in range(6): a(f"v_pk_mul_f32 v[{U+2*i}:{U+2*i+1}], v[{U+2*i}:{U+2*i+1}], v[{Y+2*i}:{Y+2*i+1}]")
        for i in range(12): a(f"v_exp_f32 v{U+i}, v{U+i}")
        for i in range(6): a(f"v_pk_add_f32 v[{U+2*i}:{U+2*i+1}], v[{U+2*i}:{U+2*i+1}], v[68:69]")
        for i in range(12): a(f"v_rcp_f32 v{U+i}, v{U+i}")
        for i in range(6): a(f"v_pk_mul_f32 v[{Y+2*i}:{Y+2*i+1}], v[{Y+2*i}:{Y+2*i+1}], v[{U+2*i}:{U+2*i+1}]")
        for i in range(6): a(f"v_cvt_pk_bf16_f32 v{O+i}, v{Y+2*i}, v{Y+2*i+1}")
        if o.dry:
            a("s_cmp_eq_u32 s45, 0")
            a(f"s_cbranch_scc1 {'L_gelu_real' if t == 2 else f'L_gelu_skip{t}'}")
        a(f"buffer_store_dwordx4 v[{O}:{O+3}], v142, s[32:35], 0 offen offset:{288*t}{o.stflag}")
        a(f"buffer_store_dwordx2 v[{O+4}:{O+5}], v142, s[32:35], 0 offen offset:{288*t+16}{o.stflag}")
        if o.dry and t < 2: a.label(f"L_gelu_skip{t}")
    if T:
        a("s_memtime s[64:65]")
        a("s_waitcnt vmcnt(0)")
        a("s_memtime s[66:67]")
        a("s_memrealtime s[68:69]")
        a("s_cmp_lg_u32 s18, 0")
        a("s_cbranch_scc1 L_end")
        a("s_waitcnt lgkmcnt(0)")
        a("s_lshl_b32 s44, s2, 7")
        a("s_add_u32 s44, s44, 0x100040")
        a("v_mov_b32 v40, s60"); a("v_mov_b32 v41, s62"); a("v_mov_b32 v42, s64"); a("v_mov_b32 v43, s66")
        a("v_mov_b32 v44, s68"); a("v_mov_b32 v45, s88"); a("v_mov_b32 v46, 0"); a("v_mov_b32 v47, 0")
        a("v_mov_b32 v48, s44")
        a("s_mov_b64 exec, 1")
        a("global_store_dwordx4 v48, v[40:43], s[16:17]")
        a("global_store_dwordx4 v48, v[44:47], s[16:17] offset:16")
    a("s_endpgm")

    a.label("L_wloader")
    q = VmQ(a)
    a("v_subrev_u32 v140, 256, v0")
    a("v_mul_u32_u24 v141, 171, v140")
    a("v_lshrrev_b32 v141, 10, v141")
    a("v_mul_u32_u24 v142, 6, v141")
    a("v_sub_u32 v142, v140, v142")
    a("v_and_b32 v143, 0x13, v141")
    a("v_and_b32 v144, 4, v141")
    a("v_lshl_add_u32 v143, v144, 1, v143")
    a("v_and_b32 v144, 8, v141")
    a("v_lshrrev_b32 v144, 1, v144")
    a("v_add_u32 v143, v143, v144")
    a("v_mul_u32_u24 v143, 288, v143")
    a("v_lshl_add_u32 v139, v142, 4, v143")
    a("s_sub_u32 s49, s18, 4")
    a("s_lshl_b32 s51, s49, 10")
    a("s_mul_i32 s46, s20, 96")
    a("s_sub_u32 s30, 622080, s46")
    a("s_mov_b32 s31, 0x20000")
    a("s_waitcnt lgkmcnt(0)")
    a("s_add_u32 s28, s6, s46")
    a("s_addc_u32 s29, s7, 0")
    a("s_barrier")
    def wload(n):
        c, p = STEPS[n]
        a(f"s_add_u32 m0, s51, {WB + (n % R)*3072}")
        a(f"s_mov_b32 s50, {(288*p + 32*c)*288}")
        a(f"buffer_load_dwordx4 v139, s[28:31], s50 offen{wnt} lds")
        q.issue(("W", n))
    nxt = 0
    while nxt < o.winit: wload(nxt); nxt += 1
    a("v_and_b32 v135, 7, v129")
    a("v_lshlrev_b32 v135, 1, v135")
    a("v_lshrrev_b32 v134, 5, v129")
    a("v_add_u32 v135, v135, v134")
    a("s_lshl_b32 s44, s49, 4")
    a("v_add_u32 v135, s44, v135")
    a("v_lshlrev_b32 v134, 1, v135")
    a("v_add_u32 v134, s46, v134")
    a("s_mov_b32 s52, s8"); a("s_mov_b32 s53, s9"); a("s_mov_b32 s54, 288"); a("s_mov_b32 s55, 0x20000")
    a("s_mov_b32 s56, s10"); a("s_mov_b32 s57, s11"); a("s_mov_b32 s58, 288"); a("s_mov_b32 s59, 0x20000")
    pub_srd()
    q.wait(lambda t: t in (("W", 0), ("W", 1)))
    if T: a("s_memtime s[64:65]")
    a("s_barrier")
    q.wait(lambda t: t == ("W", 2))
    stamp = 66
    for n in range(NS):
        a("s_barrier")
        if T and n in o.stamps:
            a(f"s_memtime s[{stamp}:{stamp+1}]"); stamp += 2
            if n == 0: a("s_memrealtime s[98:99]")
            if n == 67: a("s_memrealtime s[100:101]")
        k = 0
        while nxt < NS and nxt <= n + R and k < o.wrate and n >= o.wresume:
            wload(nxt); nxt += 1; k += 1
        if n == NS - R + 1:
            a("buffer_load_ushort v137, v134, s[52:55], 0 offen"); q.issue("gb")
            a("buffer_load_ushort v138, v134, s[56:59], 0 offen"); q.issue("gb")
        assert nxt > min(n + 3, NS - 1)
        q.wait(lambda t: t == ("W", n + 3))
    a("v_and_b32 v140, 7, v129")
    a("v_lshlrev_b32 v140, 4, v140")
    a("s_lshl_b32 s44, s49, 7")
    a("v_add_u32 v140, s44, v140")
    a(f"v_add_u32 v141, {PART}, v140")
    a("v_lshrrev_b32 v142, 3, v129")
    a("v_mul_u32_u24 v142, 384, v142")
    a("v_add_u32 v142, v142, v140")
    a("s_mul_i32 s50, s22, 384")
    a("v_lshlrev_b32 v143, 2, v135")
    a(f"v_add_u32 v143, {AB}, v143")
    a(f"s_mov_b32 s44, {f2u(1.0/L):#x}")
    a("s_mov_b32 s45, 0")
    a("s_movk_i32 s46, 3072"); a("s_movk_i32 s47, 9216"); a("s_movk_i32 s48, 15360")
    a("s_waitcnt vmcnt(0)")
    a("v_lshlrev_b32 v137, 16, v137")
    a("v_lshlrev_b32 v138, 16, v138")
    a("s_mov_b64 exec, 0xff")
    a("s_barrier")
    if T: a("s_memtime s[86:87]")
    for w in range(4): a(f"ds_read_b128 v[{40+4*w}:{43+4*w}], v141 offset:{384*w}")
    a("s_waitcnt lgkmcnt(2)" if not T else "s_waitcnt lgkmcnt(0)")
    a("v_pk_add_f32 v[40:41], v[40:41], v[44:45]")
    a("v_pk_add_f32 v[42:43], v[42:43], v[46:47]")
    a("s_waitcnt lgkmcnt(0)")
    a("v_pk_add_f32 v[48:49], v[48:49], v[52:53]")
    a("v_pk_add_f32 v[50:51], v[50:51], v[54:55]")
    a("v_pk_add_f32 v[40:41], v[40:41], v[48:49]")
    a("v_pk_add_f32 v[42:43], v[42:43], v[50:51]")
    for i in range(4): a(f"v_min_u32 v{40+i}, -2, v{40+i}")
    a("buffer_store_dwordx4 v[40:43], v140, s[36:39], s50 offen sc1")
    a("s_mov_b64 exec, -1")
    a.label("L_poll")
    so = ["0", "s46", "s46", "s47", "s47", "s48"]; io = [0, 0, 3072, 0, 3072, 0]
    for k in range(6): a(f"buffer_load_dwordx4 v[{44+4*k}:{47+4*k}], v142, s[36:39], {so[k]} offen offset:{io[k]} sc1")
    a("s_waitcnt vmcnt(4)")
    a("v_pk_add_f32 v[68:69], v[44:45], v[48:49]")
    a("v_pk_add_f32 v[70:71], v[46:47], v[50:51]")
    a("s_waitcnt vmcnt(2)")
    a("v_pk_add_f32 v[72:73], v[52:53], v[56:57]")
    a("v_pk_add_f32 v[74:75], v[54:55], v[58:59]")
    a("v_pk_add_f32 v[68:69], v[68:69], v[72:73]")
    a("v_pk_add_f32 v[70:71], v[70:71], v[74:75]")
    a("s_waitcnt vmcnt(0)")
    a("v_pk_add_f32 v[72:73], v[60:61], v[64:65]")
    a("v_pk_add_f32 v[74:75], v[62:63], v[66:67]")
    a("v_pk_add_f32 v[68:69], v[68:69], v[72:73]")
    a("v_pk_add_f32 v[70:71], v[70:71], v[74:75]")
    a("v_cmp_u_f32 vcc, v68, v69")
    a("v_cmp_u_f32 s[90:91], v70, v71")
    a("s_nop 0")
    a("s_or_b64 vcc, vcc, s[90:91]")
    a("s_cbranch_vccnz L_recheck")
    a.label("L_polled")
    if T: a("s_memtime s[88:89]")
    a("v_permlane32_swap_b32 v68, v70")
    a("v_permlane32_swap_b32 v69, v71")
    a("v_add_f32 v68, v68, v70")
    a("v_add_f32 v69, v69, v71")
    a("s_nop 1")
    a("v_permlane16_swap_b32 v68, v69")
    a("v_add_f32 v68, v68, v69")
    a("s_nop 1")
    a("v_add_f32_dpp v68, v68, v68 row_ror:8 row_mask:0xf bank_mask:0xf")
    a("v_mul_f32 v68, s44, v68")
    a("v_mov_b32 v69, v68")
    a("s_nop 1")
    a("v_permlane16_swap_b32 v68, v69")
    a("v_fma_f32 v69, -v68, v68, v69")
    a("v_max_f32 v69, 0, v69")
    a(f"v_add_f32 v69, {f2u(1e-5):#x}, v69")
    a("v_rsq_f32 v69, v69")
    a("s_mov_b32 exec_lo, 0xff")
    a("s_mov_b32 exec_hi, 0xff")
    a("v_mul_f32 v69, v137, v69")
    a("v_fma_f32 v68, -v68, v69, v138")
    a("ds_write2_b32 v143, v69, v68 offset0:0 offset1:48")
    a("s_waitcnt lgkmcnt(0)")
    a("s_barrier")
    if T:
        a("s_cmp_lg_u32 s18, 5")
        a("s_cbranch_scc1 L_end")
        a("s_memtime s[90:91]")
        a("s_waitcnt lgkmcnt(0)")
        a("s_lshl_b32 s44, s2, 7")
        a("s_add_u32 s44, s44, 0x100000")
        regs = [60, 64] + list(range(66, 86, 2)) + [86, 88, 90, 62]
        for i, r in enumerate(regs): a(f"v_mov_b32 v{40+i}, s{r}")
        a("v_mov_b32 v60, s44")
        a("v_mov_b32 v62, s98"); a("v_mov_b32 v63, s100")
        a("s_mov_b64 exec, 1")
        for k in range(4): a(f"global_store_dwordx4 v60, v[{40+4*k}:{43+4*k}], s[16:17] offset:{16*k}")
        a("global_store_dwordx2 v60, v[62:63], s[16:17] offset:96")
    a("s_endpgm")
    a.label("L_recheck")
    a.c("a NaN sum: a word not yet written, or a genuine NaN")
    for k in range(8): a(f"v_max3_u32 v{72+k}, v{44+3*k}, v{45+3*k}, v{46+3*k}")
    a("v_max3_u32 v72, v72, v73, v74"); a("v_max3_u32 v75, v75, v76, v77")
    a("v_max3_u32 v72, v72, v78, v79"); a("v_max_u32 v72, v72, v75")
    a("v_cmp_eq_u32 vcc, -1, v72")
    a("s_add_u32 s45, s45, 1")
    a("s_cmp_ge_u32 s45, 0x100000")
    a("s_cbranch_scc1 L_polled")
    a("s_cbranch_vccnz L_poll")
    a("s_branch L_polled")

    a.label("L_xloader")
    q = VmQ(a)
    a("v_mul_u32_u24 v140, 57, v129")
    a("v_lshrrev_b32 v140, 10, v140")
    a("v_mul_u32_u24 v141, 18, v140")
    a("v_sub_u32 v141, v129, v141")
    a("v_lshl_add_u32 v141, v141, 5, s49")
    a("v_mul_u32_u24 v142, 911, v141")
    a("v_lshrrev_b32 v142, 16, v142")
    a("v_mul_u32_u24 v143, 73728, v142")
    a("v_lshl_add_u32 v143, v141, 7, v143")
    a("s_mov_b32 s30, 622080")
    a("s_mov_b32 s31, 0x20000")
    a("v_cmp_eq_u32 s[52:53], 1, v140")
    a("v_cmp_eq_u32 s[54:55], 2, v140")
    def wpre(ci):
        c0, c1, c2 = [CLASS_ORDER[ci + k] * 9216 for k in range(3)]
        a(f"v_mov_b32 v144, {c0}")
        a(f"v_mov_b32 v145, {c1}")
        a("v_cndmask_b32 v144, v144, v145, s[52:53]")
        a(f"v_mov_b32 v145, {c2}")
        a("v_cndmask_b32 v144, v144, v145, s[54:55]")
        a("v_add_u32 v144, v144, v143")
        a("s_mov_b32 exec_hi, 0x3fffff")
        a(f"buffer_load_dword v146, v144, s[28:31], 0 offen{o.wpflag}")
        a("s_mov_b32 exec_hi, -1")
        q.issue("wp")
    def xload(lam, d, m):
        a(f"s_add_u32 m0, s{92+d}, {lam*ARR + m*3072}")
        a(f"s_add_u32 s50, s{95+d}, {lam*128 + m*27648}")
        a(f"buffer_load_dwordx4 v131, s[24:27], s50 offen{xnt if d == 0 else xont} lds")
        q.issue(lam)
    def xhalf(lam):
        a(f"s_mov_b32 m0, {lam*ARR + 12*1024}")
        a(f"s_mov_b32 s50, {12*9216 + lam*128}")
        a("s_mov_b32 exec_hi, 0")
        a(f"buffer_load_dwordx4 v131, s[24:27], s50 offen{xnt} lds")
        a("s_mov_b32 exec_hi, -1")
        q.issue(lam)
    if o.codepf:
        a("s_getpc_b64 s[56:57]")
        a.label("L_pc")
        a(f"s_sub_u32 s56, s56, L_pc-{NAME}_kernel")
        a("s_subb_u32 s57, s57, 0")
        a("v_lshlrev_b32 v147, 5, v129")
        a("v_add_u32 v147, s49, v147")
        a("v_lshlrev_b32 v147, 7, v147")
        a(f"s_mov_b32 s58, L_code_end-{NAME}_kernel")
        a("s_mov_b32 s59, 0x20000")
    a("s_waitcnt lgkmcnt(0)")
    a("s_mov_b32 s28, s6")
    a("s_mov_b32 s29, s7")
    a("s_add_u32 s24, s4, s44")
    a("s_addc_u32 s25, s5, 0")
    if bursts[0][1] is not None: wpre(bursts[0][1])
    if o.codepf:
        a("s_mov_b64 exec, 0xff")
        a("buffer_load_dword v148, v147, s[56:59], 0 offen"); q.issue("cp")
        a("s_mov_b64 exec, -1")
    for lam in bursts[0][0]: xhalf(lam)
    a("s_barrier")
    ops = {}
    for (lams, ci, at) in bursts[1:]:
        l = ops.setdefault(at, [])
        if ci is not None: l.append(("wp", ci))
        for lam in lams:
            for m in range(4): l.append(("x", lam, 0, m))
        for lam in lams: l.append(("h", lam))
    for lam in LAM_ORDER[2:]:
        at = o.oth[lam]
        k = 0
        for d in (1, 2):
            for m in range(4):
                ops.setdefault(at + k // o.othrate, []).append(("x", lam, d, m)); k += 1
    def run_ops(n):
        for op in ops.pop(n, []):
            if op[0] == "wp": wpre(op[1])
            elif op[0] == "x": xload(*op[1:])
            else: xhalf(op[1])
    run_ops(-2)
    q.wait(lambda t: t in LAM_ORDER[:2])
    a("s_barrier")
    run_ops(-1)
    for n in range(NS):
        q.wait(lambda t: t in NEED and NEED[t] <= n)
        a("s_barrier")
        run_ops(n)
        if n == NS - R + 1:
            a("s_lshl_b32 s44, s23, 5")
            a("v_mov_b32 v140, s44")
            a("global_load_dword v142, v140, s[14:15] sc1"); q.issue("cnt")
    assert not ops, ops
    a("s_mov_b32 s45, 0")
    a.label("L_cnt_wait")
    a("s_waitcnt vmcnt(0)")
    a("v_readfirstlane_b32 s44, v142")
    a("s_add_u32 s45, s45, 1")
    a("s_cmp_ge_u32 s44, 42")
    a("s_cbranch_scc1 L_cnt_ok")
    a("s_cmp_ge_u32 s45, 0x100000")
    a("s_cbranch_scc1 L_cnt_ok")
    a("global_load_dword v142, v140, s[14:15] sc1")
    a("s_branch L_cnt_wait")
    a.label("L_cnt_ok")
    a("s_barrier")
    a("s_barrier")
    a.label("L_end")
    a("s_endpgm")
    a.label("L_code_end")

    hdr = f"""; Fused strided conv1d (im2col GEMM on MFMA) + per-channel norm over time + tanh-GELU.
; @launch grid=(256,1,1) block=(512,1,1) lds={LDS}
.amdgcn_target "amdgcn-amd-amdhsa--gfx950"
.text
.globl {NAME}_kernel
.p2align 8
.type {NAME}_kernel,@function
{NAME}_kernel:
"""
    ftr = f""".section .rodata,"a"
.p2align 6
.amdhsa_kernel {NAME}_kernel
  .amdhsa_next_free_vgpr 152
  .amdhsa_next_free_sgpr 102
  .amdhsa_accum_offset 152
  .amdhsa_group_segment_fixed_size 0
  .amdhsa_kernarg_size 56
  .amdhsa_float_denorm_mode_32 3
  .amdhsa_user_sgpr_count 2
  .amdhsa_user_sgpr_kernarg_segment_ptr 1
  .amdhsa_system_sgpr_workgroup_id_x 1
.end_amdhsa_kernel
"""
    return hdr + a.text() + ftr

if __name__ == "__main__":
    ap = argparse.ArgumentParser()
    ap.add_argument("-o", default=f"cdna_kernels/{NAME}.s")
    ap.add_argument("--timing", action="store_true")
    ap.add_argument("--ring", type=int, default=15)
    ap.add_argument("--x_nt", type=int, default=1)
    ap.add_argument("--xo_nt", type=int, default=0)
    ap.add_argument("--w_nt", type=int, default=0)
    ap.add_argument("--wpflag", default="")
    ap.add_argument("--stflag", default="")
    ap.add_argument("--winit", type=int, default=9)
    ap.add_argument("--wresume", type=int, default=0)
    ap.add_argument("--wrate", type=int, default=2)
    ap.add_argument("--othrate", type=int, default=4)
    ap.add_argument("--codepf", type=int, default=1)
    ap.add_argument("--dry", type=int, default=0)
    ap.add_argument("--bursts", default="[([2,6,7],0,-2),([1,3,5],3,-1),([8,0,4],6,18)]")
    ap.add_argument("--oth", default="{7:-2,1:8,3:14,5:21,8:29,0:36,4:44}")
    o = ap.parse_args()
    o.bursts = eval(o.bursts); o.oth = eval(o.oth)
    o.stamps = [0, 4, 8, 16, 24, 32, 40, 50, 60, 67]
    for k in ("stflag", "wpflag"):
        if getattr(o, k): setattr(o, k, " " + getattr(o, k))
    open(o.o, "w").write(gen(o))
```

```python
import sys, struct, argparse

NAME = "standalone__self_sup_conv_stem_wavlm__speech"
L = 7993
ARR = 12800
WB = 9 * ARR
CLASS_ORDER = [4, 5, 3, 6, 2, 7, 1, 8, 0]
STEPS = [(c, p) for c in CLASS_ORDER for p in range(8 if c <= 4 else 7)]
NS = len(STEPS)
def f2u(x): return struct.unpack('<I', struct.pack('<f', x))[0]
def lam_of(c): return (c >> 1, 4 + ((c + 1) >> 1))
NEED = {}
_n = 0
for _c in CLASS_ORDER:
    for _l in lam_of(_c): NEED.setdefault(_l, _n - 2)
    _n += 8 if _c <= 4 else 7
LAM_ORDER = sorted(NEED, key=lambda l: NEED[l])

class Asm:
    def __init__(s): s.lines = []
    def __call__(s, t): s.lines.append("  " + t)
    def label(s, t): s.lines.append(t + ":")
    def c(s, t): s.lines.append("  ; " + t)
    def text(s): return "\n".join(s.lines) + "\n"

class VmQ:
    def __init__(s, a): s.a = a; s.q = []; s.done = 0
    def issue(s, tag):
        s.q.append(tag); assert len(s.q) - s.done <= 63, "vmcnt overflow"
    def wait(s, pred):
        last = -1
        for i, t in enumerate(s.q):
            if pred(t): last = i
        if last < s.done: return
        s.a(f"s_waitcnt vmcnt({len(s.q) - 1 - last})")
        s.done = last + 1

def gen(o):
    R = o.ring
    PART = WB + R * 3072
    AB = PART + 1536
    LDS = AB + 384
    assert LDS <= 163840
    a = Asm()
    xnt = " nt" if o.x_nt else ""
    xont = " nt" if o.xo_nt else ""
    wnt = " nt" if o.w_nt else ""
    T = o.timing
    bursts = o.bursts
    a("s_cmp_ge_u32 s2, 256")
    a("s_cbranch_scc1 L_end")
    a("s_load_dwordx8 s[4:11], s[0:1], 0")
    a("s_load_dwordx4 s[12:15], s[0:1], 32")
    a("s_load_dwordx2 s[16:17], s[0:1], 48")
    if T:
        a("s_memtime s[60:61]")
    if T or o.probe:
        a("s_memrealtime s[62:63]")
    def probe(tag):
        if o.probe == tag: a("s_memrealtime s[98:99]"); a("s_waitcnt lgkmcnt(0)")
    def probe_end(lbl, mult):
        a("s_waitcnt lgkmcnt(0)")
        if mult:
            a("s_sub_u32 s44, s98, s62"); a(f"s_mul_i32 s44, s44, {mult}")
        else: a("s_mov_b32 s44, 0")
        a("s_add_u32 s44, s44, 3000")
        a.label(lbl)
        a("s_memrealtime s[46:47]"); a("s_waitcnt lgkmcnt(0)"); a("s_sub_u32 s46, s46, s62")
        a("s_cmp_lt_u32 s46, s44"); a(f"s_cbranch_scc1 {lbl}")
    a("v_lshrrev_b32 v130, 6, v0")
    a("v_and_b32 v129, 63, v0")
    a("v_readfirstlane_b32 s18, v130")
    a("s_and_b32 s44, s2, 7")
    a("s_lshr_b32 s49, s2, 3")
    a("s_lshl_b32 s46, s44, 1")
    a("s_add_u32 s46, s46, s49")
    a("s_sub_u32 s46, s46, 30")
    a("s_mul_i32 s47, s44, 10")
    a("s_cmp_lt_u32 s49, 30")
    a("s_cselect_b32 s46, s49, s46")
    a("s_cselect_b32 s47, s47, 80")
    a("s_cselect_b32 s48, 0, s46")
    a("s_cmp_ge_u32 s48, 12")
    a("s_cbranch_scc1 L_end")
    a("s_mul_i32 s48, s46, 43")
    a("s_lshr_b32 s48, s48, 7")
    a("s_add_u32 s19, s47, s48")
    a("s_mul_i32 s48, s48, 3")
    a("s_sub_u32 s20, s46, s48")
    a("s_cmp_ge_u32 s19, 42")
    a("s_cselect_b32 s21, 1, 0")
    a("s_cselect_b32 s48, 42, 0")
    a("s_cselect_b32 s23, 3, 0")
    a("s_cselect_b32 s44, 4608000, 0")
    a("s_sub_u32 s22, s19, s48")
    a("s_add_u32 s23, s23, s20")
    a("s_mul_i32 s45, s22, 110592")
    a("s_add_u32 s44, s44, s45")
    a("s_sub_u32 s26, 4607712, s45")
    a("s_mov_b32 s27, 0x20000")
    a("v_lshrrev_b32 v136, 4, v129")
    a("s_cmp_lt_u32 s18, 4")
    a("s_cbranch_scc1 L_xsetup")
    a("s_cmp_lt_u32 s18, 7")
    a("s_cbranch_scc1 L_wloader")
    a.label("L_xsetup")
    a("v_lshrrev_b32 v132, 3, v129")
    a("v_and_b32 v133, 2, v132")
    a("v_and_b32 v134, 7, v129")
    a("v_xor_b32 v133, v133, v134")
    a("v_lshlrev_b32 v133, 4, v133")
    a("v_mul_u32_u24 v131, 1152, v132")
    a("v_add_u32 v131, v131, v133")
    a("s_add_u32 s46, s20, 1")
    a("s_cmp_eq_u32 s46, 3")
    a("s_cselect_b32 s46, 0, s46")
    a("s_add_u32 s47, s20, s46")
    a("s_sub_u32 s47, 3, s47")
    a("s_lshl_b32 s92, s20, 10"); a("s_lshl_b32 s93, s46, 10"); a("s_lshl_b32 s94, s47, 10")
    a("s_mul_i32 s95, s20, 9216"); a("s_mul_i32 s96, s46, 9216"); a("s_mul_i32 s97, s47, 9216")
    a("s_cmp_eq_u32 s18, 7")
    a("s_cbranch_scc1 L_xloader")

    def pub_srd():
        a("s_lshl_b32 s44, s23, 14")
        a("s_add_u32 s36, s16, s44")
        a("s_addc_u32 s37, s17, 0")
        a("s_mov_b32 s38, 16128")
        a("s_mov_b32 s39, 0x20000")

    a.c("consumer prologue: wave w loads piece m = w of the first arrays")
    a("s_mul_i32 s46, s18, 3072")
    a("s_mul_i32 s47, s18, 27648")
    for d in range(3):
        a(f"s_add_u32 s{92+d}, s{92+d}, s46")
        a(f"s_add_u32 s{95+d}, s{95+d}, s47")
    a("s_waitcnt lgkmcnt(0)")
    a("s_add_u32 s24, s4, s44")
    a("s_addc_u32 s25, s5, 0")
    def cload(lam, d):
        a(f"s_add_u32 m0, s{92+d}, {lam*ARR}")
        a(f"s_add_u32 s50, s{95+d}, {lam*128}")
        a(f"buffer_load_dwordx4 v131, s[24:27], s50 offen{xnt if d == 0 else xont} lds")
    for lam in bursts[0][0]: cload(lam, 0)
    a("s_barrier")
    for d in (1, 2):
        for lam in LAM_ORDER[:2]: cload(lam, d)
    pub_srd()
    a("s_cmp_lg_u32 s18, 0")
    a("s_cbranch_scc1 L_c_noclr")
    a.c("wave 0 clears this workgroup's hand-off words")
    a("s_mov_b64 exec, 0xffffff")
    a("v_lshlrev_b32 v142, 4, v129")
    a("s_mul_i32 s50, s22, 384")
    for i in range(4): a(f"v_mov_b32 v{40+i}, -1")
    a("buffer_store_dwordx4 v[40:43], v142, s[36:39], s50 offen sc1")
    a("s_mov_b64 exec, -1")
    a.label("L_c_noclr")
    a(f"s_mul_i32 s44, s21, {L}")
    a("s_mul_i32 s45, s22, 192")
    a("s_add_u32 s44, s44, s45")
    a("s_mul_i32 s44, s44, 288")
    a("s_mul_i32 s46, s20, 96")
    a("s_add_u32 s44, s44, s46")
    a("s_add_u32 s32, s12, s44")
    a("s_addc_u32 s33, s13, 0")
    a(f"s_sub_u32 s34, {L}, s45")
    a("s_mul_i32 s34, s34, 288")
    a("s_sub_u32 s34, s34, s46")
    a("s_mov_b32 s35, 0x20000")
    a("v_and_b32 v139, 15, v129")
    a("v_mul_u32_u24 v140, 3, v139")
    a("v_mul_u32_u24 v141, 48, v130")
    a("v_add_u32 v140, v140, v141")
    for s in range(8):
        a(f"v_add_u32 v141, {s}, v140")
        a("v_lshrrev_b32 v142, 1, v141")
        a("v_and_b32 v141, 1, v141")
        a("v_and_b32 v143, 2, v142")
        a("v_xor_b32 v143, v143, v136")
        a("v_lshlrev_b32 v143, 4, v143")
        a("v_lshl_add_u32 v143, v142, 7, v143")
        a(f"v_mul_u32_u24 v142, {4*ARR+64}, v141")
        a(f"v_add_u32 v{112+s}, v143, v142")
        a(f"v_mul_u32_u24 v142, {5*ARR-64}, v141")
        a(f"v_add3_u32 v{120+s}, v143, v142, 64")
    a("v_lshrrev_b32 v141, 1, v136")
    a("v_lshlrev_b32 v141, 4, v141")
    a("v_and_b32 v142, 1, v136")
    a("v_lshl_add_u32 v141, v142, 2, v141")
    a("v_bfe_u32 v142, v129, 2, 2")
    a("v_add_u32 v141, v141, v142")
    a("v_mul_u32_u24 v141, 96, v141")
    a("v_and_b32 v142, 3, v129")
    a("v_mul_u32_u24 v142, 24, v142")
    a("v_add_u32 v141, v141, v142")
    a(f"v_add_u32 v128, {WB}, v141")
    for i in range(36): a(f"v_mov_b32 v{i}, 0")
    a("s_waitcnt vmcnt(0)")
    a("s_cmp_lg_u32 s18, 0")
    a("s_cbranch_scc1 L_c_noatom")
    a("s_lshl_b32 s44, s23, 5")
    a("v_mov_b32 v141, s44")
    a("v_mov_b32 v142, 1")
    a("s_mov_b64 exec, 1")
    a("global_atomic_add v141, v142, s[14:15]")
    a("s_mov_b64 exec, -1")
    a.label("L_c_noatom")
    a("s_barrier")

    def reads_for(n):
        if n >= NS: return []
        c, p = STEPS[n]
        r = []
        bb = 76 + 12 * (n % 3)
        for nt in range(3):
            for kh in range(2):
                d = bb + 4*nt + 2*kh
                r.append(f"ds_read_b64_tr_b16 v[{d}:{d+1}], v128 offset:{(n % R)*3072 + kh*768 + 8*nt}")
        xr = []
        for s in ([0, 1, 2] if p == 0 else [p + 2]):
            d = 36 + 4*s
            xr.append(f"ds_read_b128 v[{d}:{d+3}], v{112 + 8*(c & 1) + (s & 7)} offset:{(c >> 1)*ARR + (512 if s >= 8 else 0)}")
        return xr + r
    r0 = reads_for(0); r1 = reads_for(1)
    for t in r0: a(t)
    a("s_waitcnt lgkmcnt(4)")
    for t in r1: a(t)
    prev = len(r1)
    for n in range(NS):
        c, p = STEPS[n]
        a.c(f"step {n}: class {c} p {p}")
        a(f"s_waitcnt lgkmcnt({prev})")
        a("s_barrier")
        rd = reads_for(n + 2)
        prev = len(rd)
        bb = 76 + 12 * (n % 3)
        for t in range(3):
            for nt in range(3):
                acc = 12*t + 4*nt
                f = 36 + 4*(p + t)
                a(f"v_mfma_f32_16x16x32_bf16 v[{acc}:{acc+3}], v[{bb+4*nt}:{bb+4*nt+3}], v[{f}:{f+3}], v[{acc}:{acc+3}]")
                if rd: a(rd.pop(0))
        assert not rd
    a.c("stats")
    a("v_mul_u32_u24 v141, 384, v130")
    a("v_mul_u32_u24 v142, 96, v136")
    a("v_and_b32 v143, 12, v139")
    a("v_add3_u32 v141, v141, v142, v143")
    a(f"v_add_u32 v141, {PART}, v141")
    a("s_nop 1")
    a("s_cmp_lg_u32 s22, 41")
    a("s_cbranch_scc1 L_c_nomask")
    for t in range(3):
        a(f"v_cmp_gt_u32 vcc, {L - 41*192 - t}, v140")
        a("s_nop 1")
        for i in range(12): a(f"v_cndmask_b32 v{12*t+i}, 0, v{12*t+i}, vcc")
    a.label("L_c_nomask")
    S1, S2 = 36, 48
    for i in range(6): a(f"v_pk_add_f32 v[{S1+2*i}:{S1+2*i+1}], v[{2*i}:{2*i+1}], v[{12+2*i}:{12+2*i+1}]")
    for i in range(6): a(f"v_pk_mul_f32 v[{S2+2*i}:{S2+2*i+1}], v[{2*i}:{2*i+1}], v[{2*i}:{2*i+1}]")
    for i in range(6): a(f"v_pk_fma_f32 v[{S2+2*i}:{S2+2*i+1}], v[{12+2*i}:{12+2*i+1}], v[{12+2*i}:{12+2*i+1}], v[{S2+2*i}:{S2+2*i+1}]")
    for i in range(6): a(f"v_pk_add_f32 v[{S1+2*i}:{S1+2*i+1}], v[{S1+2*i}:{S1+2*i+1}], v[{24+2*i}:{24+2*i+1}]")
    for i in range(6): a(f"v_pk_fma_f32 v[{S2+2*i}:{S2+2*i+1}], v[{24+2*i}:{24+2*i+1}], v[{24+2*i}:{24+2*i+1}], v[{S2+2*i}:{S2+2*i+1}]")
    P, Q, RR = 60, 66, 72
    for m in range(6):
        a(f"v_add_f32_dpp v{P+m}, v{S1+2*m}, v{S1+2*m} row_shl:8 row_mask:0xf bank_mask:0x3")
        a(f"v_add_f32_dpp v{P+m}, v{S1+2*m+1}, v{S1+2*m+1} row_shr:8 row_mask:0xf bank_mask:0xc")
    for m in range(6):
        a(f"v_add_f32_dpp v{Q+m}, v{S2+2*m}, v{S2+2*m} row_shl:8 row_mask:0xf bank_mask:0x3")
        a(f"v_add_f32_dpp v{Q+m}, v{S2+2*m+1}, v{S2+2*m+1} row_shr:8 row_mask:0xf bank_mask:0xc")
    for m in range(6): a(f"v_add_f32_dpp v{RR+m}, v{P+m}, v{P+m} row_shl:4 row_mask:0xf bank_mask:0x5")
    for m in range(6): a(f"v_add_f32_dpp v{RR+m}, v{Q+m}, v{Q+m} row_shr:4 row_mask:0xf bank_mask:0xa")
    for m in range(6): a(f"v_add_f32_dpp v{RR+m}, v{RR+m}, v{RR+m} quad_perm:[2,3,0,1] row_mask:0xf bank_mask:0xf")
    for m in range(6): a(f"v_add_f32_dpp v{RR+m}, v{RR+m}, v{RR+m} quad_perm:[1,0,3,2] row_mask:0xf bank_mask:0xf")
    for m in range(0, 6, 2):
        a(f"ds_write2_b32 v141, v{RR+m}, v{RR+m+1} offset0:{4*m} offset1:{4*m+4}")
    a("s_waitcnt lgkmcnt(0)")
    a("s_barrier")
    C0 = -2.0 * 0.7978845608028654 * 1.4426950408889634
    C1 = C0 * 0.044715
    a(f"v_mov_b32 v64, {f2u(C0):#x}"); a(f"v_mov_b32 v65, {f2u(C0):#x}")
    a(f"v_mov_b32 v66, {f2u(C1):#x}"); a(f"v_mov_b32 v67, {f2u(C1):#x}")
    a("v_mov_b32 v68, 1.0"); a("v_mov_b32 v69, 1.0")
    a("v_mul_u32_u24 v142, 288, v140")
    a("v_mul_u32_u24 v143, 24, v136")
    a("v_add_u32 v142, v142, v143")
    a("v_mul_u32_u24 v141, 48, v136")
    a(f"v_add_u32 v141, {AB}, v141")
    if o.dry:
        a("s_mov_b32 s45, 0")
        a("s_branch L_gelu")
        a.label("L_gelu_real")
        a("s_mov_b32 s45, 1")
    a("s_barrier")
    if T: a("s_memtime s[88:89]")
    for k in range(3): a(f"ds_read_b128 v[{40+4*k}:{43+4*k}], v141 offset:{16*k}")
    for k in range(3): a(f"ds_read_b128 v[{52+4*k}:{55+4*k}], v141 offset:{192+16*k}")
    a("s_waitcnt lgkmcnt(0)")
    a.label("L_gelu")
    for t in range(3):
        H = 12*t; Y = 72; U = 84; O = [96, 104, 112][t]
        for i in range(6): a(f"v_pk_fma_f32 v[{Y+2*i}:{Y+2*i+1}], v[{H+2*i}:{H+2*i+1}], v[{40+2*i}:{41+2*i}], v[{52+2*i}:{53+2*i}]")
        for i in range(6): a(f"v_pk_mul_f32 v[{U+2*i}:{U+2*i+1}], v[{Y+2*i}:{Y+2*i+1}], v[{Y+2*i}:{Y+2*i+1}]")
        for i in range(6): a(f"v_pk_fma_f32 v[{U+2*i}:{U+2*i+1}], v[{U+2*i}:{U+2*i+1}], v[66:67], v[64:65]")
        for i in range(6): a(f"v_pk_mul_f32 v[{U+2*i}:{U+2*i+1}], v[{U+2*i}:{U+2*i+1}], v[{Y+2*i}:{Y+2*i+1}]")
        for i in range(12): a(f"v_exp_f32 v{U+i}, v{U+i}")
        for i in range(6): a(f"v_pk_add_f32 v[{U+2*i}:{U+2*i+1}], v[{U+2*i}:{U+2*i+1}], v[68:69]")
        for i in range(12): a(f"v_rcp_f32 v{U+i}, v{U+i}")
        for i in range(6): a(f"v_pk_mul_f32 v[{Y+2*i}:{Y+2*i+1}], v[{Y+2*i}:{Y+2*i+1}], v[{U+2*i}:{U+2*i+1}]")
        for i in range(6): a(f"v_cvt_pk_bf16_f32 v{O+i}, v{Y+2*i}, v{Y+2*i+1}")
        if o.dry:
            a("s_cmp_eq_u32 s45, 0")
            a(f"s_cbranch_scc1 {'L_gelu_real' if t == 2 else f'L_gelu_skip{t}'}")
        a(f"buffer_store_dwordx4 v[{O}:{O+3}], v142, s[32:35], 0 offen offset:{288*t}{o.stflag}")
        a(f"buffer_store_dwordx2 v[{O+4}:{O+5}], v142, s[32:35], 0 offen offset:{288*t+16}{o.stflag}")
        if o.dry and t < 2: a.label(f"L_gelu_skip{t}")
    if T:
        a("s_memtime s[64:65]")
        a("s_waitcnt vmcnt(0)")
        a("s_memtime s[66:67]")
        a("s_memrealtime s[68:69]")
        a("s_cmp_lg_u32 s18, 0")
        a("s_cbranch_scc1 L_end")
        a("s_waitcnt lgkmcnt(0)")
        a("s_lshl_b32 s44, s2, 7")
        a("s_add_u32 s44, s44, 0x100040")
        a("v_mov_b32 v40, s60"); a("v_mov_b32 v41, s62"); a("v_mov_b32 v42, s64"); a("v_mov_b32 v43, s66")
        a("v_mov_b32 v44, s68"); a("v_mov_b32 v45, s88"); a("v_mov_b32 v46, 0"); a("v_mov_b32 v47, 0")
        a("v_mov_b32 v48, s44")
        a("s_mov_b64 exec, 1")
        a("global_store_dwordx4 v48, v[40:43], s[16:17]")
        a("global_store_dwordx4 v48, v[44:47], s[16:17] offset:16")
    if o.probe == "done":
        a("s_waitcnt vmcnt(0)"); probe("done"); probe_end("L_probe_c", 4)
    a("s_endpgm")

    a.label("L_wloader")
    q = VmQ(a)
    a("v_subrev_u32 v140, 256, v0")
    a("v_mul_u32_u24 v141, 171, v140")
    a("v_lshrrev_b32 v141, 10, v141")
    a("v_mul_u32_u24 v142, 6, v141")
    a("v_sub_u32 v142, v140, v142")
    a("v_and_b32 v143, 0x13, v141")
    a("v_and_b32 v144, 4, v141")
    a("v_lshl_add_u32 v143, v144, 1, v143")
    a("v_and_b32 v144, 8, v141")
    a("v_lshrrev_b32 v144, 1, v144")
    a("v_add_u32 v143, v143, v144")
    a("v_mul_u32_u24 v143, 288, v143")
    a("v_lshl_add_u32 v139, v142, 4, v143")
    a("s_sub_u32 s49, s18, 4")
    a("s_lshl_b32 s51, s49, 10")
    a("s_mul_i32 s46, s20, 96")
    a("s_sub_u32 s30, 622080, s46")
    a("s_mov_b32 s31, 0x20000")
    a("s_waitcnt lgkmcnt(0)")
    a("s_add_u32 s28, s6, s46")
    a("s_addc_u32 s29, s7, 0")
    probe("K")
    a("s_barrier")
    def wload(n):
        c, p = STEPS[n]
        a(f"s_add_u32 m0, s51, {WB + (n % R)*3072}")
        a(f"s_mov_b32 s50, {(288*p + 32*c)*288}")
        a(f"buffer_load_dwordx4 v139, s[28:31], s50 offen{wnt} lds")
        q.issue(("W", n))
    nxt = 0
    while nxt < o.winit: wload(nxt); nxt += 1
    a("v_and_b32 v135, 7, v129")
    a("v_lshlrev_b32 v135, 1, v135")
    a("v_lshrrev_b32 v134, 5, v129")
    a("v_add_u32 v135, v135, v134")
    a("s_lshl_b32 s44, s49, 4")
    a("v_add_u32 v135, s44, v135")
    a("v_lshlrev_b32 v134, 1, v135")
    a("v_add_u32 v134, s46, v134")
    a("s_mov_b32 s52, s8"); a("s_mov_b32 s53, s9"); a("s_mov_b32 s54, 288"); a("s_mov_b32 s55, 0x20000")
    a("s_mov_b32 s56, s10"); a("s_mov_b32 s57, s11"); a("s_mov_b32 s58, 288"); a("s_mov_b32 s59, 0x20000")
    pub_srd()
    q.wait(lambda t: t in (("W", 0), ("W", 1)))
    if T: a("s_memtime s[64:65]")
    probe("P0")
    a("s_barrier")
    probe("P")
    q.wait(lambda t: t == ("W", 2))
    stamp = 66
    for n in range(NS):
        a("s_barrier")
        if T and n in o.stamps:
            a(f"s_memtime s[{stamp}:{stamp+1}]"); stamp += 2
            if n == 0: a("s_memrealtime s[98:99]")
            if n == 67: a("s_memrealtime s[100:101]")
        probe(f"b{n}")
        k = 0
        while nxt < NS and nxt <= n + R and k < o.wrate and n >= o.wresume:
            wload(nxt); nxt += 1; k += 1
        if n == NS - R + 1:
            a("buffer_load_ushort v137, v134, s[52:55], 0 offen"); q.issue("gb")
            a("buffer_load_ushort v138, v134, s[56:59], 0 offen"); q.issue("gb")
        assert nxt > min(n + 3, NS - 1)
        q.wait(lambda t: t == ("W", n + 3))
    a("v_and_b32 v140, 7, v129")
    a("v_lshlrev_b32 v140, 4, v140")
    a("s_lshl_b32 s44, s49, 7")
    a("v_add_u32 v140, s44, v140")
    a(f"v_add_u32 v141, {PART}, v140")
    a("v_lshrrev_b32 v142, 3, v129")
    a("v_mul_u32_u24 v142, 384, v142")
    a("v_add_u32 v142, v142, v140")
    a("s_mul_i32 s50, s22, 384")
    a("v_lshlrev_b32 v143, 2, v135")
    a(f"v_add_u32 v143, {AB}, v143")
    a(f"s_mov_b32 s44, {f2u(1.0/L):#x}")
    a("s_mov_b32 s45, 0")
    a("s_movk_i32 s46, 3072"); a("s_movk_i32 s47, 9216"); a("s_movk_i32 s48, 15360")
    a("s_waitcnt vmcnt(0)")
    a("v_lshlrev_b32 v137, 16, v137")
    a("v_lshlrev_b32 v138, 16, v138")
    a("s_mov_b64 exec, 0xff")
    a("s_barrier")
    if T: a("s_memtime s[86:87]")
    probe("E1")
    for w in range(4): a(f"ds_read_b128 v[{40+4*w}:{43+4*w}], v141 offset:{384*w}")
    a("s_waitcnt lgkmcnt(2)" if not T else "s_waitcnt lgkmcnt(0)")
    a("v_pk_add_f32 v[40:41], v[40:41], v[44:45]")
    a("v_pk_add_f32 v[42:43], v[42:43], v[46:47]")
    a("s_waitcnt lgkmcnt(0)")
    a("v_pk_add_f32 v[48:49], v[48:49], v[52:53]")
    a("v_pk_add_f32 v[50:51], v[50:51], v[54:55]")
    a("v_pk_add_f32 v[40:41], v[40:41], v[48:49]")
    a("v_pk_add_f32 v[42:43], v[42:43], v[50:51]")
    for i in range(4): a(f"v_min_u32 v{40+i}, -2, v{40+i}")
    a("buffer_store_dwordx4 v[40:43], v140, s[36:39], s50 offen sc1")
    a("s_mov_b64 exec, -1")
    a.label("L_poll")
    so = ["0", "s46", "s46", "s47", "s47", "s48"]; io = [0, 0, 3072, 0, 3072, 0]
    for k in range(6): a(f"buffer_load_dwordx4 v[{44+4*k}:{47+4*k}], v142, s[36:39], {so[k]} offen offset:{io[k]} sc1")
    a("s_waitcnt vmcnt(4)")
    a("v_pk_add_f32 v[68:69], v[44:45], v[48:49]")
    a("v_pk_add_f32 v[70:71], v[46:47], v[50:51]")
    a("s_waitcnt vmcnt(2)")
    a("v_pk_add_f32 v[72:73], v[52:53], v[56:57]")
    a("v_pk_add_f32 v[74:75], v[54:55], v[58:59]")
    a("v_pk_add_f32 v[68:69], v[68:69], v[72:73]")
    a("v_pk_add_f32 v[70:71], v[70:71], v[74:75]")
    a("s_waitcnt vmcnt(0)")
    a("v_pk_add_f32 v[72:73], v[60:61], v[64:65]")
    a("v_pk_add_f32 v[74:75], v[62:63], v[66:67]")
    a("v_pk_add_f32 v[68:69], v[68:69], v[72:73]")
    a("v_pk_add_f32 v[70:71], v[70:71], v[74:75]")
    a("v_cmp_u_f32 vcc, v68, v69")
    a("v_cmp_u_f32 s[90:91], v70, v71")
    a("s_nop 0")
    a("s_or_b64 vcc, vcc, s[90:91]")
    a("s_cbranch_vccnz L_recheck")
    a.label("L_polled")
    probe("gath")
    if T: a("s_memtime s[88:89]")
    a("v_permlane32_swap_b32 v68, v70")
    a("v_permlane32_swap_b32 v69, v71")
    a("v_add_f32 v68, v68, v70")
    a("v_add_f32 v69, v69, v71")
    a("s_nop 1")
    a("v_permlane16_swap_b32 v68, v69")
    a("v_add_f32 v68, v68, v69")
    a("s_nop 1")
    a("v_add_f32_dpp v68, v68, v68 row_ror:8 row_mask:0xf bank_mask:0xf")
    a("v_mul_f32 v68, s44, v68")
    a("v_mov_b32 v69, v68")
    a("s_nop 1")
    a("v_permlane16_swap_b32 v68, v69")
    a("v_fma_f32 v69, -v68, v68, v69")
    a("v_max_f32 v69, 0, v69")
    a(f"v_add_f32 v69, {f2u(1e-5):#x}, v69")
    a("v_rsq_f32 v69, v69")
    a("s_mov_b32 exec_lo, 0xff")
    a("s_mov_b32 exec_hi, 0xff")
    a("v_mul_f32 v69, v137, v69")
    a("v_fma_f32 v68, -v68, v69, v138")
    a("ds_write2_b32 v143, v69, v68 offset0:0 offset1:48")
    a("s_waitcnt lgkmcnt(0)")
    a("s_barrier")
    if T:
        a("s_cmp_lg_u32 s18, 5")
        a("s_cbranch_scc1 L_end")
        a("s_memtime s[90:91]")
        a("s_waitcnt lgkmcnt(0)")
        a("s_lshl_b32 s44, s2, 7")
        a("s_add_u32 s44, s44, 0x100000")
        regs = [60, 64] + list(range(66, 86, 2)) + [86, 88, 90, 62]
        for i, r in enumerate(regs): a(f"v_mov_b32 v{40+i}, s{r}")
        a("v_mov_b32 v60, s44")
        a("v_mov_b32 v62, s98"); a("v_mov_b32 v63, s100")
        a("s_mov_b64 exec, 1")
        for k in range(4): a(f"global_store_dwordx4 v60, v[{40+4*k}:{43+4*k}], s[16:17] offset:{16*k}")
        a("global_store_dwordx2 v60, v[62:63], s[16:17] offset:96")
    if o.probe and o.probe != "done": probe_end("L_probe_w", 0 if o.probe == "fixed" else 4)
    a("s_endpgm")
    a.label("L_recheck")
    a.c("a NaN sum: a word not yet written, or a genuine NaN")
    for k in range(8): a(f"v_max3_u32 v{72+k}, v{44+3*k}, v{45+3*k}, v{46+3*k}")
    a("v_max3_u32 v72, v72, v73, v74"); a("v_max3_u32 v75, v75, v76, v77")
    a("v_max3_u32 v72, v72, v78, v79"); a("v_max_u32 v72, v72, v75")
    a("v_cmp_eq_u32 vcc, -1, v72")
    a("s_add_u32 s45, s45, 1")
    a("s_cmp_ge_u32 s45, 0x100000")
    a("s_cbranch_scc1 L_polled")
    a("s_cbranch_vccnz L_poll")
    a("s_branch L_polled")

    a.label("L_xloader")
    q = VmQ(a)
    a("v_mul_u32_u24 v140, 57, v129")
    a("v_lshrrev_b32 v140, 10, v140")
    a("v_mul_u32_u24 v141, 18, v140")
    a("v_sub_u32 v141, v129, v141")
    a("v_lshl_add_u32 v141, v141, 5, s49")
    a("v_mul_u32_u24 v142, 911, v141")
    a("v_lshrrev_b32 v142, 16, v142")
    a("v_mul_u32_u24 v143, 73728, v142")
    a("v_lshl_add_u32 v143, v141, 7, v143")
    a("s_mov_b32 s30, 622080")
    a("s_mov_b32 s31, 0x20000")
    a("v_cmp_eq_u32 s[52:53], 1, v140")
    a("v_cmp_eq_u32 s[54:55], 2, v140")
    def wpre(ci):
        c0, c1, c2 = [CLASS_ORDER[ci + k] * 9216 for k in range(3)]
        a(f"v_mov_b32 v144, {c0}")
        a(f"v_mov_b32 v145, {c1}")
        a("v_cndmask_b32 v144, v144, v145, s[52:53]")
        a(f"v_mov_b32 v145, {c2}")
        a("v_cndmask_b32 v144, v144, v145, s[54:55]")
        a("v_add_u32 v144, v144, v143")
        a("s_mov_b32 exec_hi, 0x3fffff")
        a(f"buffer_load_dword v146, v144, s[28:31], 0 offen{o.wpflag}")
        a("s_mov_b32 exec_hi, -1")
        q.issue("wp")
    def xload(lam, d, m):
        a(f"s_add_u32 m0, s{92+d}, {lam*ARR + m*3072}")
        a(f"s_add_u32 s50, s{95+d}, {lam*128 + m*27648}")
        a(f"buffer_load_dwordx4 v131, s[24:27], s50 offen{xnt if d == 0 else xont} lds")
        q.issue(lam)
    def xhalf(lam):
        a(f"s_mov_b32 m0, {lam*ARR + 12*1024}")
        a(f"s_mov_b32 s50, {12*9216 + lam*128}")
        a("s_mov_b32 exec_hi, 0")
        a(f"buffer_load_dwordx4 v131, s[24:27], s50 offen{xnt} lds")
        a("s_mov_b32 exec_hi, -1")
        q.issue(lam)
    if o.codepf:
        a("s_getpc_b64 s[56:57]")
        a.label("L_pc")
        a(f"s_sub_u32 s56, s56, L_pc-{NAME}_kernel")
        a("s_subb_u32 s57, s57, 0")
        a("v_lshlrev_b32 v147, 5, v129")
        a("v_add_u32 v147, s49, v147")
        a("v_lshlrev_b32 v147, 7, v147")
        a(f"s_mov_b32 s58, L_code_end-{NAME}_kernel")
        a("s_mov_b32 s59, 0x20000")
    a("s_waitcnt lgkmcnt(0)")
    a("s_mov_b32 s28, s6")
    a("s_mov_b32 s29, s7")
    a("s_add_u32 s24, s4, s44")
    a("s_addc_u32 s25, s5, 0")
    if bursts[0][1] is not None: wpre(bursts[0][1])
    if o.codepf:
        a("s_mov_b64 exec, 0xff")
        a("buffer_load_dword v148, v147, s[56:59], 0 offen"); q.issue("cp")
        a("s_mov_b64 exec, -1")
    for lam in bursts[0][0]: xhalf(lam)
    a("s_barrier")
    ops = {}
    for (lams, ci, at) in bursts[1:]:
        l = ops.setdefault(at, [])
        if ci is not None: l.append(("wp", ci))
        for lam in lams:
            for m in range(4): l.append(("x", lam, 0, m))
        for lam in lams: l.append(("h", lam))
    for lam in LAM_ORDER[2:]:
        at = o.oth[lam]
        k = 0
        for d in (1, 2):
            for m in range(4):
                ops.setdefault(at + k // o.othrate, []).append(("x", lam, d, m)); k += 1
    def run_ops(n):
        for op in ops.pop(n, []):
            if op[0] == "wp": wpre(op[1])
            elif op[0] == "x": xload(*op[1:])
            else: xhalf(op[1])
    run_ops(-2)
    q.wait(lambda t: t in LAM_ORDER[:2])
    a("s_barrier")
    run_ops(-1)
    for n in range(NS):
        q.wait(lambda t: t in NEED and NEED[t] <= n)
        a("s_barrier")
        run_ops(n)
        if n == NS - R + 1:
            a("s_lshl_b32 s44, s23, 5")
            a("v_mov_b32 v140, s44")
            a("global_load_dword v142, v140, s[14:15] sc1"); q.issue("cnt")
    assert not ops, ops
    a("s_mov_b32 s45, 0")
    a.label("L_cnt_wait")
    a("s_waitcnt vmcnt(0)")
    a("v_readfirstlane_b32 s44, v142")
    a("s_add_u32 s45, s45, 1")
    a("s_cmp_ge_u32 s44, 42")
    a("s_cbranch_scc1 L_cnt_ok")
    a("s_cmp_ge_u32 s45, 0x100000")
    a("s_cbranch_scc1 L_cnt_ok")
    a("global_load_dword v142, v140, s[14:15] sc1")
    a("s_branch L_cnt_wait")
    a.label("L_cnt_ok")
    a("s_barrier")
    a("s_barrier")
    a.label("L_end")
    a("s_endpgm")
    a.label("L_code_end")

    hdr = f"""; Fused strided conv1d (im2col GEMM on MFMA) + per-channel norm over time + tanh-GELU.
; @launch grid=(256,1,1) block=(512,1,1) lds={LDS}
.amdgcn_target "amdgcn-amd-amdhsa--gfx950"
.text
.globl {NAME}_kernel
.p2align 8
.type {NAME}_kernel,@function
{NAME}_kernel:
"""
    ftr = f""".section .rodata,"a"
.p2align 6
.amdhsa_kernel {NAME}_kernel
  .amdhsa_next_free_vgpr 152
  .amdhsa_next_free_sgpr 102
  .amdhsa_accum_offset 152
  .amdhsa_group_segment_fixed_size 0
  .amdhsa_kernarg_size 56
  .amdhsa_float_denorm_mode_32 3
  .amdhsa_user_sgpr_count 2
  .amdhsa_user_sgpr_kernarg_segment_ptr 1
  .amdhsa_system_sgpr_workgroup_id_x 1
.end_amdhsa_kernel
"""
    return hdr + a.text() + ftr

if __name__ == "__main__":
    ap = argparse.ArgumentParser()
    ap.add_argument("-o", default=f"cdna_kernels/{NAME}.s")
    ap.add_argument("--timing", action="store_true")
    ap.add_argument("--probe", default="")
    ap.add_argument("--ring", type=int, default=15)
    ap.add_argument("--x_nt", type=int, default=1)
    ap.add_argument("--xo_nt", type=int, default=0)
    ap.add_argument("--w_nt", type=int, default=0)
    ap.add_argument("--wpflag", default="")
    ap.add_argument("--stflag", default="")
    ap.add_argument("--winit", type=int, default=9)
    ap.add_argument("--wresume", type=int, default=0)
    ap.add_argument("--wrate", type=int, default=2)
    ap.add_argument("--othrate", type=int, default=4)
    ap.add_argument("--codepf", type=int, default=1)
    ap.add_argument("--dry", type=int, default=0)
    ap.add_argument("--bursts", default="[([2,6,7],0,-2),([1,3,5],3,-1),([8,0,4],6,18)]")
    ap.add_argument("--oth", default="{7:-2,1:8,3:14,5:21,8:29,0:36,4:44}")
    o = ap.parse_args()
    o.bursts = eval(o.bursts); o.oth = eval(o.oth)
    o.stamps = [0, 4, 8, 16, 24, 32, 40, 50, 60, 67]
    for k in ("stflag", "wpflag"):
        if getattr(o, k): setattr(o, k, " " + getattr(o, k))
    open(o.o, "w").write(gen(o))
```

```python
import sys, struct, argparse

NAME = "standalone__self_sup_conv_stem_wavlm__speech"
L = 7993
ARR = 12800
WB = 9 * ARR
CLASS_ORDER = [4, 5, 3, 6, 2, 7, 1, 8, 0]
STEPS = [(c, p) for c in CLASS_ORDER for p in range(8 if c <= 4 else 7)]
NS = len(STEPS)
def f2u(x): return struct.unpack('<I', struct.pack('<f', x))[0]
def lam_of(c): return (c >> 1, 4 + ((c + 1) >> 1))
NEED = {}
_n = 0
for _c in CLASS_ORDER:
    for _l in lam_of(_c): NEED.setdefault(_l, _n - 2)
    _n += 8 if _c <= 4 else 7
LAM_ORDER = sorted(NEED, key=lambda l: NEED[l])

class Asm:
    def __init__(s): s.lines = []
    def __call__(s, t): s.lines.append("  " + t)
    def label(s, t): s.lines.append(t + ":")
    def c(s, t): s.lines.append("  ; " + t)
    def text(s): return "\n".join(s.lines) + "\n"

class VmQ:
    def __init__(s, a): s.a = a; s.q = []; s.done = 0
    def issue(s, tag):
        s.q.append(tag); assert len(s.q) - s.done <= 63, "vmcnt overflow"
    def wait(s, pred):
        last = -1
        for i, t in enumerate(s.q):
            if pred(t): last = i
        if last < s.done: return
        s.a(f"s_waitcnt vmcnt({len(s.q) - 1 - last})")
        s.done = last + 1

def gen(o):
    R = o.ring
    PART = WB + R * 3072
    AB = PART + 1536
    LDS = AB + 384
    assert LDS <= 163840
    a = Asm()
    xnt = " nt" if o.x_nt else ""
    xont = " nt" if o.xo_nt else ""
    wnt = " nt" if o.w_nt else ""
    T = o.timing
    def probe(tag):
        if o.probe == tag: a("s_memrealtime s[98:99]"); a("s_waitcnt lgkmcnt(0)")
    def probe_end(lbl, mult):
        a("s_waitcnt lgkmcnt(0)")
        if mult:
            a("s_sub_u32 s44, s98, s62"); a(f"s_mul_i32 s44, s44, {mult}")
        else: a("s_mov_b32 s44, 0")
        a("s_add_u32 s44, s44, 3000")
        a.label(lbl)
        a("s_memrealtime s[46:47]"); a("s_waitcnt lgkmcnt(0)"); a("s_sub_u32 s46, s46, s62")
        a("s_cmp_lt_u32 s46, s44"); a(f"s_cbranch_scc1 {lbl}")
    a("s_load_dwordx8 s[4:11], s[0:1], 0")
    a("s_load_dwordx4 s[12:15], s[0:1], 32")
    a("s_load_dwordx2 s[16:17], s[0:1], 48")
    if T: a("s_memtime s[60:61]")
    if T or o.probe: a("s_memrealtime s[62:63]")
    a("s_cmp_ge_u32 s2, 256")
    a("s_cbranch_scc1 L_end")
    a("v_lshrrev_b32 v130, 6, v0")
    a("v_and_b32 v129, 63, v0")
    a("v_readfirstlane_b32 s18, v130")
    a("s_and_b32 s3, s2, 7")
    a("s_lshr_b32 s49, s2, 3")
    a("s_lshl_b32 s46, s3, 1")
    a("s_add_u32 s46, s46, s49")
    a("s_sub_u32 s46, s46, 30")
    a("s_mul_i32 s47, s3, 10")
    a("s_cmp_lt_u32 s49, 30")
    a("s_cselect_b32 s46, s49, s46")
    a("s_cselect_b32 s47, s47, 80")
    a("s_cselect_b32 s48, 0, s46")
    a("s_cmp_ge_u32 s48, 12")
    a("s_cbranch_scc1 L_end")
    a("s_mul_i32 s48, s46, 43")
    a("s_lshr_b32 s48, s48, 7")
    a("s_add_u32 s19, s47, s48")
    a("s_mul_i32 s48, s48, 3")
    a("s_sub_u32 s20, s46, s48")
    a("s_cmp_ge_u32 s19, 42")
    a("s_cselect_b32 s21, 1, 0")
    a("s_cselect_b32 s48, 42, 0")
    a("s_cselect_b32 s23, 3, 0")
    a("s_cselect_b32 s44, 4608000, 0")
    a("s_sub_u32 s22, s19, s48")
    a("s_add_u32 s23, s23, s20")
    a("s_mul_i32 s45, s22, 110592")
    a("s_add_u32 s44, s44, s45")
    a("s_sub_u32 s26, 4607712, s45")
    a("s_mov_b32 s27, 0x20000")
    a("v_lshrrev_b32 v136, 4, v129")
    a("v_lshrrev_b32 v132, 3, v129")
    a("v_and_b32 v133, 2, v132")
    a("v_and_b32 v134, 7, v129")
    a("v_xor_b32 v133, v133, v134")
    a("v_lshlrev_b32 v133, 4, v133")
    a("v_mul_u32_u24 v131, 1152, v132")
    a("v_add_u32 v131, v131, v133")
    a("s_add_u32 s46, s20, 1")
    a("s_cmp_eq_u32 s46, 3")
    a("s_cselect_b32 s46, 0, s46")
    a("s_add_u32 s47, s20, s46")
    a("s_sub_u32 s47, 3, s47")
    a("s_lshl_b32 s92, s20, 10"); a("s_lshl_b32 s93, s46, 10"); a("s_lshl_b32 s94, s47, 10")
    a("s_mul_i32 s95, s20, 9216"); a("s_mul_i32 s96, s46, 9216"); a("s_mul_i32 s97, s47, 9216")
    a("s_mul_i32 s43, s20, 96")
    a("s_cmp_eq_u32 s18, 7")
    a("s_cbranch_scc1 L_xpro")
    a("s_cmp_ge_u32 s18, 4")
    a("s_cbranch_scc1 L_wpro")

    def x_srd():
        a("s_add_u32 s24, s4, s44")
        a("s_addc_u32 s25, s5, 0")
    def pub_srd():
        a("s_lshl_b32 s44, s23, 14")
        a("s_add_u32 s36, s16, s44")
        a("s_addc_u32 s37, s17, 0")
        a("s_mov_b32 s38, 16128")
        a("s_mov_b32 s39, 0x20000")

    a.c("consumer prologue: wave w loads piece m = w of the first arrays")
    a("s_mul_i32 s46, s18, 3072")
    a("s_mul_i32 s47, s18, 27648")
    for d in range(3):
        a(f"s_add_u32 s{92+d}, s{92+d}, s46")
        a(f"s_add_u32 s{95+d}, s{95+d}, s47")
    a("s_waitcnt lgkmcnt(0)")
    if T: a("s_memtime s[80:81]")
    x_srd()
    def cload(lam, d):
        a(f"s_add_u32 m0, s{92+d}, {lam*ARR}")
        a(f"s_add_u32 s50, s{95+d}, {lam*128}")
        a(f"buffer_load_dwordx4 v131, s[24:27], s50 offen{xnt if d == 0 else xont} lds")
    for lam in o.b1: cload(lam, 0)
    if o.q: a("s_barrier")
    if T: a("s_memtime s[82:83]")
    for d in (1, 2):
        for lam in LAM_ORDER[:2]: cload(lam, d)
    a("s_branch L_cons")

    a.label("L_wpro")
    qw = VmQ(a)
    a("v_subrev_u32 v140, 256, v0")
    a("v_mul_u32_u24 v141, 171, v140")
    a("v_lshrrev_b32 v141, 10, v141")
    a("v_mul_u32_u24 v142, 6, v141")
    a("v_sub_u32 v142, v140, v142")
    a("v_and_b32 v143, 0x13, v141")
    a("v_and_b32 v144, 4, v141")
    a("v_lshl_add_u32 v143, v144, 1, v143")
    a("v_and_b32 v144, 8, v141")
    a("v_lshrrev_b32 v144, 1, v144")
    a("v_add_u32 v143, v143, v144")
    a("v_mul_u32_u24 v143, 288, v143")
    a("v_lshl_add_u32 v139, v142, 4, v143")
    a("s_sub_u32 s49, s18, 4")
    a("s_lshl_b32 s51, s49, 10")
    a("s_sub_u32 s30, 622080, s43")
    a("s_mov_b32 s31, 0x20000")
    a("s_waitcnt lgkmcnt(0)")
    a("s_add_u32 s28, s6, s43")
    a("s_addc_u32 s29, s7, 0")
    probe("K")
    def wload(n):
        c, p = STEPS[n]
        a(f"s_add_u32 m0, s51, {WB + (n % R)*3072}")
        a(f"s_mov_b32 s50, {(288*p + 32*c)*288}")
        a(f"buffer_load_dwordx4 v139, s[28:31], s50 offen{wnt} lds")
        qw.issue(("W", n))
    nxt = 0
    while nxt < o.wpreq: wload(nxt); nxt += 1
    if o.q: a("s_barrier")
    a("s_lshl_b32 s92, s49, 10")
    a("s_mul_i32 s95, s49, 9216")
    x_srd()
    a("v_and_b32 v135, 7, v129")
    a("v_lshlrev_b32 v135, 1, v135")
    a("v_lshrrev_b32 v134, 5, v129")
    a("v_add_u32 v135, v135, v134")
    a("s_lshl_b32 s44, s49, 4")
    a("v_add_u32 v135, s44, v135")
    a("v_lshlrev_b32 v134, 1, v135")
    a("v_add_u32 v134, s43, v134")
    a("s_mov_b32 s52, s8"); a("s_mov_b32 s53, s9"); a("s_mov_b32 s54, 288"); a("s_mov_b32 s55, 0x20000")
    a("s_mov_b32 s56, s10"); a("s_mov_b32 s57, s11"); a("s_mov_b32 s58, 288"); a("s_mov_b32 s59, 0x20000")
    pub_srd()
    while nxt < o.winit: wload(nxt); nxt += 1
    if T: a("s_memtime s[90:91]")
    a("s_cmp_eq_u32 s20, 1")
    a("s_cbranch_scc1 L_wmain1")
    a("s_cmp_eq_u32 s20, 2")
    a("s_cbranch_scc1 L_wmain2")
    a("s_branch L_wmain0")

    a.label("L_xpro")
    qx = VmQ(a)
    a("s_mov_b32 s30, 622080")
    a("s_mov_b32 s31, 0x20000")
    if o.wm:
        a("v_lshlrev_b32 v100, 8, v129")
        a("v_add_u32 v100, s2, v100")
        a("v_lshlrev_b32 v100, 7, v100")
    if o.wp0:
        a("v_mul_u32_u24 v140, 57, v129")
        a("v_lshrrev_b32 v140, 10, v140")
        a("v_mul_u32_u24 v141, 18, v140")
        a("v_sub_u32 v141, v129, v141")
        a("v_cmp_eq_u32 s[52:53], 1, v140")
        a("v_cmp_eq_u32 s[54:55], 2, v140")
        a("v_lshl_add_u32 v141, v141, 5, s49")
        a("v_mul_u32_u24 v142, 911, v141")
        a("v_lshrrev_b32 v142, 16, v142")
        a("v_mul_u32_u24 v143, 73728, v142")
        a("v_lshl_add_u32 v143, v141, 7, v143")
    def sel3(dst, c0, c1, c2, m1, m2, base):
        a(f"v_mov_b32 v144, {c0}")
        a(f"v_mov_b32 v145, {c1}")
        a(f"v_cndmask_b32 v144, v144, v145, {m1}")
        a(f"v_mov_b32 v145, {c2}")
        a(f"v_cndmask_b32 v144, v144, v145, {m2}")
        a(f"v_add_u32 v{dst}, v144, {base}")
    def wsel(ci): sel3(101 + ci // 3, *[CLASS_ORDER[ci + k] * 9216 for k in range(3)], "s[52:53]", "s[54:55]", "v143")
    def wpre(q, ci, ncls=3):
        if ncls == 3: a("s_mov_b32 exec_hi, 0x3fffff")
        elif ncls == 2: a("s_mov_b32 exec_hi, 0xf")
        else: a("s_mov_b64 exec, 0x3ffff")
        a(f"buffer_load_dword v146, v{101 + ci // 3}, s[28:31], 0 offen{o.wpflag}")
        a("s_mov_b64 exec, -1")
        q.issue("wp")
    def xround(q, lam, r, cold):
        a(f"s_add_u32 m0, s92, {lam*ARR + r*4096}")
        a(f"s_add_u32 s50, s95, {lam*128 + r*36864}")
        a(f"buffer_load_dwordx4 v131, s[24:27], s50 offen{xnt if cold else xont} lds")
        q.issue(lam)
    def xrot(q, lam, d, m):
        a(f"s_add_u32 m0, s{80+d}, {lam*ARR + m*3072}")
        a(f"s_add_u32 s50, s{83+d}, {lam*128 + m*27648}")
        a(f"buffer_load_dwordx4 v131, s[24:27], s50 offen{xont} lds")
        q.issue(lam)
    def xhalf(q, lam, cold=True):
        a(f"s_mov_b32 m0, {lam*ARR + 12*1024}")
        a(f"s_mov_b32 s50, {12*9216 + lam*128}")
        a("s_mov_b32 exec_hi, 0")
        a(f"buffer_load_dwordx4 v131, s[24:27], s50 offen{xnt if cold else xont} lds")
        a("s_mov_b32 exec_hi, -1")
        q.issue(lam)
    if o.wp0: wsel(0)
    a("s_waitcnt lgkmcnt(0)")
    a("s_mov_b32 s28, s6")
    a("s_mov_b32 s29, s7")
    if o.wp0: wpre(qx, 0, o.wp0)
    if o.wm:
        a("s_mov_b64 exec, 0x7ffff")
        a(f"buffer_load_dword v146, v100, s[28:31], 0 offen")
        a("s_mov_b64 exec, -1")
        qx.issue("wm")
    x_srd()
    for lam in o.b1: xhalf(qx, lam)
    if o.q: a("s_barrier")
    for d in range(3):
        a(f"s_mov_b32 s{80+d}, s{92+d}"); a(f"s_mov_b32 s{83+d}, s{95+d}")
    a("s_movk_i32 s92, 3072")
    a("s_movk_i32 s95, 27648")
    if o.wp0 and o.wp: wsel(3); wsel(6)
    if o.xp:
        a("s_add_u32 s40, s4, 4608000")
        a("s_addc_u32 s41, s5, 0")
        a("s_cmp_lt_u32 s3, 6")
        a("s_cselect_b32 s42, 4607712, 0")
        a("s_cmp_lt_u32 s49, 30")
        a("s_cselect_b32 s42, s42, 0")
        a("s_mov_b32 s43, 0x20000")
        a("s_lshl_b32 s46, s3, 1")
        a("s_mul_i32 s47, s46, 43"); a("s_lshr_b32 s47, s47, 7")
        a("s_add_u32 s46, s46, 1")
        a("s_mul_i32 s48, s46, 43"); a("s_lshr_b32 s48, s48, 7")
        a("s_add_u32 s47, s47, 38"); a("s_add_u32 s48, s48, 38")
        a("s_mul_i32 s47, s47, 110592"); a("s_mul_i32 s48, s48, 110592")
        a("s_sub_u32 s48, s48, s47")
        a("s_mul_i32 s46, s49, 43"); a("s_lshr_b32 s46, s46, 7")
        a("v_cmp_le_u32 s[56:57], 20, v129")
        a("v_subrev_u32 v141, 20, v129")
        a("v_cndmask_b32 v140, v129, v141, s[56:57]")
        a("v_mul_u32_u24 v140, 10, v140")
        a("v_add_u32 v140, s46, v140")
        a("v_cmp_le_u32 vcc, 100, v140")
        a("v_mul_u32_u24 v147, 1152, v140")
        a(f"s_sub_u32 s48, s48, {100*1152}")
        a("v_add_u32 v141, s48, v147")
        a("v_cndmask_b32 v147, v147, v141, vcc")
        a("v_add_u32 v147, s47, v147")
    if T: a("s_memtime s[64:65]")
    a("s_cmp_eq_u32 s20, 1")
    a("s_cbranch_scc1 L_xmain1")
    a("s_cmp_eq_u32 s20, 2")
    a("s_cbranch_scc1 L_xmain2")
    a("s_branch L_xmain0")

    def xpre(q, lams):
        l0, l1 = lams[0], lams[-1]
        a(f"v_add_u32 v144, {l0*128}, v147")
        a(f"v_add_u32 v145, {l1*128}, v147")
        a("v_cndmask_b32 v144, v144, v145, s[56:57]")
        if len(lams) == 2: a("s_mov_b32 exec_hi, 0xff")
        else: a("s_mov_b64 exec, 0xfffff")
        a(f"buffer_load_dword v146, v144, s[40:43], 0 offen{xnt}")
        a("s_mov_b64 exec, -1")
        q.issue("xp")
    def schedule(sl):
        wops = {}; xops = {}
        for lam in LAM_ORDER[2:]:
            if lam in o.b1:
                k = 0
                for d in (1, 2):
                    for m in range(4):
                        xops.setdefault(o.oth[lam] + k // o.rotrate, []).append(("rot", lam, d, m)); k += 1
                continue
            owner, at = o.own[lam]
            cold = owner == sl
            for r in range(3):
                st = at + r // o.brate if cold else o.oth[lam] + r * o.othgap
                wops.setdefault(st, []).append((lam, r, cold))
                xops.setdefault(st, []).append(("x", lam, r, cold))
            xops.setdefault(st, []).append(("h", lam, cold))
        if o.xp:
            mine = [lam for lam in LAM_ORDER if lam in o.own and o.own[lam][0] == sl]
            while mine:
                g = [lam for lam in mine if abs(o.own[lam][1] - o.own[mine[0]][1]) <= 2][:2]
                xops.setdefault(o.own[g[0]][1], []).insert(0, ("xp", g))
                mine = [lam for lam in mine if lam not in g]
            xops.setdefault(-2, []).insert(0, ("xp", [o.b1[sl % len(o.b1)]]))
        for (ci, at) in o.wp:
            xops.setdefault(at[sl] if isinstance(at, (list, tuple)) else at, []).insert(0, ("wp", ci))
        return wops, xops

    a.label("L_cons")
    pub_srd()
    a("s_cmp_lg_u32 s18, 0")
    a("s_cbranch_scc1 L_c_noclr")
    a.c("wave 0 clears this workgroup's hand-off words")
    a("s_mov_b64 exec, 0xffffff")
    a("v_lshlrev_b32 v142, 4, v129")
    a("s_mul_i32 s50, s22, 384")
    for i in range(4): a(f"v_mov_b32 v{40+i}, -1")
    a("buffer_store_dwordx4 v[40:43], v142, s[36:39], s50 offen sc1")
    a("s_mov_b64 exec, -1")
    a.label("L_c_noclr")
    a("v_and_b32 v139, 15, v129")
    a("v_mul_u32_u24 v140, 3, v139")
    a("v_mul_u32_u24 v141, 48, v130")
    a("v_add_u32 v140, v140, v141")
    a("v_and_b32 v141, 1, v140")
    a("v_lshrrev_b32 v142, 1, v140")
    a("v_cmp_eq_u32 vcc, 1, v141")
    for k in range(5):
        if k: a("v_add_u32 v142, 1, v142")
        a("v_and_b32 v143, 2, v142")
        a("v_xor_b32 v143, v143, v136")
        a("v_lshlrev_b32 v143, 4, v143")
        a(f"v_lshl_add_u32 v{100+k}, v142, 7, v143")
    a(f"v_mul_u32_u24 v105, {4*ARR+64}, v141")
    a(f"v_sub_u32 v106, {4*ARR+64}, v105")
    a(f"v_mul_u32_u24 v107, {5*ARR-64}, v141")
    a(f"v_sub_u32 v108, {5*ARR}, v107")
    a("v_add_u32 v107, 64, v107")
    for s in range(8):
        if s % 2 == 0:
            a(f"v_add_u32 v{112+s}, v{100+s//2}, v105")
            a(f"v_add_u32 v{120+s}, v{100+s//2}, v107")
        else:
            a(f"v_cndmask_b32 v143, v{100+s//2}, v{101+s//2}, vcc")
            a(f"v_add_u32 v{112+s}, v143, v106")
            a(f"v_add_u32 v{120+s}, v143, v108")
    a("v_lshrrev_b32 v141, 1, v136")
    a("v_lshlrev_b32 v141, 4, v141")
    a("v_and_b32 v142, 1, v136")
    a("v_lshl_add_u32 v141, v142, 2, v141")
    a("v_bfe_u32 v142, v129, 2, 2")
    a("v_add_u32 v141, v141, v142")
    a("v_mul_u32_u24 v141, 96, v141")
    a("v_and_b32 v142, 3, v129")
    a("v_mul_u32_u24 v142, 24, v142")
    a("v_add_u32 v141, v141, v142")
    a(f"v_add_u32 v128, {WB}, v141")
    a(f"s_mul_i32 s44, s21, {L}")
    a("s_mul_i32 s45, s22, 192")
    a("s_add_u32 s44, s44, s45")
    a("s_mul_i32 s44, s44, 288")
    a("s_add_u32 s44, s44, s43")
    a("s_add_u32 s32, s12, s44")
    a("s_addc_u32 s33, s13, 0")
    a(f"s_sub_u32 s34, {L}, s45")
    a("s_mul_i32 s34, s34, 288")
    a("s_sub_u32 s34, s34, s43")
    a("s_mov_b32 s35, 0x20000")
    for t in range(3):
        a(f"s_movk_i32 s46, {L - 41*192 - t}")
        a(f"v_cmp_le_u32 s[{70+2*t}:{71+2*t}], s46, v140")
    a("s_lshl_b32 s44, s23, 5")
    a("v_mov_b32 v141, s44")
    a("v_mov_b32 v142, 1")
    a("s_waitcnt vmcnt(1)")
    a("s_cmp_eq_u32 s18, 0")
    a("s_cbranch_scc1 L_c_p")
    a("s_waitcnt vmcnt(0)")
    a.label("L_c_p")
    if T: a("s_memtime s[84:85]")
    a("s_barrier")
    if T: a("s_memtime s[86:87]"); a("s_waitcnt lgkmcnt(0)")

    def reads_for(n):
        if n >= NS: return []
        c, p = STEPS[n]
        r = []
        bb = 76 + 12 * (n % 3)
        for nt in range(3):
            for kh in range(2):
                d = bb + 4*nt + 2*kh
                r.append(f"ds_read_b64_tr_b16 v[{d}:{d+1}], v128 offset:{(n % R)*3072 + kh*768 + 8*nt}")
        xr = []
        for s in ([0, 1, 2] if p == 0 else [p + 2]):
            d = 36 + 4*s
            xr.append(f"ds_read_b128 v[{d}:{d+3}], v{112 + 8*(c & 1) + (s & 7)} offset:{(c >> 1)*ARR + (512 if s >= 8 else 0)}")
        return xr + r
    r0 = reads_for(0); r1 = reads_for(1)
    for t in r0: a(t)
    a("s_waitcnt lgkmcnt(4)")
    for t in r1: a(t)
    prev = len(r1)
    S1, S2 = 36, 48
    for n in range(NS):
        c, p = STEPS[n]
        a.c(f"step {n}: class {c} p {p}")
        a(f"s_waitcnt lgkmcnt({prev})")
        a("s_barrier")
        rd = reads_for(n + 2)
        prev = len(rd)
        bb = 76 + 12 * (n % 3)
        if n == NS - 1:
            rd = ["v_mul_u32_u24 v141, 384, v130", "v_mul_u32_u24 v142, 96, v136", "v_and_b32 v143, 12, v139",
                  "v_add3_u32 v141, v141, v142, v143", f"v_add_u32 v141, {PART}, v141"]
        for t in range(3):
            for k in range(3):
                nt = k if (t % 2 == 0 or not o.snake) else 2 - k
                acc = 12*t + 4*nt
                f = 36 + 4*(p + t)
                cin = "0" if n == 0 else f"v[{acc}:{acc+3}]"
                a(f"v_mfma_f32_16x16x32_bf16 v[{acc}:{acc+3}], v[{bb+4*nt}:{bb+4*nt+3}], v[{f}:{f+3}], {cin}")
                if rd: a(rd.pop(0))
        assert not rd
        if n == o.atomstep:
            a("s_cmp_lg_u32 s18, 0")
            a("s_cbranch_scc1 L_c_noatom")
            a("s_waitcnt vmcnt(0)")
            a("s_mov_b64 exec, 1")
            a("global_atomic_add v141, v142, s[14:15]")
            a("s_mov_b64 exec, -1")
            a.label("L_c_noatom")
    a.label("L_epi")
    a.c("stats")
    a("s_cmp_eq_u32 s22, 41")
    a("s_cbranch_scc1 L_c_mask")
    a.label("L_c_masked")
    for i in range(6): a(f"v_pk_mul_f32 v[{S2+2*i}:{S2+2*i+1}], v[{2*i}:{2*i+1}], v[{2*i}:{2*i+1}]")
    for i in range(6): a(f"v_pk_add_f32 v[{S1+2*i}:{S1+2*i+1}], v[{2*i}:{2*i+1}], v[{12+2*i}:{12+2*i+1}]")
    for i in range(6): a(f"v_pk_fma_f32 v[{S2+2*i}:{S2+2*i+1}], v[{12+2*i}:{12+2*i+1}], v[{12+2*i}:{12+2*i+1}], v[{S2+2*i}:{S2+2*i+1}]")
    for i in range(6): a(f"v_pk_add_f32 v[{S1+2*i}:{S1+2*i+1}], v[{S1+2*i}:{S1+2*i+1}], v[{24+2*i}:{24+2*i+1}]")
    for i in range(6): a(f"v_pk_fma_f32 v[{S2+2*i}:{S2+2*i+1}], v[{24+2*i}:{24+2*i+1}], v[{24+2*i}:{24+2*i+1}], v[{S2+2*i}:{S2+2*i+1}]")
    P, Q, RR = 60, 66, 72
    for m in range(6):
        a(f"v_add_f32_dpp v{P+m}, v{S1+2*m}, v{S1+2*m} row_shl:8 row_mask:0xf bank_mask:0x3")
        a(f"v_add_f32_dpp v{P+m}, v{S1+2*m+1}, v{S1+2*m+1} row_shr:8 row_mask:0xf bank_mask:0xc")
    for m in range(6):
        a(f"v_add_f32_dpp v{Q+m}, v{S2+2*m}, v{S2+2*m} row_shl:8 row_mask:0xf bank_mask:0x3")
        a(f"v_add_f32_dpp v{Q+m}, v{S2+2*m+1}, v{S2+2*m+1} row_shr:8 row_mask:0xf bank_mask:0xc")
    for m in range(6): a(f"v_add_f32_dpp v{RR+m}, v{P+m}, v{P+m} row_shl:4 row_mask:0xf bank_mask:0x5")
    for m in range(6): a(f"v_add_f32_dpp v{RR+m}, v{Q+m}, v{Q+m} row_shr:4 row_mask:0xf bank_mask:0xa")
    for m in range(6): a(f"v_add_f32_dpp v{RR+m}, v{RR+m}, v{RR+m} quad_perm:[2,3,0,1] row_mask:0xf bank_mask:0xf")
    for m in range(6):
        a(f"v_add_f32_dpp v{RR+m}, v{RR+m}, v{RR+m} quad_perm:[1,0,3,2] row_mask:0xf bank_mask:0xf")
        if m % 2: a(f"ds_write2_b32 v141, v{RR+m-1}, v{RR+m} offset0:{4*(m-1)} offset1:{4*m}")
    a("s_waitcnt lgkmcnt(0)")
    a("s_barrier")
    C0 = -2.0 * 0.7978845608028654 * 1.4426950408889634
    C1 = C0 * 0.044715
    a(f"v_mov_b32 v64, {f2u(C0):#x}"); a(f"v_mov_b32 v65, {f2u(C0):#x}")
    a(f"v_mov_b32 v66, {f2u(C1):#x}"); a(f"v_mov_b32 v67, {f2u(C1):#x}")
    a("v_mov_b32 v68, 1.0"); a("v_mov_b32 v69, 1.0")
    a("v_mul_u32_u24 v142, 288, v140")
    a("v_mul_u32_u24 v143, 24, v136")
    a("v_add_u32 v142, v142, v143")
    a("v_mul_u32_u24 v141, 48, v136")
    a(f"v_add_u32 v141, {AB}, v141")
    a("s_barrier")
    if T: a("s_memtime s[88:89]")
    for k in range(3):
        a(f"ds_read_b128 v[{40+4*k}:{43+4*k}], v141 offset:{16*k}")
        a(f"ds_read_b128 v[{52+4*k}:{55+4*k}], v141 offset:{192+16*k}")
    for t in range(3):
        H = 12*t; Y = 72; U = 84; O = [96, 104, 112][t]
        for i in range(6):
            if t == 0 and i % 2 == 0: a(f"s_waitcnt lgkmcnt({0 if T else 4 - i})")
            a(f"v_pk_fma_f32 v[{Y+2*i}:{Y+2*i+1}], v[{H+2*i}:{H+2*i+1}], v[{40+2*i}:{41+2*i}], v[{52+2*i}:{53+2*i}]")
        for i in range(6): a(f"v_pk_mul_f32 v[{U+2*i}:{U+2*i+1}], v[{Y+2*i}:{Y+2*i+1}], v[{Y+2*i}:{Y+2*i+1}]")
        for i in range(6): a(f"v_pk_fma_f32 v[{U+2*i}:{U+2*i+1}], v[{U+2*i}:{U+2*i+1}], v[66:67], v[64:65]")
        for i in range(6): a(f"v_pk_mul_f32 v[{U+2*i}:{U+2*i+1}], v[{U+2*i}:{U+2*i+1}], v[{Y+2*i}:{Y+2*i+1}]")
        for i in range(12): a(f"v_exp_f32 v{U+i}, v{U+i}")
        for i in range(6): a(f"v_pk_add_f32 v[{U+2*i}:{U+2*i+1}], v[{U+2*i}:{U+2*i+1}], v[68:69]")
        for i in range(12): a(f"v_rcp_f32 v{U+i}, v{U+i}")
        for i in range(6): a(f"v_pk_mul_f32 v[{Y+2*i}:{Y+2*i+1}], v[{Y+2*i}:{Y+2*i+1}], v[{U+2*i}:{U+2*i+1}]")
        for i in range(6): a(f"v_cvt_pk_bf16_f32 v{O+i}, v{Y+2*i}, v{Y+2*i+1}")
        a(f"buffer_store_dwordx4 v[{O}:{O+3}], v142, s[32:35], 0 offen offset:{288*t}{o.stflag}")
        a(f"buffer_store_dwordx2 v[{O+4}:{O+5}], v142, s[32:35], 0 offen offset:{288*t+16}{o.stflag}")
    if T:
        a("s_memtime s[64:65]")
        a("s_waitcnt vmcnt(0)")
        a("s_memtime s[66:67]")
        a("s_memrealtime s[68:69]")
        a("s_cmp_lg_u32 s18, 0")
        a("s_cbranch_scc1 L_end")
        a("s_waitcnt lgkmcnt(0)")
        a("s_lshl_b32 s44, s2, 7")
        a("s_add_u32 s44, s44, 0x100040")
        a("v_mov_b32 v40, s60"); a("v_mov_b32 v41, s62"); a("v_mov_b32 v42, s64"); a("v_mov_b32 v43, s66")
        a("v_mov_b32 v44, s68"); a("v_mov_b32 v45, s88")
        a("v_mov_b32 v48, s44")
        a("s_mov_b64 exec, 1")
        a("global_store_dwordx4 v48, v[40:43], s[16:17]")
        a("global_store_dwordx2 v48, v[44:45], s[16:17] offset:16")
        a("v_mov_b32 v52, s80"); a("v_mov_b32 v53, s82"); a("v_mov_b32 v54, s84"); a("v_mov_b32 v55, s86")
        a("global_store_dwordx4 v48, v[52:55], s[16:17] offset:48")
    if o.probe == "done":
        a("s_waitcnt vmcnt(0)"); probe("done"); probe_end("L_probe_c", 4)
    a("s_endpgm")
    a.label("L_c_mask")
    a("s_nop 5")
    for t in range(3):
        a(f"s_mov_b64 exec, s[{70+2*t}:{71+2*t}]")
        for i in range(6): a(f"v_mov_b64 v[{12*t+2*i}:{12*t+2*i+1}], 0")
    a("s_mov_b64 exec, -1")
    a("s_branch L_c_masked")

    a.label("L_wepi")
    a("v_and_b32 v140, 7, v129")
    a("v_lshlrev_b32 v140, 4, v140")
    a("s_lshl_b32 s44, s49, 7")
    a("v_add_u32 v140, s44, v140")
    a(f"v_add_u32 v141, {PART}, v140")
    a("v_lshrrev_b32 v142, 3, v129")
    a("v_mul_u32_u24 v142, 384, v142")
    a("v_add_u32 v142, v142, v140")
    a("s_mul_i32 s50, s22, 384")
    a("v_lshlrev_b32 v143, 2, v135")
    a(f"v_add_u32 v143, {AB}, v143")
    a(f"s_mov_b32 s44, {f2u(1.0/L):#x}")
    a("s_mov_b32 s45, 0")
    a("s_movk_i32 s46, 3072"); a("s_movk_i32 s47, 9216"); a("s_movk_i32 s48, 15360")
    a("s_waitcnt vmcnt(0)")
    a("v_lshlrev_b32 v137, 16, v137")
    a("v_lshlrev_b32 v138, 16, v138")
    a("s_mov_b64 exec, 0xff")
    a("s_barrier")
    if T: a("s_memtime s[86:87]")
    probe("E1")
    for w in range(4): a(f"ds_read_b128 v[{40+4*w}:{43+4*w}], v141 offset:{384*w}")
    a("s_waitcnt lgkmcnt(2)" if not T else "s_waitcnt lgkmcnt(0)")
    a("v_pk_add_f32 v[40:41], v[40:41], v[44:45]")
    a("v_pk_add_f32 v[42:43], v[42:43], v[46:47]")
    a("s_waitcnt lgkmcnt(0)")
    a("v_pk_add_f32 v[48:49], v[48:49], v[52:53]")
    a("v_pk_add_f32 v[50:51], v[50:51], v[54:55]")
    a("v_pk_add_f32 v[40:41], v[40:41], v[48:49]")
    a("v_pk_add_f32 v[42:43], v[42:43], v[50:51]")
    for i in range(4): a(f"v_min_u32 v{40+i}, -2, v{40+i}")
    a("buffer_store_dwordx4 v[40:43], v140, s[36:39], s50 offen sc1")
    a("s_mov_b64 exec, -1")
    a.label("L_poll")
    so = ["0", "s46", "s46", "s47", "s47", "s48"]; io = [0, 0, 3072, 0, 3072, 0]
    for k in range(6): a(f"buffer_load_dwordx4 v[{44+4*k}:{47+4*k}], v142, s[36:39], {so[k]} offen offset:{io[k]} sc1")
    a("s_waitcnt vmcnt(4)")
    a("v_pk_add_f32 v[68:69], v[44:45], v[48:49]")
    a("v_pk_add_f32 v[70:71], v[46:47], v[50:51]")
    a("s_waitcnt vmcnt(2)")
    a("v_pk_add_f32 v[72:73], v[52:53], v[56:57]")
    a("v_pk_add_f32 v[74:75], v[54:55], v[58:59]")
    a("v_pk_add_f32 v[68:69], v[68:69], v[72:73]")
    a("v_pk_add_f32 v[70:71], v[70:71], v[74:75]")
    a("s_waitcnt vmcnt(0)")
    a("v_pk_add_f32 v[72:73], v[60:61], v[64:65]")
    a("v_pk_add_f32 v[74:75], v[62:63], v[66:67]")
    a("v_pk_add_f32 v[68:69], v[68:69], v[72:73]")
    a("v_pk_add_f32 v[70:71], v[70:71], v[74:75]")
    a("v_cmp_u_f32 vcc, v68, v69")
    a("v_cmp_u_f32 s[90:91], v70, v71")
    a("s_nop 0")
    a("s_or_b64 vcc, vcc, s[90:91]")
    a("s_cbranch_vccnz L_recheck")
    a.label("L_polled")
    probe("gath")
    if T: a("s_memtime s[88:89]")
    a("v_permlane32_swap_b32 v68, v70")
    a("v_permlane32_swap_b32 v69, v71")
    a("v_add_f32 v68, v68, v70")
    a("v_add_f32 v69, v69, v71")
    a("s_nop 1")
    a("v_permlane16_swap_b32 v68, v69")
    a("v_add_f32 v68, v68, v69")
    a("s_nop 1")
    a("v_add_f32_dpp v68, v68, v68 row_ror:8 row_mask:0xf bank_mask:0xf")
    a("v_mul_f32 v68, s44, v68")
    a("v_mov_b32 v69, v68")
    a("s_nop 1")
    a("v_permlane16_swap_b32 v68, v69")
    a("v_fma_f32 v69, -v68, v68, v69")
    a("v_max_f32 v69, 0, v69")
    a(f"v_add_f32 v69, {f2u(1e-5):#x}, v69")
    a("v_rsq_f32 v69, v69")
    a("s_mov_b32 exec_lo, 0xff")
    a("s_mov_b32 exec_hi, 0xff")
    a("v_mul_f32 v69, v137, v69")
    a("v_fma_f32 v68, -v68, v69, v138")
    a("ds_write2_b32 v143, v69, v68 offset0:0 offset1:48")
    a("s_waitcnt lgkmcnt(0)")
    a("s_barrier")
    if T:
        a("s_cmp_lg_u32 s18, 5")
        a("s_cbranch_scc1 L_end")
        a("s_memtime s[90:91]")
        a("s_waitcnt lgkmcnt(0)")
        a("s_lshl_b32 s44, s2, 7")
        a("s_add_u32 s44, s44, 0x100000")
        regs = [60, 64] + list(range(66, 86, 2)) + [86, 88, 90, 62]
        for i, r in enumerate(regs): a(f"v_mov_b32 v{40+i}, s{r}")
        a("v_mov_b32 v60, s44")
        a("v_mov_b32 v62, s98"); a("v_mov_b32 v63, s100")
        a("s_mov_b64 exec, 1")
        for k in range(4): a(f"global_store_dwordx4 v60, v[{40+4*k}:{43+4*k}], s[16:17] offset:{16*k}")
        a("global_store_dwordx2 v60, v[62:63], s[16:17] offset:96")
        a("global_store_dword v60, v149, s[16:17] offset:108")
        if o.trace:
            a("s_mov_b64 exec, -1")
            a("s_lshl_b32 s44, s2, 9"); a("s_add_u32 s44, s44, 0x200000")
            a("v_lshlrev_b32 v60, 2, v129"); a("v_add_u32 v60, s44, v60")
            a("global_store_dword v60, v150, s[16:17]")
            a("global_store_dword v60, v151, s[16:17] offset:256")
    if o.probe and o.probe != "done": probe_end("L_probe_w", 0 if o.probe == "fixed" else 4)
    a("s_endpgm")
    a.label("L_recheck")
    a.c("a NaN sum: a word not yet written, or a genuine NaN")
    for k in range(8): a(f"v_max3_u32 v{72+k}, v{44+3*k}, v{45+3*k}, v{46+3*k}")
    a("v_max3_u32 v72, v72, v73, v74"); a("v_max3_u32 v75, v75, v76, v77")
    a("v_max3_u32 v72, v72, v78, v79"); a("v_max_u32 v72, v72, v75")
    a("v_cmp_eq_u32 vcc, -1, v72")
    a("s_add_u32 s45, s45, 1")
    a("s_cmp_ge_u32 s45, 0x100000")
    a("s_cbranch_scc1 L_polled")
    a("s_cbranch_vccnz L_poll")
    a("s_branch L_polled")
    a.label("L_epi_end")

    import copy
    qw0, nxt0, qx0 = qw, nxt, qx
    for sl in range(3):
        wops, xops = schedule(sl)
        qw = VmQ(a); qw.q = list(qw0.q); qw.done = qw0.done; nxt = nxt0
        def wload(n):
            c, p = STEPS[n]
            a(f"s_add_u32 m0, s51, {WB + (n % R)*3072}")
            a(f"s_mov_b32 s50, {(288*p + 32*c)*288}")
            a(f"buffer_load_dwordx4 v139, s[28:31], s50 offen{wnt} lds")
            qw.issue(("W", n))
        a.label(f"L_wmain{sl}")
        def run_wops(n):
            for op in wops.pop(n, []): xround(qw, *op)
        run_wops(-2)
        if T:
            a("s_waitcnt lgkmcnt(0)"); a("s_sub_u32 s90, s90, s60"); a("v_mov_b32 v149, s90")
        qw.wait(lambda t: t in (("W", 0), ("W", 1)))
        if T: a("s_memtime s[64:65]")
        probe("P0")
        a("s_barrier")
        probe("P")
        while nxt < o.winit2: wload(nxt); nxt += 1
        run_wops(-1)
        qw.wait(lambda t: t == ("W", 2))
        stamp = 66
        for n in range(NS):
            a("s_barrier")
            if T and n in o.stamps:
                a(f"s_memtime s[{stamp}:{stamp+1}]"); stamp += 2
                if n == 0: a("s_memrealtime s[98:99]")
                if n == 67: a("s_memrealtime s[100:101]")
            probe(f"b{n}")
            if o.trace:
                a("s_memtime s[88:89]"); a("s_waitcnt lgkmcnt(0)"); a("s_sub_u32 s88, s88, s60")
                a(f"v_writelane_b32 v{150 + n // 64}, s88, {n % 64}")
            busy = len(wops.get(n, []))
            run_wops(n)
            k = 0
            while nxt < NS and nxt <= n + R and (k < o.wrate - (busy > 0) or nxt <= n + o.wmin) and nxt <= o.wcap.get(n, 99):
                wload(nxt); nxt += 1; k += 1
            if n == NS - R + 1:
                a("buffer_load_ushort v137, v134, s[52:55], 0 offen"); qw.issue("gb")
                a("buffer_load_ushort v138, v134, s[56:59], 0 offen"); qw.issue("gb")
            assert nxt > min(n + 3, NS - 1), (n, nxt)
            qw.wait(lambda t: t == ("W", n + 3) or (t in NEED and NEED[t] <= n + 1))
        assert not wops, wops
        assert nxt == NS
        a("s_branch L_wepi")

        qx = VmQ(a); qx.q = list(qx0.q); qx.done = qx0.done
        a.label(f"L_xmain{sl}")
        def run_xops(n):
            for op in xops.pop(n, []):
                if op[0] == "wp": wpre(qx, op[1])
                elif op[0] == "x": xround(qx, *op[1:])
                elif op[0] == "rot": xrot(qx, *op[1:])
                elif op[0] == "xp": xpre(qx, op[1])
                else: xhalf(qx, *op[1:])
        run_xops(-2)
        if T: a("s_memtime s[66:67]")
        qx.wait(lambda t: t in LAM_ORDER[:2])
        if T: a("s_memtime s[68:69]")
        a("s_barrier")
        run_xops(-1)
        for n in range(NS - R + 2):
            qx.wait(lambda t: t in NEED and NEED[t] <= n)
            a("s_barrier")
            run_xops(n)
        assert not xops, xops
        if sl < 2: a("s_branch L_xtail")
    a.label("L_xtail")
    a("s_lshl_b32 s44, s23, 5")
    a("v_mov_b32 v140, s44")
    a("global_load_dword v142, v140, s[14:15] sc1")
    if o.codepf:
        a("s_getpc_b64 s[56:57]")
        a.label("L_pc")
        a(f"s_sub_u32 s56, s56, L_pc-L_epi")
        a("s_subb_u32 s57, s57, 0")
        a("s_and_b32 s56, s56, 0xffffff80")
        a(f"s_mov_b32 s58, L_epi_end-L_epi+128")
        a("s_mov_b32 s59, 0x20000")
        a("v_lshlrev_b32 v147, 7, v129")
        a("buffer_load_dword v148, v147, s[56:59], 0 offen")
    for n in range(NS - R + 2, NS): a("s_barrier")
    a("s_mov_b32 s45, 0")
    a.label("L_cnt_wait")
    a("s_waitcnt vmcnt(0)")
    a("v_readfirstlane_b32 s44, v142")
    a("s_add_u32 s45, s45, 1")
    a("s_cmp_ge_u32 s44, 42")
    a("s_cbranch_scc1 L_cnt_ok")
    a("s_cmp_ge_u32 s45, 0x100000")
    a("s_cbranch_scc1 L_cnt_ok")
    a("global_load_dword v142, v140, s[14:15] sc1")
    a("s_branch L_cnt_wait")
    a.label("L_cnt_ok")
    a("s_barrier")
    a("s_barrier")
    if T:
        a("s_waitcnt lgkmcnt(0)")
        a("s_lshl_b32 s44, s2, 7")
        a("s_add_u32 s44, s44, 0x100000")
        a("s_sub_u32 s64, s64, s60"); a("s_sub_u32 s66, s66, s60"); a("s_sub_u32 s68, s68, s60")
        a("v_mov_b32 v40, s64"); a("v_mov_b32 v41, s66"); a("v_mov_b32 v42, s68"); a("v_mov_b32 v43, s44")
        a("s_mov_b64 exec, 1")
        a("global_store_dwordx2 v43, v[40:41], s[16:17] offset:88")
        a("global_store_dword v43, v42, s[16:17] offset:104")
    a.label("L_end")
    a("s_endpgm")

    hdr = f"""; Fused strided conv1d (im2col GEMM on MFMA) + per-channel norm over time + tanh-GELU.
; @launch grid=(256,1,1) block=(512,1,1) lds={LDS}
.amdgcn_target "amdgcn-amd-amdhsa--gfx950"
.text
.globl {NAME}_kernel
.p2align 8
.type {NAME}_kernel,@function
{NAME}_kernel:
"""
    ftr = f""".section .rodata,"a"
.p2align 6
.amdhsa_kernel {NAME}_kernel
  .amdhsa_next_free_vgpr 152
  .amdhsa_next_free_sgpr 102
  .amdhsa_accum_offset 152
  .amdhsa_group_segment_fixed_size 0
  .amdhsa_kernarg_size 56
  .amdhsa_float_denorm_mode_32 3
  .amdhsa_user_sgpr_count 2
  .amdhsa_user_sgpr_kernarg_segment_ptr 1
  .amdhsa_system_sgpr_workgroup_id_x 1
.end_amdhsa_kernel
"""
    return hdr + a.text() + ftr

def options(argv=None):
    ap = argparse.ArgumentParser()
    ap.add_argument("-o", default=f"cdna_kernels/{NAME}.s")
    ap.add_argument("--timing", action="store_true")
    ap.add_argument("--probe", default="")
    ap.add_argument("--stamps", default="[0, 4, 8, 16, 24, 32, 40, 50, 60, 67]")
    ap.add_argument("--atomstep", type=int, default=8)
    ap.add_argument("--trace", type=int, default=0)
    ap.add_argument("--ring", type=int, default=15)
    ap.add_argument("--x_nt", type=int, default=1)
    ap.add_argument("--xo_nt", type=int, default=0)
    ap.add_argument("--w_nt", type=int, default=0)
    ap.add_argument("--wpflag", default="")
    ap.add_argument("--stflag", default="")
    ap.add_argument("--q", type=int, default=0)
    ap.add_argument("--wpreq", type=int, default=1)
    ap.add_argument("--winit", type=int, default=8)
    ap.add_argument("--winit2", type=int, default=8)
    ap.add_argument("--wrate", type=int, default=2)
    ap.add_argument("--wcap", default="{}")
    ap.add_argument("--brate", type=int, default=3)
    ap.add_argument("--othgap", type=int, default=1)
    ap.add_argument("--codepf", type=int, default=1)
    ap.add_argument("--snake", type=int, default=1)
    ap.add_argument("--b1", default="[2,6,7]")
    ap.add_argument("--own", default="{1:(0,-1),3:(0,0),5:(1,8),8:(1,9),0:(2,18),4:(2,19)}")
    ap.add_argument("--wp", default="[]")
    ap.add_argument("--wp0", type=int, default=3)
    ap.add_argument("--xp", type=int, default=1)
    ap.add_argument("--wm", type=int, default=1)
    ap.add_argument("--wmin", type=int, default=5)
    ap.add_argument("--rotrate", type=int, default=4)
    ap.add_argument("--oth", default="{7:-2,1:7,3:13,5:20,8:27,0:34,4:41}")
    o = ap.parse_args(argv)
    for k in ("b1", "own", "wp", "oth", "wcap"): setattr(o, k, eval(getattr(o, k)))
    o.stamps = eval(o.stamps)
    for k in ("stflag", "wpflag"):
        if getattr(o, k): setattr(o, k, " " + getattr(o, k))
    return o

if __name__ == "__main__":
    o = options()
    open(o.o, "w").write(gen(o))
```

```python
import sys, struct, argparse

NAME = "standalone__self_sup_conv_stem_wavlm__speech"
L = 7993
ARR = 12800
WB = 9 * ARR
CLASS_ORDER = [4, 5, 3, 6, 2, 7, 1, 8, 0]
STEPS = [(c, p) for c in CLASS_ORDER for p in range(8 if c <= 4 else 7)]
NS = len(STEPS)
def f2u(x): return struct.unpack('<I', struct.pack('<f', x))[0]
def lam_of(c): return (c >> 1, 4 + ((c + 1) >> 1))
NEED = {}
_n = 0
for _c in CLASS_ORDER:
    for _l in lam_of(_c): NEED.setdefault(_l, _n - 2)
    _n += 8 if _c <= 4 else 7
LAM_ORDER = sorted(NEED, key=lambda l: NEED[l])

class Asm:
    def __init__(s): s.lines = []
    def __call__(s, t): s.lines.append("  " + t)
    def label(s, t): s.lines.append(t + ":")
    def c(s, t): s.lines.append("  ; " + t)
    def text(s): return "\n".join(s.lines) + "\n"

class VmQ:
    def __init__(s, a): s.a = a; s.q = []; s.done = 0
    def issue(s, tag):
        s.q.append(tag); assert len(s.q) - s.done <= 63, "vmcnt overflow"
    def wait(s, pred):
        last = -1
        for i, t in enumerate(s.q):
            if pred(t): last = i
        if last < s.done: return
        s.a(f"s_waitcnt vmcnt({len(s.q) - 1 - last})")
        s.done = last + 1

def gen(o):
    R = o.ring
    PART = WB + R * 3072
    AB = PART + 1536
    LDS = AB + 384
    assert LDS <= 163840
    a = Asm()
    xnt = " nt" if o.x_nt else ""
    xont = " nt" if o.xo_nt else ""
    wnt = " nt" if o.w_nt else ""
    T = o.timing
    def probe(tag):
        if o.probe == tag: a("s_memrealtime s[98:99]"); a("s_waitcnt lgkmcnt(0)")
    def probe_end(lbl, mult):
        a("s_waitcnt lgkmcnt(0)")
        if mult:
            a("s_sub_u32 s44, s98, s62"); a(f"s_mul_i32 s44, s44, {mult}")
        else: a("s_mov_b32 s44, 0")
        a("s_add_u32 s44, s44, 3000")
        a.label(lbl)
        a("s_memrealtime s[46:47]"); a("s_waitcnt lgkmcnt(0)"); a("s_sub_u32 s46, s46, s62")
        a("s_cmp_lt_u32 s46, s44"); a(f"s_cbranch_scc1 {lbl}")
    a("s_load_dwordx8 s[4:11], s[0:1], 0")
    a("s_load_dwordx4 s[12:15], s[0:1], 32")
    a("s_load_dwordx2 s[16:17], s[0:1], 48")
    if T: a("s_memtime s[60:61]")
    if T or o.probe: a("s_memrealtime s[62:63]")
    a("s_cmp_ge_u32 s2, 256")
    a("s_cbranch_scc1 L_end")
    a("v_lshrrev_b32 v130, 6, v0")
    a("v_and_b32 v129, 63, v0")
    a("v_readfirstlane_b32 s18, v130")
    a("s_and_b32 s3, s2, 7")
    a("s_lshr_b32 s49, s2, 3")
    a("s_lshl_b32 s46, s3, 1")
    a("s_add_u32 s46, s46, s49")
    a("s_sub_u32 s46, s46, 30")
    a("s_mul_i32 s47, s3, 10")
    a("s_cmp_lt_u32 s49, 30")
    a("s_cselect_b32 s46, s49, s46")
    a("s_cselect_b32 s47, s47, 80")
    a("s_cselect_b32 s48, 0, s46")
    a("s_cmp_ge_u32 s48, 12")
    a("s_cbranch_scc1 L_end")
    a("s_mul_i32 s48, s46, 43")
    a("s_lshr_b32 s48, s48, 7")
    a("s_add_u32 s19, s47, s48")
    a("s_mul_i32 s48, s48, 3")
    a("s_sub_u32 s20, s46, s48")
    a("s_cmp_ge_u32 s19, 42")
    a("s_cselect_b32 s21, 1, 0")
    a("s_cselect_b32 s48, 42, 0")
    a("s_cselect_b32 s23, 3, 0")
    a("s_cselect_b32 s44, 4608000, 0")
    a("s_sub_u32 s22, s19, s48")
    a("s_add_u32 s23, s23, s20")
    a("s_mul_i32 s45, s22, 110592")
    a("s_add_u32 s44, s44, s45")
    a("s_sub_u32 s26, 4607712, s45")
    a("s_mov_b32 s27, 0x20000")
    a("v_lshrrev_b32 v136, 4, v129")
    a("v_lshrrev_b32 v132, 3, v129")
    a("v_and_b32 v133, 2, v132")
    a("v_and_b32 v134, 7, v129")
    a("v_xor_b32 v133, v133, v134")
    a("v_lshlrev_b32 v133, 4, v133")
    a("v_mul_u32_u24 v131, 1152, v132")
    a("v_add_u32 v131, v131, v133")
    a("s_add_u32 s46, s20, 1")
    a("s_cmp_eq_u32 s46, 3")
    a("s_cselect_b32 s46, 0, s46")
    a("s_add_u32 s47, s20, s46")
    a("s_sub_u32 s47, 3, s47")
    a("s_lshl_b32 s92, s20, 10"); a("s_lshl_b32 s93, s46, 10"); a("s_lshl_b32 s94, s47, 10")
    a("s_mul_i32 s95, s20, 9216"); a("s_mul_i32 s96, s46, 9216"); a("s_mul_i32 s97, s47, 9216")
    a("s_mul_i32 s43, s20, 96")
    a("s_cmp_eq_u32 s18, 7")
    a("s_cbranch_scc1 L_xpro")
    a("s_cmp_ge_u32 s18, 4")
    a("s_cbranch_scc1 L_wpro")

    def x_srd():
        a("s_add_u32 s24, s4, s44")
        a("s_addc_u32 s25, s5, 0")
    def pub_srd():
        a("s_lshl_b32 s44, s23, 14")
        a("s_add_u32 s36, s16, s44")
        a("s_addc_u32 s37, s17, 0")
        a("s_mov_b32 s38, 16128")
        a("s_mov_b32 s39, 0x20000")

    a.c("consumer prologue: wave w loads piece m = w of the first arrays")
    a("s_mul_i32 s46, s18, 3072")
    a("s_mul_i32 s47, s18, 27648")
    for d in range(3):
        a(f"s_add_u32 s{92+d}, s{92+d}, s46")
        a(f"s_add_u32 s{95+d}, s{95+d}, s47")
    a("s_waitcnt lgkmcnt(0)")
    if T: a("s_memtime s[80:81]")
    x_srd()
    def cload(lam, d):
        a(f"s_add_u32 m0, s{92+d}, {lam*ARR}")
        a(f"s_add_u32 s50, s{95+d}, {lam*128}")
        a(f"buffer_load_dwordx4 v131, s[24:27], s50 offen{xnt if d == 0 else xont} lds")
    if o.chalf:
        for k, lam in enumerate(o.b1[:4]):
            a(f"s_cmp_eq_u32 s18, {3-k}")
            a(f"s_cselect_b32 s46, {lam*ARR + 12*1024}, s46")
            a(f"s_cselect_b32 s47, {12*9216 + lam*128}, s47")
        a(f"s_cmp_lt_u32 s18, {4 - len(o.b1[:4])}")
        a("s_cbranch_scc1 L_c_nohalf")
        a("s_mov_b32 m0, s46")
        a("s_mov_b32 exec_hi, 0")
        a(f"buffer_load_dwordx4 v131, s[24:27], s47 offen{xnt} lds")
        a("s_mov_b32 exec_hi, -1")
        a.label("L_c_nohalf")
    for lam in o.b1: cload(lam, 0)
    if o.q: a("s_barrier")
    if T: a("s_memtime s[82:83]")
    for d in (1, 2):
        for lam in LAM_ORDER[:2]: cload(lam, d)
    a("s_branch L_cons")

    a.label("L_wpro")
    qw = VmQ(a)
    a("v_subrev_u32 v140, 256, v0")
    a("v_mul_u32_u24 v141, 171, v140")
    a("v_lshrrev_b32 v141, 10, v141")
    a("v_mul_u32_u24 v142, 6, v141")
    a("v_sub_u32 v142, v140, v142")
    a("v_and_b32 v143, 0x13, v141")
    a("v_and_b32 v144, 4, v141")
    a("v_lshl_add_u32 v143, v144, 1, v143")
    a("v_and_b32 v144, 8, v141")
    a("v_lshrrev_b32 v144, 1, v144")
    a("v_add_u32 v143, v143, v144")
    a("v_mul_u32_u24 v143, 288, v143")
    a("v_lshl_add_u32 v139, v142, 4, v143")
    a("s_sub_u32 s49, s18, 4")
    a("s_lshl_b32 s51, s49, 10")
    a("s_sub_u32 s30, 622080, s43")
    a("s_mov_b32 s31, 0x20000")
    a("s_waitcnt lgkmcnt(0)")
    a("s_add_u32 s28, s6, s43")
    a("s_addc_u32 s29, s7, 0")
    probe("K")
    def wload(n):
        c, p = STEPS[n]
        a(f"s_add_u32 m0, s51, {WB + (n % R)*3072}")
        a(f"s_mov_b32 s50, {(288*p + 32*c)*288}")
        a(f"buffer_load_dwordx4 v139, s[28:31], s50 offen{wnt} lds")
        qw.issue(("W", n))
    nxt = 0
    while nxt < o.wpreq: wload(nxt); nxt += 1
    if o.q: a("s_barrier")
    a("s_lshl_b32 s92, s49, 10")
    a("s_mul_i32 s95, s49, 9216")
    x_srd()
    a("v_and_b32 v135, 7, v129")
    a("v_lshlrev_b32 v135, 1, v135")
    a("v_lshrrev_b32 v134, 5, v129")
    a("v_add_u32 v135, v135, v134")
    a("s_lshl_b32 s44, s49, 4")
    a("v_add_u32 v135, s44, v135")
    a("v_lshlrev_b32 v134, 1, v135")
    a("v_add_u32 v134, s43, v134")
    a("s_mov_b32 s52, s8"); a("s_mov_b32 s53, s9"); a("s_mov_b32 s54, 288"); a("s_mov_b32 s55, 0x20000")
    a("s_mov_b32 s56, s10"); a("s_mov_b32 s57, s11"); a("s_mov_b32 s58, 288"); a("s_mov_b32 s59, 0x20000")
    pub_srd()
    while nxt < o.winit: wload(nxt); nxt += 1
    if T: a("s_memtime s[90:91]")
    a("s_cmp_eq_u32 s20, 1")
    a("s_cbranch_scc1 L_wmain1")
    a("s_cmp_eq_u32 s20, 2")
    a("s_cbranch_scc1 L_wmain2")
    a("s_branch L_wmain0")

    a.label("L_xpro")
    qx = VmQ(a)
    a("s_mov_b32 s30, 622080")
    a("s_mov_b32 s31, 0x20000")
    if o.wm:
        a("v_lshlrev_b32 v100, 8, v129")
        a("v_add_u32 v100, s2, v100")
        a("v_lshlrev_b32 v100, 7, v100")
    if o.wp0:
        a("v_mul_u32_u24 v140, 57, v129")
        a("v_lshrrev_b32 v140, 10, v140")
        a("v_mul_u32_u24 v141, 18, v140")
        a("v_sub_u32 v141, v129, v141")
        a("v_cmp_eq_u32 s[52:53], 1, v140")
        a("v_cmp_eq_u32 s[54:55], 2, v140")
        a("v_lshl_add_u32 v141, v141, 5, s49")
        a("v_mul_u32_u24 v142, 911, v141")
        a("v_lshrrev_b32 v142, 16, v142")
        a("v_mul_u32_u24 v143, 73728, v142")
        a("v_lshl_add_u32 v143, v141, 7, v143")
    def sel3(dst, c0, c1, c2, m1, m2, base):
        a(f"v_mov_b32 v144, {c0}")
        a(f"v_mov_b32 v145, {c1}")
        a(f"v_cndmask_b32 v144, v144, v145, {m1}")
        a(f"v_mov_b32 v145, {c2}")
        a(f"v_cndmask_b32 v144, v144, v145, {m2}")
        a(f"v_add_u32 v{dst}, v144, {base}")
    def wsel(ci): sel3(101 + ci // 3, *[CLASS_ORDER[ci + k] * 9216 for k in range(3)], "s[52:53]", "s[54:55]", "v143")
    def wpre(q, ci, ncls=3):
        if ncls == 3: a("s_mov_b32 exec_hi, 0x3fffff")
        elif ncls == 2: a("s_mov_b32 exec_hi, 0xf")
        else: a("s_mov_b64 exec, 0x3ffff")
        a(f"buffer_load_dword v146, v{101 + ci // 3}, s[28:31], 0 offen{o.wpflag}")
        a("s_mov_b64 exec, -1")
        q.issue("wp")
    def xround(q, lam, r, cold):
        a(f"s_add_u32 m0, s92, {lam*ARR + r*4096}")
        a(f"s_add_u32 s50, s95, {lam*128 + r*36864}")
        a(f"buffer_load_dwordx4 v131, s[24:27], s50 offen{xnt if cold else xont} lds")
        q.issue(lam)
    def xrot(q, lam, d, m):
        a(f"s_add_u32 m0, s{80+d}, {lam*ARR + m*3072}")
        a(f"s_add_u32 s50, s{83+d}, {lam*128 + m*27648}")
        a(f"buffer_load_dwordx4 v131, s[24:27], s50 offen{xont} lds")
        q.issue(lam)
    def xhalf(q, lam, cold=True):
        a(f"s_mov_b32 m0, {lam*ARR + 12*1024}")
        a(f"s_mov_b32 s50, {12*9216 + lam*128}")
        a("s_mov_b32 exec_hi, 0")
        a(f"buffer_load_dwordx4 v131, s[24:27], s50 offen{xnt if cold else xont} lds")
        a("s_mov_b32 exec_hi, -1")
        q.issue(lam)
    if o.wp0: wsel(0)
    a("s_waitcnt lgkmcnt(0)")
    a("s_mov_b32 s28, s6")
    a("s_mov_b32 s29, s7")
    if o.wp0: wpre(qx, 0, o.wp0)
    if o.wm:
        a("s_mov_b64 exec, 0x7ffff")
        a(f"buffer_load_dword v146, v100, s[28:31], 0 offen")
        a("s_mov_b64 exec, -1")
        qx.issue("wm")
    x_srd()
    if not o.chalf:
        for lam in o.b1: xhalf(qx, lam)
    if o.q: a("s_barrier")
    for d in range(3):
        a(f"s_mov_b32 s{80+d}, s{92+d}"); a(f"s_mov_b32 s{83+d}, s{95+d}")
    a("s_movk_i32 s92, 3072")
    a("s_movk_i32 s95, 27648")
    if o.wp0 and o.wp: wsel(3); wsel(6)
    if o.xp:
        a("s_add_u32 s40, s4, 4608000")
        a("s_addc_u32 s41, s5, 0")
        a("s_cmp_lt_u32 s3, 6")
        a("s_cselect_b32 s42, 4607712, 0")
        a("s_cmp_lt_u32 s49, 30")
        a("s_cselect_b32 s42, s42, 0")
        a("s_mov_b32 s43, 0x20000")
        a("s_lshl_b32 s46, s3, 1")
        a("s_mul_i32 s47, s46, 43"); a("s_lshr_b32 s47, s47, 7")
        a("s_add_u32 s46, s46, 1")
        a("s_mul_i32 s48, s46, 43"); a("s_lshr_b32 s48, s48, 7")
        a("s_add_u32 s47, s47, 38"); a("s_add_u32 s48, s48, 38")
        a("s_mul_i32 s47, s47, 110592"); a("s_mul_i32 s48, s48, 110592")
        a("s_sub_u32 s48, s48, s47")
        a("s_mul_i32 s46, s49, 43"); a("s_lshr_b32 s46, s46, 7")
        a("v_cmp_le_u32 s[56:57], 20, v129")
        a("v_subrev_u32 v141, 20, v129")
        a("v_cndmask_b32 v140, v129, v141, s[56:57]")
        a("v_mul_u32_u24 v140, 10, v140")
        a("v_add_u32 v140, s46, v140")
        a("v_cmp_le_u32 vcc, 100, v140")
        a("v_mul_u32_u24 v147, 1152, v140")
        a(f"s_sub_u32 s48, s48, {100*1152}")
        a("v_add_u32 v141, s48, v147")
        a("v_cndmask_b32 v147, v147, v141, vcc")
        a("v_add_u32 v147, s47, v147")
    if T: a("s_memtime s[64:65]")
    a("s_cmp_eq_u32 s20, 1")
    a("s_cbranch_scc1 L_xmain1")
    a("s_cmp_eq_u32 s20, 2")
    a("s_cbranch_scc1 L_xmain2")
    a("s_branch L_xmain0")

    def xpre(q, lams):
        l0, l1 = lams[0], lams[-1]
        a(f"v_add_u32 v144, {l0*128}, v147")
        a(f"v_add_u32 v145, {l1*128}, v147")
        a("v_cndmask_b32 v144, v144, v145, s[56:57]")
        if len(lams) == 2: a("s_mov_b32 exec_hi, 0xff")
        else: a("s_mov_b64 exec, 0xfffff")
        a(f"buffer_load_dword v146, v144, s[40:43], 0 offen{xnt}")
        a("s_mov_b64 exec, -1")
        q.issue("xp")
    def schedule(sl):
        wops = {}; xops = {}
        for lam in LAM_ORDER[2:]:
            if lam in o.b1:
                k = 0
                for d in (1, 2):
                    for m in range(4):
                        xops.setdefault(o.oth[lam] + k // o.rotrate, []).append(("rot", lam, d, m)); k += 1
                continue
            for r in range(3):
                owner, at = o.own[lam][r] if isinstance(o.own[lam], list) else o.own[lam]
                cold = owner == sl
                st = at + r // o.brate if cold else o.oth[lam] + r // o.orate
                wops.setdefault(st, []).append((lam, r, cold))
                xops.setdefault(st, []).append(("x", lam, r, cold))
            xops.setdefault(st, []).append(("h", lam, cold))
        if o.xp:
            own1 = {lam: (v[0] if isinstance(v, list) else v) for lam, v in o.own.items()}
            mine = [lam for lam in LAM_ORDER if lam in own1 and own1[lam][0] == sl]
            while mine:
                g = [lam for lam in mine if abs(own1[lam][1] - own1[mine[0]][1]) <= 2][:2]
                xops.setdefault(own1[g[0]][1], []).insert(0, ("xp", g))
                mine = [lam for lam in mine if lam not in g]
            xops.setdefault(-2, []).insert(0, ("xp", [o.b1[sl % len(o.b1)]]))
        for (ci, at) in o.wp:
            xops.setdefault(at[sl] if isinstance(at, (list, tuple)) else at, []).insert(0, ("wp", ci))
        return wops, xops

    a.label("L_cons")
    pub_srd()
    a("s_cmp_lg_u32 s18, 0")
    a("s_cbranch_scc1 L_c_noclr")
    a.c("wave 0 clears this workgroup's hand-off words")
    a("s_mov_b64 exec, 0xffffff")
    a("v_lshlrev_b32 v142, 4, v129")
    a("s_mul_i32 s50, s22, 384")
    for i in range(4): a(f"v_mov_b32 v{40+i}, -1")
    a("buffer_store_dwordx4 v[40:43], v142, s[36:39], s50 offen sc1")
    a("s_mov_b64 exec, -1")
    a.label("L_c_noclr")
    a("v_and_b32 v139, 15, v129")
    a("v_mul_u32_u24 v140, 3, v139")
    a("v_mul_u32_u24 v141, 48, v130")
    a("v_add_u32 v140, v140, v141")
    a("v_and_b32 v141, 1, v140")
    a("v_lshrrev_b32 v142, 1, v140")
    a("v_cmp_eq_u32 vcc, 1, v141")
    for k in range(5):
        if k: a("v_add_u32 v142, 1, v142")
        a("v_and_b32 v143, 2, v142")
        a("v_xor_b32 v143, v143, v136")
        a("v_lshlrev_b32 v143, 4, v143")
        a(f"v_lshl_add_u32 v{100+k}, v142, 7, v143")
    a(f"v_mul_u32_u24 v105, {4*ARR+64}, v141")
    a(f"v_sub_u32 v106, {4*ARR+64}, v105")
    a(f"v_mul_u32_u24 v107, {5*ARR-64}, v141")
    a(f"v_sub_u32 v108, {5*ARR}, v107")
    a("v_add_u32 v107, 64, v107")
    for s in range(8):
        if s % 2 == 0:
            a(f"v_add_u32 v{112+s}, v{100+s//2}, v105")
            a(f"v_add_u32 v{120+s}, v{100+s//2}, v107")
        else:
            a(f"v_cndmask_b32 v143, v{100+s//2}, v{101+s//2}, vcc")
            a(f"v_add_u32 v{112+s}, v143, v106")
            a(f"v_add_u32 v{120+s}, v143, v108")
    a("v_lshrrev_b32 v141, 1, v136")
    a("v_lshlrev_b32 v141, 4, v141")
    a("v_and_b32 v142, 1, v136")
    a("v_lshl_add_u32 v141, v142, 2, v141")
    a("v_bfe_u32 v142, v129, 2, 2")
    a("v_add_u32 v141, v141, v142")
    a("v_mul_u32_u24 v141, 96, v141")
    a("v_and_b32 v142, 3, v129")
    a("v_mul_u32_u24 v142, 24, v142")
    a("v_add_u32 v141, v141, v142")
    a(f"v_add_u32 v128, {WB}, v141")
    a(f"s_mul_i32 s44, s21, {L}")
    a("s_mul_i32 s45, s22, 192")
    a("s_add_u32 s44, s44, s45")
    a("s_mul_i32 s44, s44, 288")
    a("s_add_u32 s44, s44, s43")
    a("s_add_u32 s32, s12, s44")
    a("s_addc_u32 s33, s13, 0")
    a(f"s_sub_u32 s34, {L}, s45")
    a("s_mul_i32 s34, s34, 288")
    a("s_sub_u32 s34, s34, s43")
    a("s_mov_b32 s35, 0x20000")
    for t in range(3):
        a(f"s_movk_i32 s46, {L - 41*192 - t}")
        a(f"v_cmp_le_u32 s[{70+2*t}:{71+2*t}], s46, v140")
    a("s_lshl_b32 s44, s23, 5")
    a("v_mov_b32 v141, s44")
    a("v_mov_b32 v142, 1")
    a("s_waitcnt vmcnt(1)")
    a("s_cmp_eq_u32 s18, 0")
    a("s_cbranch_scc1 L_c_p")
    a("s_waitcnt vmcnt(0)")
    a.label("L_c_p")
    if T: a("s_memtime s[84:85]")
    a("s_barrier")
    if T: a("s_memtime s[86:87]"); a("s_waitcnt lgkmcnt(0)")

    def reads_for(n):
        if n >= NS: return []
        c, p = STEPS[n]
        r = []
        bb = 76 + 12 * (n % 3)
        for nt in range(3):
            for kh in range(2):
                d = bb + 4*nt + 2*kh
                r.append(f"ds_read_b64_tr_b16 v[{d}:{d+1}], v128 offset:{(n % R)*3072 + kh*768 + 8*nt}")
        xr = []
        for s in ([0, 1, 2] if p == 0 else [p + 2]):
            d = 36 + 4*s
            xr.append(f"ds_read_b128 v[{d}:{d+3}], v{112 + 8*(c & 1) + (s & 7)} offset:{(c >> 1)*ARR + (512 if s >= 8 else 0)}")
        return xr + r
    r0 = reads_for(0); r1 = reads_for(1)
    for t in r0: a(t)
    a("s_waitcnt lgkmcnt(4)")
    for t in r1: a(t)
    prev = len(r1)
    S1, S2 = 36, 48
    for n in range(NS):
        c, p = STEPS[n]
        a.c(f"step {n}: class {c} p {p}")
        a(f"s_waitcnt lgkmcnt({prev})")
        a("s_barrier")
        rd = reads_for(n + 2)
        prev = len(rd)
        bb = 76 + 12 * (n % 3)
        if n == NS - 1:
            rd = ["v_mul_u32_u24 v141, 384, v130", "v_mul_u32_u24 v142, 96, v136", "v_and_b32 v143, 12, v139",
                  "v_add3_u32 v141, v141, v142, v143", f"v_add_u32 v141, {PART}, v141"]
        for t in range(3):
            for k in range(3):
                nt = k if (t % 2 == 0 or not o.snake) else 2 - k
                acc = 12*t + 4*nt
                f = 36 + 4*(p + t)
                cin = "0" if n == 0 else f"v[{acc}:{acc+3}]"
                a(f"v_mfma_f32_16x16x32_bf16 v[{acc}:{acc+3}], v[{bb+4*nt}:{bb+4*nt+3}], v[{f}:{f+3}], {cin}")
                if rd: a(rd.pop(0))
        assert not rd
        if n == o.atomstep:
            a("s_cmp_lg_u32 s18, 0")
            a("s_cbranch_scc1 L_c_noatom")
            a("s_waitcnt vmcnt(0)")
            a("s_mov_b64 exec, 1")
            a("global_atomic_add v141, v142, s[14:15]")
            a("s_mov_b64 exec, -1")
            a.label("L_c_noatom")
    a.label("L_epi")
    a.c("stats")
    a("s_cmp_eq_u32 s22, 41")
    a("s_cbranch_scc1 L_c_mask")
    a.label("L_c_masked")
    for i in range(6): a(f"v_pk_mul_f32 v[{S2+2*i}:{S2+2*i+1}], v[{2*i}:{2*i+1}], v[{2*i}:{2*i+1}]")
    for i in range(6): a(f"v_pk_add_f32 v[{S1+2*i}:{S1+2*i+1}], v[{2*i}:{2*i+1}], v[{12+2*i}:{12+2*i+1}]")
    for i in range(6): a(f"v_pk_fma_f32 v[{S2+2*i}:{S2+2*i+1}], v[{12+2*i}:{12+2*i+1}], v[{12+2*i}:{12+2*i+1}], v[{S2+2*i}:{S2+2*i+1}]")
    for i in range(6): a(f"v_pk_add_f32 v[{S1+2*i}:{S1+2*i+1}], v[{S1+2*i}:{S1+2*i+1}], v[{24+2*i}:{24+2*i+1}]")
    for i in range(6): a(f"v_pk_fma_f32 v[{S2+2*i}:{S2+2*i+1}], v[{24+2*i}:{24+2*i+1}], v[{24+2*i}:{24+2*i+1}], v[{S2+2*i}:{S2+2*i+1}]")
    P, Q, RR = 60, 66, 72
    for m in range(6):
        a(f"v_add_f32_dpp v{P+m}, v{S1+2*m}, v{S1+2*m} row_shl:8 row_mask:0xf bank_mask:0x3")
        a(f"v_add_f32_dpp v{P+m}, v{S1+2*m+1}, v{S1+2*m+1} row_shr:8 row_mask:0xf bank_mask:0xc")
    for m in range(6):
        a(f"v_add_f32_dpp v{Q+m}, v{S2+2*m}, v{S2+2*m} row_shl:8 row_mask:0xf bank_mask:0x3")
        a(f"v_add_f32_dpp v{Q+m}, v{S2+2*m+1}, v{S2+2*m+1} row_shr:8 row_mask:0xf bank_mask:0xc")
    for m in range(6): a(f"v_add_f32_dpp v{RR+m}, v{P+m}, v{P+m} row_shl:4 row_mask:0xf bank_mask:0x5")
    for m in range(6): a(f"v_add_f32_dpp v{RR+m}, v{Q+m}, v{Q+m} row_shr:4 row_mask:0xf bank_mask:0xa")
    for m in range(6): a(f"v_add_f32_dpp v{RR+m}, v{RR+m}, v{RR+m} quad_perm:[2,3,0,1] row_mask:0xf bank_mask:0xf")
    for m in range(6):
        a(f"v_add_f32_dpp v{RR+m}, v{RR+m}, v{RR+m} quad_perm:[1,0,3,2] row_mask:0xf bank_mask:0xf")
        if m % 2: a(f"ds_write2_b32 v141, v{RR+m-1}, v{RR+m} offset0:{4*(m-1)} offset1:{4*m}")
    a("s_waitcnt lgkmcnt(0)")
    a("s_barrier")
    C0 = -2.0 * 0.7978845608028654 * 1.4426950408889634
    C1 = C0 * 0.044715
    a(f"v_mov_b32 v64, {f2u(C0):#x}"); a(f"v_mov_b32 v65, {f2u(C0):#x}")
    a(f"v_mov_b32 v66, {f2u(C1):#x}"); a(f"v_mov_b32 v67, {f2u(C1):#x}")
    a("v_mov_b32 v68, 1.0"); a("v_mov_b32 v69, 1.0")
    a("v_mul_u32_u24 v142, 288, v140")
    a("v_mul_u32_u24 v143, 24, v136")
    a("v_add_u32 v142, v142, v143")
    a("v_mul_u32_u24 v141, 48, v136")
    a(f"v_add_u32 v141, {AB}, v141")
    a("s_barrier")
    if T: a("s_memtime s[88:89]")
    for k in range(3):
        a(f"ds_read_b128 v[{40+4*k}:{43+4*k}], v141 offset:{16*k}")
        a(f"ds_read_b128 v[{52+4*k}:{55+4*k}], v141 offset:{192+16*k}")
    for t in range(3):
        H = 12*t; Y = 72; U = 84; O = [96, 104, 112][t]
        for i in range(6):
            if t == 0 and i % 2 == 0: a(f"s_waitcnt lgkmcnt({0 if T else 4 - i})")
            a(f"v_pk_fma_f32 v[{Y+2*i}:{Y+2*i+1}], v[{H+2*i}:{H+2*i+1}], v[{40+2*i}:{41+2*i}], v[{52+2*i}:{53+2*i}]")
        for i in range(6): a(f"v_pk_mul_f32 v[{U+2*i}:{U+2*i+1}], v[{Y+2*i}:{Y+2*i+1}], v[{Y+2*i}:{Y+2*i+1}]")
        for i in range(6): a(f"v_pk_fma_f32 v[{U+2*i}:{U+2*i+1}], v[{U+2*i}:{U+2*i+1}], v[66:67], v[64:65]")
        for i in range(6): a(f"v_pk_mul_f32 v[{U+2*i}:{U+2*i+1}], v[{U+2*i}:{U+2*i+1}], v[{Y+2*i}:{Y+2*i+1}]")
        for i in range(12): a(f"v_exp_f32 v{U+i}, v{U+i}")
        for i in range(6): a(f"v_pk_add_f32 v[{U+2*i}:{U+2*i+1}], v[{U+2*i}:{U+2*i+1}], v[68:69]")
        for i in range(12): a(f"v_rcp_f32 v{U+i}, v{U+i}")
        for i in range(6): a(f"v_pk_mul_f32 v[{Y+2*i}:{Y+2*i+1}], v[{Y+2*i}:{Y+2*i+1}], v[{U+2*i}:{U+2*i+1}]")
        for i in range(6): a(f"v_cvt_pk_bf16_f32 v{O+i}, v{Y+2*i}, v{Y+2*i+1}")
        a(f"buffer_store_dwordx4 v[{O}:{O+3}], v142, s[32:35], 0 offen offset:{288*t}{o.stflag}")
        a(f"buffer_store_dwordx2 v[{O+4}:{O+5}], v142, s[32:35], 0 offen offset:{288*t+16}{o.stflag}")
    if T:
        a("s_memtime s[64:65]")
        a("s_waitcnt vmcnt(0)")
        a("s_memtime s[66:67]")
        a("s_memrealtime s[68:69]")
        a("s_cmp_lg_u32 s18, 0")
        a("s_cbranch_scc1 L_end")
        a("s_waitcnt lgkmcnt(0)")
        a("s_lshl_b32 s44, s2, 7")
        a("s_add_u32 s44, s44, 0x100040")
        a("v_mov_b32 v40, s60"); a("v_mov_b32 v41, s62"); a("v_mov_b32 v42, s64"); a("v_mov_b32 v43, s66")
        a("v_mov_b32 v44, s68"); a("v_mov_b32 v45, s88")
        a("v_mov_b32 v48, s44")
        a("s_mov_b64 exec, 1")
        a("global_store_dwordx4 v48, v[40:43], s[16:17]")
        a("global_store_dwordx2 v48, v[44:45], s[16:17] offset:16")
        a("v_mov_b32 v52, s80"); a("v_mov_b32 v53, s82"); a("v_mov_b32 v54, s84"); a("v_mov_b32 v55, s86")
        a("global_store_dwordx4 v48, v[52:55], s[16:17] offset:48")
    if o.probe == "done":
        a("s_waitcnt vmcnt(0)"); probe("done"); probe_end("L_probe_c", 4)
    a("s_endpgm")
    a.label("L_c_mask")
    a("s_nop 5")
    for t in range(3):
        a(f"s_mov_b64 exec, s[{70+2*t}:{71+2*t}]")
        for i in range(6): a(f"v_mov_b64 v[{12*t+2*i}:{12*t+2*i+1}], 0")
    a("s_mov_b64 exec, -1")
    a("s_branch L_c_masked")

    a.label("L_wepi")
    a("v_and_b32 v140, 7, v129")
    a("v_lshlrev_b32 v140, 4, v140")
    a("s_lshl_b32 s44, s49, 7")
    a("v_add_u32 v140, s44, v140")
    a(f"v_add_u32 v141, {PART}, v140")
    a("v_lshrrev_b32 v142, 3, v129")
    a("v_mul_u32_u24 v142, 384, v142")
    a("v_add_u32 v142, v142, v140")
    a("s_mul_i32 s50, s22, 384")
    a("v_lshlrev_b32 v143, 2, v135")
    a(f"v_add_u32 v143, {AB}, v143")
    a(f"s_mov_b32 s44, {f2u(1.0/L):#x}")
    a("s_mov_b32 s45, 0")
    a("s_movk_i32 s46, 3072"); a("s_movk_i32 s47, 9216"); a("s_movk_i32 s48, 15360")
    a("s_waitcnt vmcnt(0)")
    a("v_lshlrev_b32 v137, 16, v137")
    a("v_lshlrev_b32 v138, 16, v138")
    a("s_mov_b64 exec, 0xff")
    a("s_barrier")
    if T: a("s_memtime s[86:87]")
    probe("E1")
    for w in range(4): a(f"ds_read_b128 v[{40+4*w}:{43+4*w}], v141 offset:{384*w}")
    a("s_waitcnt lgkmcnt(2)" if not T else "s_waitcnt lgkmcnt(0)")
    a("v_pk_add_f32 v[40:41], v[40:41], v[44:45]")
    a("v_pk_add_f32 v[42:43], v[42:43], v[46:47]")
    a("s_waitcnt lgkmcnt(0)")
    a("v_pk_add_f32 v[48:49], v[48:49], v[52:53]")
    a("v_pk_add_f32 v[50:51], v[50:51], v[54:55]")
    a("v_pk_add_f32 v[40:41], v[40:41], v[48:49]")
    a("v_pk_add_f32 v[42:43], v[42:43], v[50:51]")
    for i in range(4): a(f"v_min_u32 v{40+i}, -2, v{40+i}")
    a("buffer_store_dwordx4 v[40:43], v140, s[36:39], s50 offen sc1")
    a("s_mov_b64 exec, -1")
    a.label("L_poll")
    so = ["0", "s46", "s46", "s47", "s47", "s48"]; io = [0, 0, 3072, 0, 3072, 0]
    for k in range(6): a(f"buffer_load_dwordx4 v[{44+4*k}:{47+4*k}], v142, s[36:39], {so[k]} offen offset:{io[k]} sc1")
    a("s_waitcnt vmcnt(4)")
    a("v_pk_add_f32 v[68:69], v[44:45], v[48:49]")
    a("v_pk_add_f32 v[70:71], v[46:47], v[50:51]")
    a("s_waitcnt vmcnt(2)")
    a("v_pk_add_f32 v[72:73], v[52:53], v[56:57]")
    a("v_pk_add_f32 v[74:75], v[54:55], v[58:59]")
    a("v_pk_add_f32 v[68:69], v[68:69], v[72:73]")
    a("v_pk_add_f32 v[70:71], v[70:71], v[74:75]")
    a("s_waitcnt vmcnt(0)")
    a("v_pk_add_f32 v[72:73], v[60:61], v[64:65]")
    a("v_pk_add_f32 v[74:75], v[62:63], v[66:67]")
    a("v_pk_add_f32 v[68:69], v[68:69], v[72:73]")
    a("v_pk_add_f32 v[70:71], v[70:71], v[74:75]")
    a("v_cmp_u_f32 vcc, v68, v69")
    a("v_cmp_u_f32 s[90:91], v70, v71")
    a("s_nop 0")
    a("s_or_b64 vcc, vcc, s[90:91]")
    a("s_cbranch_vccnz L_recheck")
    a.label("L_polled")
    probe("gath")
    if T: a("s_memtime s[88:89]")
    a("v_permlane32_swap_b32 v68, v70")
    a("v_permlane32_swap_b32 v69, v71")
    a("v_add_f32 v68, v68, v70")
    a("v_add_f32 v69, v69, v71")
    a("s_nop 1")
    a("v_permlane16_swap_b32 v68, v69")
    a("v_add_f32 v68, v68, v69")
    a("s_nop 1")
    a("v_add_f32_dpp v68, v68, v68 row_ror:8 row_mask:0xf bank_mask:0xf")
    a("v_mul_f32 v68, s44, v68")
    a("v_mov_b32 v69, v68")
    a("s_nop 1")
    a("v_permlane16_swap_b32 v68, v69")
    a("v_fma_f32 v69, -v68, v68, v69")
    a("v_max_f32 v69, 0, v69")
    a(f"v_add_f32 v69, {f2u(1e-5):#x}, v69")
    a("v_rsq_f32 v69, v69")
    a("s_mov_b32 exec_lo, 0xff")
    a("s_mov_b32 exec_hi, 0xff")
    a("v_mul_f32 v69, v137, v69")
    a("v_fma_f32 v68, -v68, v69, v138")
    a("ds_write2_b32 v143, v69, v68 offset0:0 offset1:48")
    a("s_waitcnt lgkmcnt(0)")
    a("s_barrier")
    if T:
        a("s_cmp_lg_u32 s18, 5")
        a("s_cbranch_scc1 L_end")
        a("s_memtime s[90:91]")
        a("s_waitcnt lgkmcnt(0)")
        a("s_lshl_b32 s44, s2, 7")
        a("s_add_u32 s44, s44, 0x100000")
        regs = [60, 64] + list(range(66, 86, 2)) + [86, 88, 90, 62]
        for i, r in enumerate(regs): a(f"v_mov_b32 v{40+i}, s{r}")
        a("v_mov_b32 v60, s44")
        a("v_mov_b32 v62, s98"); a("v_mov_b32 v63, s100")
        a("s_mov_b64 exec, 1")
        for k in range(4): a(f"global_store_dwordx4 v60, v[{40+4*k}:{43+4*k}], s[16:17] offset:{16*k}")
        a("global_store_dwordx2 v60, v[62:63], s[16:17] offset:96")
        a("global_store_dword v60, v149, s[16:17] offset:108")
        if o.trace:
            a("s_mov_b64 exec, -1")
            a("s_lshl_b32 s44, s2, 9"); a("s_add_u32 s44, s44, 0x200000")
            a("v_lshlrev_b32 v60, 2, v129"); a("v_add_u32 v60, s44, v60")
            a("global_store_dword v60, v150, s[16:17]")
            a("global_store_dword v60, v151, s[16:17] offset:256")
    if o.probe and o.probe != "done": probe_end("L_probe_w", 0 if o.probe == "fixed" else 4)
    a("s_endpgm")
    a.label("L_recheck")
    a.c("a NaN sum: a word not yet written, or a genuine NaN")
    for k in range(8): a(f"v_max3_u32 v{72+k}, v{44+3*k}, v{45+3*k}, v{46+3*k}")
    a("v_max3_u32 v72, v72, v73, v74"); a("v_max3_u32 v75, v75, v76, v77")
    a("v_max3_u32 v72, v72, v78, v79"); a("v_max_u32 v72, v72, v75")
    a("v_cmp_eq_u32 vcc, -1, v72")
    a("s_add_u32 s45, s45, 1")
    a("s_cmp_ge_u32 s45, 0x100000")
    a("s_cbranch_scc1 L_polled")
    a("s_cbranch_vccnz L_poll")
    a("s_branch L_polled")
    a.label("L_epi_end")

    import copy
    qw0, nxt0, qx0 = qw, nxt, qx
    for sl in range(3):
        wops, xops = schedule(sl)
        qw = VmQ(a); qw.q = list(qw0.q); qw.done = qw0.done; nxt = nxt0
        def wload(n):
            c, p = STEPS[n]
            a(f"s_add_u32 m0, s51, {WB + (n % R)*3072}")
            a(f"s_mov_b32 s50, {(288*p + 32*c)*288}")
            a(f"buffer_load_dwordx4 v139, s[28:31], s50 offen{wnt} lds")
            qw.issue(("W", n))
        a.label(f"L_wmain{sl}")
        def run_wops(n):
            for op in wops.pop(n, []): xround(qw, *op)
        run_wops(-2)
        if T:
            a("s_waitcnt lgkmcnt(0)"); a("s_sub_u32 s90, s90, s60"); a("v_mov_b32 v149, s90")
        qw.wait(lambda t: t == ("W", 0))
        while nxt < o.winit0: wload(nxt); nxt += 1
        qw.wait(lambda t: t == ("W", 1))
        while nxt < o.winitp: wload(nxt); nxt += 1
        if T: a("s_memtime s[64:65]")
        probe("P0")
        a("s_barrier")
        probe("P")
        while nxt < o.winit2: wload(nxt); nxt += 1
        run_wops(-1)
        qw.wait(lambda t: t == ("W", 2))
        stamp = 66
        for n in range(NS):
            a("s_barrier")
            if T and n in o.stamps:
                a(f"s_memtime s[{stamp}:{stamp+1}]"); stamp += 2
                if n == 0: a("s_memrealtime s[98:99]")
                if n == 67: a("s_memrealtime s[100:101]")
            probe(f"b{n}")
            if o.trace:
                a("s_memtime s[88:89]"); a("s_waitcnt lgkmcnt(0)"); a("s_sub_u32 s88, s88, s60")
                a(f"v_writelane_b32 v{150 + n // 64}, s88, {n % 64}")
            busy = len(wops.get(n, []))
            run_wops(n)
            k = 0
            while nxt < NS and nxt <= n + R and (k < o.wrate - (busy > 0) or nxt <= n + o.wmin) and nxt <= o.wcap.get(n, 99):
                wload(nxt); nxt += 1; k += 1
            if n == NS - R + 1:
                a("buffer_load_ushort v137, v134, s[52:55], 0 offen"); qw.issue("gb")
                a("buffer_load_ushort v138, v134, s[56:59], 0 offen"); qw.issue("gb")
            assert nxt > min(n + 3, NS - 1), (n, nxt)
            qw.wait(lambda t: t == ("W", n + 3) or (t in NEED and NEED[t] <= n + 1))
        assert not wops, wops
        assert nxt == NS
        a("s_branch L_wepi")

        qx = VmQ(a); qx.q = list(qx0.q); qx.done = qx0.done
        a.label(f"L_xmain{sl}")
        def run_xops(n):
            for op in xops.pop(n, []):
                if op[0] == "wp": wpre(qx, op[1])
                elif op[0] == "x": xround(qx, *op[1:])
                elif op[0] == "rot": xrot(qx, *op[1:])
                elif op[0] == "xp": xpre(qx, op[1])
                else: xhalf(qx, *op[1:])
        run_xops(-2)
        if T: a("s_memtime s[66:67]")
        qx.wait(lambda t: t in LAM_ORDER[:2])
        if T: a("s_memtime s[68:69]")
        a("s_barrier")
        run_xops(-1)
        for n in range(NS - R + 2):
            qx.wait(lambda t: t in NEED and NEED[t] <= n)
            a("s_barrier")
            run_xops(n)
        assert not xops, xops
        if sl < 2: a("s_branch L_xtail")
    a.label("L_xtail")
    a("s_lshl_b32 s44, s23, 5")
    a("v_mov_b32 v140, s44")
    a("global_load_dword v142, v140, s[14:15] sc1")
    if o.codepf:
        a("s_getpc_b64 s[56:57]")
        a.label("L_pc")
        a(f"s_sub_u32 s56, s56, L_pc-L_epi")
        a("s_subb_u32 s57, s57, 0")
        a("s_and_b32 s56, s56, 0xffffff80")
        a(f"s_mov_b32 s58, L_epi_end-L_epi+128")
        a("s_mov_b32 s59, 0x20000")
        a("v_lshlrev_b32 v147, 7, v129")
        a("buffer_load_dword v148, v147, s[56:59], 0 offen")
    for n in range(NS - R + 2, NS): a("s_barrier")
    a("s_mov_b32 s45, 0")
    a.label("L_cnt_wait")
    a("s_waitcnt vmcnt(0)")
    a("v_readfirstlane_b32 s44, v142")
    a("s_add_u32 s45, s45, 1")
    a("s_cmp_ge_u32 s44, 42")
    a("s_cbranch_scc1 L_cnt_ok")
    a("s_cmp_ge_u32 s45, 0x100000")
    a("s_cbranch_scc1 L_cnt_ok")
    a("global_load_dword v142, v140, s[14:15] sc1")
    a("s_branch L_cnt_wait")
    a.label("L_cnt_ok")
    a("s_barrier")
    a("s_barrier")
    if T:
        a("s_waitcnt lgkmcnt(0)")
        a("s_lshl_b32 s44, s2, 7")
        a("s_add_u32 s44, s44, 0x100000")
        a("s_sub_u32 s64, s64, s60"); a("s_sub_u32 s66, s66, s60"); a("s_sub_u32 s68, s68, s60")
        a("v_mov_b32 v40, s64"); a("v_mov_b32 v41, s66"); a("v_mov_b32 v42, s68"); a("v_mov_b32 v43, s44")
        a("s_mov_b64 exec, 1")
        a("global_store_dwordx2 v43, v[40:41], s[16:17] offset:88")
        a("global_store_dword v43, v42, s[16:17] offset:104")
    a.label("L_end")
    a("s_endpgm")

    hdr = f"""; Fused strided conv1d (im2col GEMM on MFMA) + per-channel norm over time + tanh-GELU.
; @launch grid=(256,1,1) block=(512,1,1) lds={LDS}
.amdgcn_target "amdgcn-amd-amdhsa--gfx950"
.text
.globl {NAME}_kernel
.p2align 8
.type {NAME}_kernel,@function
{NAME}_kernel:
"""
    ftr = f""".section .rodata,"a"
.p2align 6
.amdhsa_kernel {NAME}_kernel
  .amdhsa_next_free_vgpr 152
  .amdhsa_next_free_sgpr 102
  .amdhsa_accum_offset 152
  .amdhsa_group_segment_fixed_size 0
  .amdhsa_kernarg_size 56
  .amdhsa_float_denorm_mode_32 3
  .amdhsa_user_sgpr_count 2
  .amdhsa_user_sgpr_kernarg_segment_ptr 1
  .amdhsa_system_sgpr_workgroup_id_x 1
.end_amdhsa_kernel
"""
    return hdr + a.text() + ftr

def options(argv=None):
    ap = argparse.ArgumentParser()
    ap.add_argument("-o", default=f"cdna_kernels/{NAME}.s")
    ap.add_argument("--timing", action="store_true")
    ap.add_argument("--probe", default="")
    ap.add_argument("--stamps", default="[0, 4, 8, 16, 24, 32, 40, 50, 60, 67]")
    ap.add_argument("--atomstep", type=int, default=8)
    ap.add_argument("--trace", type=int, default=0)
    ap.add_argument("--ring", type=int, default=15)
    ap.add_argument("--x_nt", type=int, default=0)
    ap.add_argument("--xo_nt", type=int, default=0)
    ap.add_argument("--w_nt", type=int, default=0)
    ap.add_argument("--wpflag", default="")
    ap.add_argument("--stflag", default="")
    ap.add_argument("--q", type=int, default=0)
    ap.add_argument("--wpreq", type=int, default=1)
    ap.add_argument("--winit", type=int, default=8)
    ap.add_argument("--winit0", type=int, default=0)
    ap.add_argument("--winitp", type=int, default=0)
    ap.add_argument("--winit2", type=int, default=8)
    ap.add_argument("--wrate", type=int, default=2)
    ap.add_argument("--wcap", default="{}")
    ap.add_argument("--brate", type=int, default=3)
    ap.add_argument("--orate", type=int, default=1)
    ap.add_argument("--codepf", type=int, default=1)
    ap.add_argument("--snake", type=int, default=1)
    ap.add_argument("--b1", default="[2,6,7]")
    ap.add_argument("--own", default="{1:(0,-1),3:(0,0),5:(1,8),8:(1,9),0:(2,18),4:(2,19)}")
    ap.add_argument("--wp", default="[]")
    ap.add_argument("--wp0", type=int, default=3)
    ap.add_argument("--xp", type=int, default=1)
    ap.add_argument("--chalf", type=int, default=1)
    ap.add_argument("--wm", type=int, default=1)
    ap.add_argument("--wmin", type=int, default=5)
    ap.add_argument("--rotrate", type=int, default=4)
    ap.add_argument("--oth", default="{7:-2,1:7,3:13,5:20,8:27,0:34,4:41}")
    o = ap.parse_args(argv)
    for k in ("b1", "own", "wp", "oth", "wcap"): setattr(o, k, eval(getattr(o, k)))
    o.stamps = eval(o.stamps)
    for k in ("stflag", "wpflag"):
        if getattr(o, k): setattr(o, k, " " + getattr(o, k))
    return o

if __name__ == "__main__":
    o = options()
    open(o.o, "w").write(gen(o))
```

```python
import sys, struct, argparse, re

NAME = "standalone__self_sup_conv_stem_wavlm__speech"
L = 7993
ARR = 12800
WB = 9 * ARR
CLASS_ORDER = [4, 5, 3, 6, 2, 7, 1, 8, 0]
STEPS = [(c, p) for c in CLASS_ORDER for p in range(8 if c <= 4 else 7)]
NS = len(STEPS)
def f2u(x): return struct.unpack('<I', struct.pack('<f', x))[0]
def lam_of(c): return (c >> 1, 4 + ((c + 1) >> 1))
NEED = {}
_n = 0
for _c in CLASS_ORDER:
    for _l in lam_of(_c): NEED.setdefault(_l, _n - 2)
    _n += 8 if _c <= 4 else 7
LAM_ORDER = sorted(NEED, key=lambda l: NEED[l])
class Asm:
    def __init__(s): s.lines = []; s.n = 0; s.wv = {}; s.wm = {}
    def __call__(s, t):
        s.lines.append("  " + t)
        m = re.match(r"s_nop (\d+)", t)
        s.n += int(m.group(1)) + 1 if m else 1
    def label(s, t): s.lines.append(t + ":")
    def c(s, t): s.lines.append("  ; " + t)
    def text(s): return "\n".join(s.lines) + "\n"
    def pad(s, since, need):
        d = s.n - since - 1
        if d < need: s(f"s_nop {need - d - 1}")
    def mfma(s, t, dst):
        s(t)
        for r in dst: s.wm[r] = s.n - 1
    def valu(s, t, rd=(), wr=(), dpp=()):
        for r in list(rd) + list(wr) + list(dpp):
            if r in s.wm: s.pad(s.wm[r] - 0, 8)
        for r in dpp:
            if r in s.wv: s.pad(s.wv[r], 2)
        s(t)
        for r in wr: s.wv[r] = s.n - 1

class Q:
    def __init__(s, a, name, cap): s.a = a; s.q = []; s.done = 0; s.name = name; s.cap = cap
    def copy(s):
        t = Q(s.a, s.name, s.cap); t.q = list(s.q); t.done = s.done; return t
    def issue(s, tag):
        s.q.append(tag)
        if s.name == "vmcnt": assert len(s.q) - s.done <= s.cap, "vmcnt overflow"
    def wait(s, pred):
        last = -1
        for i, t in enumerate(s.q):
            if pred(t): last = i
        if last < s.done: return
        s.a(f"s_waitcnt {s.name}({min(len(s.q) - 1 - last, s.cap)})")
        s.done = last + 1

def gen(o):
    R = o.ring
    NM = NS - (8 if o.kc == 1 else 15)
    TS = list(range(NM, NS)); NT_ = len(TS); D = o.tdist
    WNEED = {}
    PART = WB + R * 3072
    AB = PART + 1536
    FLAG = AB + 384
    LDS = FLAG + 16
    assert LDS <= 163840
    a = Asm()
    xnt = " nt" if o.x_nt else ""
    T = o.timing
    def probe(tag):
        if o.probe == tag: a("s_memrealtime s[98:99]"); a("s_waitcnt lgkmcnt(0)")
    def probe_end(lbl, mult):
        a("s_waitcnt lgkmcnt(0)")
        if mult:
            a("s_sub_u32 s44, s98, s62"); a(f"s_mul_i32 s44, s44, {mult}")
        else: a("s_mov_b32 s44, 0")
        a("s_add_u32 s44, s44, 3000")
        a.label(lbl)
        a("s_memrealtime s[46:47]"); a("s_waitcnt lgkmcnt(0)"); a("s_sub_u32 s46, s46, s62")
        a("s_cmp_lt_u32 s46, s44"); a(f"s_cbranch_scc1 {lbl}")
    a("s_load_dwordx8 s[4:11], s[0:1], 0")
    a("s_load_dwordx4 s[12:15], s[0:1], 32")
    a("s_load_dwordx2 s[16:17], s[0:1], 48")
    if T: a("s_memtime s[60:61]")
    if T or o.probe or o.light: a("s_memrealtime s[62:63]")
    a("s_cmp_ge_u32 s2, 256")
    a("s_cbranch_scc1 L_end")
    a("v_lshrrev_b32 v130, 6, v0")
    a("v_and_b32 v129, 63, v0")
    a("v_readfirstlane_b32 s18, v130")
    a("s_and_b32 s3, s2, 7")
    a("s_lshr_b32 s49, s2, 3")
    a("s_lshl_b32 s46, s3, 1")
    a("s_add_u32 s46, s46, s49")
    a("s_sub_u32 s46, s46, 30")
    a("s_mul_i32 s47, s3, 10")
    a("s_cmp_lt_u32 s49, 30")
    a("s_cselect_b32 s46, s49, s46")
    a("s_cselect_b32 s47, s47, 80")
    a("s_cselect_b32 s48, 0, s46")
    a("s_cmp_ge_u32 s48, 12")
    a("s_cbranch_scc1 L_end")
    a("s_mul_i32 s48, s46, 43")
    a("s_lshr_b32 s48, s48, 7")
    a("s_add_u32 s19, s47, s48")
    a("s_mul_i32 s48, s48, 3")
    a("s_sub_u32 s20, s46, s48")
    a("s_cmp_ge_u32 s19, 42")
    a("s_cselect_b32 s21, 1, 0")
    a("s_cselect_b32 s48, 42, 0")
    a("s_cselect_b32 s23, 3, 0")
    a("s_cselect_b32 s44, 4608000, 0")
    a("s_sub_u32 s22, s19, s48")
    a("s_add_u32 s23, s23, s20")
    a("s_mul_i32 s45, s22, 110592")
    a("s_add_u32 s44, s44, s45")
    a("s_sub_u32 s26, 4607712, s45")
    a("s_mov_b32 s27, 0x20000")
    a("v_lshrrev_b32 v136, 4, v129")
    a("v_lshrrev_b32 v132, 3, v129")
    a("v_and_b32 v133, 2, v132")
    a("v_and_b32 v134, 7, v129")
    a("v_xor_b32 v133, v133, v134")
    a("v_lshlrev_b32 v133, 4, v133")
    a("v_mul_u32_u24 v131, 1152, v132")
    a("v_add_u32 v131, v131, v133")
    a("s_mul_i32 s43, s20, 96")
    a("s_cmp_ge_u32 s18, 7")
    a("s_cselect_b32 s48, 0, s18")
    a("s_cmp_ge_u32 s48, 4")
    a("s_cbranch_scc1 L_wpro")
    a("s_add_u32 s46, s20, 1")
    a("s_cmp_eq_u32 s46, 3")
    a("s_cselect_b32 s46, 0, s46")
    a("s_add_u32 s47, s20, s46")
    a("s_sub_u32 s47, 3, s47")
    a("s_lshl_b32 s92, s20, 10"); a("s_lshl_b32 s93, s46, 10"); a("s_lshl_b32 s94, s47, 10")
    a("s_mul_i32 s95, s20, 9216"); a("s_mul_i32 s96, s46, 9216"); a("s_mul_i32 s97, s47, 9216")
    a("s_cmp_eq_u32 s18, 7")
    a("s_cbranch_scc1 L_xpro")

    def x_srd():
        a("s_add_u32 s24, s4, s44")
        a("s_addc_u32 s25, s5, 0")
    def pub_srd():
        a("s_lshl_b32 s44, s23, 14")
        a("s_add_u32 s36, s16, s44")
        a("s_addc_u32 s37, s17, 0")
        a("s_mov_b32 s38, 16128")
        a("s_mov_b32 s39, 0x20000")

    a.c("consumer prologue: wave w loads piece m = w of the first arrays")
    a("s_mul_i32 s46, s18, 3072")
    a("s_mul_i32 s47, s18, 27648")
    for d in range(3):
        a(f"s_add_u32 s{92+d}, s{92+d}, s46")
        a(f"s_add_u32 s{95+d}, s{95+d}, s47")
    for k, lam in enumerate(o.b1[:4]):
        a(f"s_cmp_eq_u32 s18, {3-k}")
        a(f"s_cselect_b32 s46, {lam*ARR + 12*1024}, s46")
        a(f"s_cselect_b32 s47, {12*9216 + lam*128}, s47")
    a("s_waitcnt lgkmcnt(0)")
    if T: a("s_memtime s[80:81]")
    x_srd()
    def cload(lam, d):
        a(f"s_add_u32 m0, s{92+d}, {lam*ARR}")
        a(f"s_add_u32 s50, s{95+d}, {lam*128}")
        a(f"buffer_load_dwordx4 v131, s[24:27], s50 offen{xnt if d == 0 else ''} lds")
    for lam in o.b1[:2]: cload(lam, 0)
    a(f"s_cmp_lt_u32 s18, {4 - len(o.b1[:4])}")
    a("s_cbranch_scc1 L_c_nohalf")
    a("s_mov_b32 m0, s46")
    a("s_mov_b32 exec_hi, 0")
    a(f"buffer_load_dwordx4 v131, s[24:27], s47 offen{xnt} lds")
    a("s_mov_b32 exec_hi, -1")
    a.label("L_c_nohalf")
    for lam in o.b1[2:]: cload(lam, 0)
    if T: a("s_memtime s[82:83]")
    for d in (1, 2):
        for lam in LAM_ORDER[:2]: cload(lam, d)
    a("s_branch L_cons")

    a.label("L_wpro")
    qw = Q(a, "vmcnt", 63)
    a("v_subrev_u32 v140, 256, v0")
    a("v_mul_u32_u24 v141, 171, v140")
    a("v_lshrrev_b32 v141, 10, v141")
    a("v_mul_u32_u24 v142, 6, v141")
    a("v_sub_u32 v142, v140, v142")
    a("v_and_b32 v143, 0x13, v141")
    a("v_and_b32 v144, 4, v141")
    a("v_lshl_add_u32 v143, v144, 1, v143")
    a("v_and_b32 v144, 8, v141")
    a("v_lshrrev_b32 v144, 1, v144")
    a("v_add_u32 v143, v143, v144")
    a("v_mul_u32_u24 v143, 288, v143")
    a("v_lshl_add_u32 v139, v142, 4, v143")
    a("s_sub_u32 s49, s18, 4")
    a("s_lshl_b32 s51, s49, 10")
    a("s_sub_u32 s30, 622080, s43")
    a("s_mov_b32 s31, 0x20000")
    a("s_waitcnt lgkmcnt(0)")
    a("s_add_u32 s28, s6, s43")
    a("s_addc_u32 s29, s7, 0")
    probe("K")
    def wload(q, n):
        c, p = STEPS[n]
        a(f"s_add_u32 m0, s51, {WB + (n % R)*3072}")
        a(f"s_mov_b32 s50, {(288*p + 32*c)*288}")
        a(f"buffer_load_dwordx4 v139, s[28:31], s50 offen lds")
        q.issue(("W", n))
    nxt = 0
    while nxt < o.wpreq: wload(qw, nxt); nxt += 1
    a("s_mov_b32 s92, s51")
    a("s_mul_i32 s95, s49, 9216")
    x_srd()
    a("v_and_b32 v135, 7, v129")
    a("v_lshlrev_b32 v135, 1, v135")
    a("v_lshrrev_b32 v134, 5, v129")
    a("v_add_u32 v135, v135, v134")
    a("s_lshl_b32 s44, s49, 4")
    a("v_add_u32 v135, s44, v135")
    a("v_lshlrev_b32 v134, 1, v135")
    a("v_add_u32 v134, s43, v134")
    a("s_mov_b32 s52, s8"); a("s_mov_b32 s53, s9"); a("s_mov_b32 s54, 288"); a("s_mov_b32 s55, 0x20000")
    a("s_mov_b32 s56, s10"); a("s_mov_b32 s57, s11"); a("s_mov_b32 s58, 288"); a("s_mov_b32 s59, 0x20000")
    pub_srd()
    while nxt < o.winit: wload(qw, nxt); nxt += 1
    if T: a("s_memtime s[90:91]")
    a("s_cmp_eq_u32 s20, 1")
    a("s_cbranch_scc1 L_wmain1")
    a("s_cmp_eq_u32 s20, 2")
    a("s_cbranch_scc1 L_wmain2")
    a("s_branch L_wmain0")

    a.label("L_xpro")
    qx = Q(a, "vmcnt", 63)
    a("s_mov_b32 s30, 622080")
    a("s_mov_b32 s31, 0x20000")
    a("v_lshlrev_b32 v100, 8, v129")
    a("v_add_u32 v100, s2, v100")
    a("v_lshlrev_b32 v100, 7, v100")
    if o.wp0:
        a("v_lshl_add_u32 v141, v129, 5, s49")
        a("v_mul_u32_u24 v142, 911, v141")
        a("v_lshrrev_b32 v142, 16, v142")
        a("v_mul_u32_u24 v143, 73728, v142")
        a("v_lshl_add_u32 v143, v141, 7, v143")
        a(f"v_add_u32 v101, {CLASS_ORDER[0]*9216}, v143")
    def xround(q, lam, r, cold):
        a(f"s_add_u32 m0, s92, {lam*ARR + r*4096}")
        a(f"s_add_u32 s50, s95, {lam*128 + r*36864}")
        a(f"buffer_load_dwordx4 v131, s[24:27], s50 offen{xnt if cold else ''} lds")
        q.issue(lam)
    def xrot(q, lam, d, m):
        a(f"s_add_u32 m0, s{80+d}, {lam*ARR + m*3072}")
        a(f"s_add_u32 s50, s{83+d}, {lam*128 + m*27648}")
        a(f"buffer_load_dwordx4 v131, s[24:27], s50 offen lds")
        q.issue(lam)
    def xhalf(q, lam, cold=True):
        a(f"s_mov_b32 m0, {lam*ARR + 12*1024}")
        a(f"s_mov_b32 s50, {12*9216 + lam*128}")
        a("s_mov_b32 exec_hi, 0")
        a(f"buffer_load_dwordx4 v131, s[24:27], s50 offen{xnt if cold else ''} lds")
        a("s_mov_b32 exec_hi, -1")
        q.issue(lam)
    a("s_waitcnt lgkmcnt(0)")
    a("s_mov_b32 s28, s6")
    a("s_mov_b32 s29, s7")
    if o.wp0:
        a("s_mov_b64 exec, 0x3ffff")
        a("buffer_load_dword v146, v101, s[28:31], 0 offen"); qx.issue("wp")
    a("s_mov_b64 exec, 0x7ffff")
    a("buffer_load_dword v146, v100, s[28:31], 0 offen"); qx.issue("wm")
    a("s_mov_b64 exec, -1")
    x_srd()
    for d in range(3):
        a(f"s_mov_b32 s{80+d}, s{92+d}"); a(f"s_mov_b32 s{83+d}, s{95+d}")
    a("s_movk_i32 s92, 3072")
    a("s_movk_i32 s95, 27648")
    a(f"v_mov_b32 v140, {FLAG}")
    for i in range(4): a(f"v_mov_b32 v{40+i}, 0")
    a("ds_write_b128 v140, v[40:43]")
    a("s_waitcnt lgkmcnt(0)")
    if T: a("s_memtime s[64:65]")
    a("s_cmp_eq_u32 s20, 1")
    a("s_cbranch_scc1 L_xmain1")
    a("s_cmp_eq_u32 s20, 2")
    a("s_cbranch_scc1 L_xmain2")
    a("s_branch L_xmain0")

    def schedule(sl):
        wops = {}; xops = {}
        for lam in LAM_ORDER[2:]:
            if lam in o.b1:
                k = 0
                for d in (1, 2):
                    for m in range(4):
                        xops.setdefault(o.oth[lam] + k // o.rotrate, []).append(("rot", lam, d, m)); k += 1
                continue
            for r in range(3):
                owner, at = o.own[lam][r] if isinstance(o.own[lam], list) else o.own[lam]
                cold = owner == sl
                st = at + r // o.brate if cold else o.oth[lam] + r // o.orate
                wops.setdefault(st, []).append((lam, r, cold))
                xops.setdefault(st, []).append(("x", lam, r, cold))
            xops.setdefault(st, []).append(("h", lam, cold))
        return wops, xops

    a.label("L_cons")
    pub_srd()
    a("s_cmp_lg_u32 s18, 0")
    a("s_cbranch_scc1 L_c_noclr")
    a.c("wave 0 clears this workgroup's hand-off words")
    a("s_mov_b64 exec, 0xffffff")
    a("v_lshlrev_b32 v142, 4, v129")
    a("s_mul_i32 s50, s22, 384")
    for i in range(4): a(f"v_mov_b32 v{40+i}, -1")
    a("buffer_store_dwordx4 v[40:43], v142, s[36:39], s50 offen sc1")
    a("s_mov_b64 exec, -1")
    a.label("L_c_noclr")
    a("v_and_b32 v139, 15, v129")
    a("v_mul_u32_u24 v140, 3, v139")
    a("v_mul_u32_u24 v141, 48, v130")
    a("v_add_u32 v140, v140, v141")
    a("v_and_b32 v141, 1, v140")
    a("v_lshrrev_b32 v142, 1, v140")
    a("v_cmp_eq_u32 vcc, 1, v141")
    for k in range(5):
        if k: a("v_add_u32 v142, 1, v142")
        a("v_and_b32 v143, 2, v142")
        a("v_xor_b32 v143, v143, v136")
        a("v_lshlrev_b32 v143, 4, v143")
        a(f"v_lshl_add_u32 v{100+k}, v142, 7, v143")
    a(f"v_mul_u32_u24 v105, {4*ARR+64}, v141")
    a(f"v_sub_u32 v106, {4*ARR+64}, v105")
    a(f"v_mul_u32_u24 v107, {5*ARR-64}, v141")
    a(f"v_sub_u32 v108, {5*ARR}, v107")
    a("v_add_u32 v107, 64, v107")
    for s in range(8):
        if s % 2 == 0:
            a(f"v_add_u32 v{112+s}, v{100+s//2}, v105")
            a(f"v_add_u32 v{120+s}, v{100+s//2}, v107")
        else:
            a(f"v_cndmask_b32 v143, v{100+s//2}, v{101+s//2}, vcc")
            a(f"v_add_u32 v{112+s}, v143, v106")
            a(f"v_add_u32 v{120+s}, v143, v108")
    a("v_lshrrev_b32 v141, 1, v136")
    a("v_lshlrev_b32 v141, 4, v141")
    a("v_and_b32 v142, 1, v136")
    a("v_lshl_add_u32 v141, v142, 2, v141")
    a("v_bfe_u32 v142, v129, 2, 2")
    a("v_add_u32 v141, v141, v142")
    a("v_mul_u32_u24 v141, 96, v141")
    a("v_and_b32 v142, 3, v129")
    a("v_lshl_add_u32 v141, v142, 3, v141")
    a(f"v_add_u32 v128, {WB}, v141")
    a("v_mul_u32_u24 v141, 384, v130")
    a("v_and_b32 v143, 12, v139")
    a("v_lshl_add_u32 v142, v136, 5, v143")
    a("v_add_u32 v132, v141, v142")
    a(f"v_add_u32 v132, {PART}, v132")
    a("v_lshlrev_b32 v133, 4, v136")
    a(f"v_add_u32 v133, {AB}, v133")
    a(f"v_mov_b32 v134, {FLAG}")
    a("v_mul_u32_u24 v135, 288, v140")
    a("v_lshl_add_u32 v135, v136, 3, v135")
    C0 = -2.0 * 0.7978845608028654 * 1.4426950408889634
    C1 = C0 * 0.044715
    a(f"v_mov_b32 v144, {f2u(C0):#x}"); a(f"v_mov_b32 v145, {f2u(C0):#x}")
    a(f"v_mov_b32 v146, {f2u(C1):#x}"); a(f"v_mov_b32 v147, {f2u(C1):#x}")
    a("v_mov_b32 v148, 1.0"); a("v_mov_b32 v149, 1.0")
    a(f"s_mul_i32 s44, s21, {L}")
    a("s_mul_i32 s45, s22, 192")
    a("s_add_u32 s44, s44, s45")
    a("s_mul_i32 s44, s44, 288")
    a("s_add_u32 s44, s44, s43")
    a("s_add_u32 s32, s12, s44")
    a("s_addc_u32 s33, s13, 0")
    a(f"s_sub_u32 s34, {L}, s45")
    a("s_mul_i32 s34, s34, 288")
    a("s_sub_u32 s34, s34, s43")
    a("s_mov_b32 s35, 0x20000")
    for t in range(3):
        a(f"s_movk_i32 s46, {L - 41*192 - t}")
        a(f"v_cmp_le_u32 s[{70+2*t}:{71+2*t}], s46, v140")
    a("s_lshl_b32 s44, s23, 5")
    a("v_mov_b32 v141, s44")
    a("v_mov_b32 v142, 1")
    a("s_waitcnt vmcnt(1)")
    a("s_cmp_eq_u32 s18, 0")
    a("s_cbranch_scc1 L_c_p")
    a("s_waitcnt vmcnt(0)")
    a.label("L_c_p")
    if T: a("s_memtime s[84:85]")
    a("s_barrier")
    if T: a("s_memtime s[86:87]"); a("s_waitcnt lgkmcnt(0)")

    lq = Q(a, "lgkmcnt", 15)
    nbar = [0]
    def bar(): a("s_barrier"); nbar[0] += 1
    cl = CLASS_ORDER[-1]
    def freg(c, s): return (160 if (o.kc == 2 and c == cl) else 36) + 4*s
    def wread(n, nt, d):
        return [(f"ds_read_b64_tr_b16 v[{d+2*kh}:{d+2*kh+1}], v128 offset:{(n % R)*3072 + kh*768 + 32*nt}", ("W", n, nt)) for kh in range(2)]
    def xread(c, s):
        d = freg(c, s)
        return [(f"ds_read_b128 v[{d}:{d+3}], v{112 + 8*(c & 1) + (s & 7)} offset:{(c >> 1)*ARR + (512 if s >= 8 else 0)}", ("F", c, s))]
    def ureg(u): return 76 + 4*((u + 3*(NM % 3)) % 9)
    def uread(u): return wread(TS[u % NT_], u // NT_, ureg(u)) if u < 3*NT_ else []
    c0 = STEPS[NM][0]
    tailF = [(c0, s) for s in range(5, 10 if c0 <= 4 else 9)] + ([(cl, s) for s in range(10)] if o.kc == 2 else [])
    def reads_for(n):
        if n == NM: return xread(c0, 0) + xread(c0, 1) + xread(c0, 2) + uread(0) + uread(1) + uread(2)
        if n == NM + 1: return xread(c0, 3) + xread(c0, 4) + sum([uread(u) for u in range(3, D)], [])
        c, p = STEPS[n]
        r = []
        for s in ([0, 1, 2] if p == 0 else [p + 2]): r += xread(c, s)
        for nt in range(3): r += wread(n, nt, 76 + 12*(n % 3) + 4*nt)
        return r
    def put(rd):
        t, tag = rd.pop(0); a(t); lq.issue(tag)
        if tag[0] == "W": WNEED.setdefault(tag[1], nbar[0] - 1)
        else:
            for lam in lam_of(tag[1]): assert NEED[lam] <= max(nbar[0] - 1, -2 if nbar[0] == 0 else 0) or nbar[0] == 0
    rd = reads_for(0)
    while rd: put(rd)
    lq.wait(lambda t: t[0] == "F" or t == ("W", 0, 0))
    rd = reads_for(1)
    while rd: put(rd)
    for n in range(NM):
        c, p = STEPS[n]
        a.c(f"step {n}: class {c} p {p}")
        lq.wait(lambda t: (t[0] == "W" and t[1] == n) or (t[0] == "F" and t[1] == c and t[2] <= p + 2))
        bar()
        rd = reads_for(n + 2)
        bb = 76 + 12 * (n % 3)
        for t in range(3):
            for k in range(3):
                nt = k if t % 2 == 0 else 2 - k
                acc = 12*t + 4*nt
                f = freg(c, p + t)
                cin = "0" if n == 0 else f"v[{acc}:{acc+3}]"
                a.mfma(f"v_mfma_f32_16x16x32_bf16 v[{acc}:{acc+3}], v[{bb+4*nt}:{bb+4*nt+3}], v[{f}:{f+3}], {cin}", range(acc, acc+4))
                if rd: put(rd)
        assert not rd
        if n == o.atomstep:
            a("s_cmp_lg_u32 s18, 0")
            a("s_cbranch_scc1 L_c_noatom")
            a("s_waitcnt vmcnt(0)")
            a("s_mov_b64 exec, 1")
            a("global_atomic_add v141, v142, s[14:15]")
            a("s_mov_b64 exec, -1")
            a.label("L_c_noatom")
    a.label("L_epi")
    S1, S2, PQ, RR = 120, 124, 152, 156
    def pr(x): return f"v[{x}:{x+1}]"
    def stats_ops(nt, packed):
        ops = []
        A = [12*t + 4*nt for t in range(3)]
        def V(t, rd=(), wr=(), dpp=()): ops.append(lambda: a.valu(t, rd, wr, dpp))
        def mask():
            for k in range(3):
                for r in range(A[k], A[k]+4): a.pad(a.wm[r], 6)
            a("s_cmp_eq_u32 s22, 41")
            a(f"s_cbranch_scc1 L_c_mask{nt}")
            a.label(f"L_c_masked{nt}")
        ops.append(mask)
        if packed:
            for h in (0, 2): V(f"v_pk_mul_f32 {pr(S2+h)}, {pr(A[0]+h)}, {pr(A[0]+h)}", [A[0]+h, A[0]+h+1], [S2+h, S2+h+1])
            for h in (0, 2): V(f"v_pk_add_f32 {pr(S1+h)}, {pr(A[0]+h)}, {pr(A[1]+h)}", [A[1]+h, A[1]+h+1], [S1+h, S1+h+1])
            for h in (0, 2): V(f"v_pk_fma_f32 {pr(S2+h)}, {pr(A[1]+h)}, {pr(A[1]+h)}, {pr(S2+h)}", [], [S2+h, S2+h+1])
            for h in (0, 2): V(f"v_pk_add_f32 {pr(S1+h)}, {pr(S1+h)}, {pr(A[2]+h)}", [A[2]+h, A[2]+h+1], [S1+h, S1+h+1])
            for h in (0, 2): V(f"v_pk_fma_f32 {pr(S2+h)}, {pr(A[2]+h)}, {pr(A[2]+h)}, {pr(S2+h)}", [], [S2+h, S2+h+1])
        else:
            for h in range(4): V(f"v_mul_f32 v{S2+h}, v{A[0]+h}, v{A[0]+h}", [A[0]+h], [S2+h])
            for h in range(4): V(f"v_add_f32 v{S1+h}, v{A[0]+h}, v{A[1]+h}", [A[1]+h], [S1+h])
            for h in range(4): V(f"v_fmac_f32 v{S2+h}, v{A[1]+h}, v{A[1]+h}", [], [S2+h])
            for h in range(4): V(f"v_add_f32 v{S1+h}, v{S1+h}, v{A[2]+h}", [A[2]+h], [S1+h])
            for h in range(4): V(f"v_fmac_f32 v{S2+h}, v{A[2]+h}, v{A[2]+h}", [], [S2+h])
        for k, S in enumerate((S1, S2)):
            for m in range(2):
                d = PQ + 2*k + m
                V(f"v_add_f32_dpp v{d}, v{S+2*m}, v{S+2*m} row_shl:8 row_mask:0xf bank_mask:0x3", [], [d], [S+2*m])
                V(f"v_add_f32_dpp v{d}, v{S+2*m+1}, v{S+2*m+1} row_shr:8 row_mask:0xf bank_mask:0xc", [], [d], [S+2*m+1])
        for m in range(2): V(f"v_add_f32_dpp v{RR+m}, v{PQ+m}, v{PQ+m} row_shl:4 row_mask:0xf bank_mask:0x5", [], [RR+m], [PQ+m])
        for m in range(2): V(f"v_add_f32_dpp v{RR+m}, v{PQ+2+m}, v{PQ+2+m} row_shr:4 row_mask:0xf bank_mask:0xa", [], [RR+m], [PQ+2+m])
        for qp in ("[2,3,0,1]", "[1,0,3,2]"):
            for m in range(2): V(f"v_add_f32_dpp v{RR+m}, v{RR+m}, v{RR+m} quad_perm:{qp} row_mask:0xf bank_mask:0xf", [], [RR+m], [RR+m])
        def wr():
            a(f"ds_write2_b32 v132, v{RR}, v{RR+1} offset0:{32*nt} offset1:{32*nt+4}"); lq.issue(("S", nt))
        ops.append(wr)
        return ops
    pend = []; bar_due = None; ne1 = 0
    for u in range(3*NT_):
        nt, n = u // NT_, TS[u % NT_]
        c, p = STEPS[n]
        a.c(f"column tile {nt}, step {n}")
        n0 = a.n
        lq.wait(lambda t: t == ("W", n, nt) or (t[0] == "F" and t[1] == c and t[2] <= p + 2))
        if u in o.tbars: bar()
        if bar_due is not None and bar_due[1] <= u:
            lq.wait(lambda t: t == ("S", bar_due[0])); a("s_barrier"); bar_due = None; ne1 += 1
        head = a.n - n0
        rd = []
        for _ in range(2 if (o.kc == 2 and u < 4) else 1):
            if tailF: rd += xread(*tailF.pop(0))
        rd += uread(u + D)
        if u % NT_ == 1 and nt > 0: pend = pend + stats_ops(nt - 1, False)
        w = ureg(u)
        for k in range(3):
            t = k if u % 2 == 0 else 2 - k
            acc = 12*t + 4*nt
            f = freg(c, p + t)
            a.mfma(f"v_mfma_f32_16x16x32_bf16 v[{acc}:{acc+3}], v[{w}:{w+3}], v[{f}:{f+3}], v[{acc}:{acc+3}]", range(acc, acc+4))
            n1 = a.n
            if rd: put(rd)
            if len(rd) > 2 - k: put(rd)
            room = o.srate - (1 if k == 2 else 0)
            while pend and a.n - n1 < room:
                pend.pop(0)()
                if lq.q[-1][0] == "S" and lq.q[-1][1] == ne1 and bar_due is None: bar_due = (ne1, u + 2)
        assert not rd
    while pend: pend.pop(0)()
    while ne1 < 2:
        assert ("S", ne1) in lq.q
        lq.wait(lambda t: t == ("S", ne1)); a("s_barrier"); ne1 += 1
    for op in stats_ops(2, True): op()
    lq.wait(lambda t: t == ("S", 2))
    a("s_barrier")
    if o.pubfirst: a("s_barrier")
    NB = nbar[0]
    Y, U, O = 72, 84, 96
    for nt in range(3):
        a.label(f"L_c_wait{nt}")
        a(f"ds_read_b32 v48, v134 offset:{4*nt}")
        a(f"ds_read_b128 v[40:43], v133 offset:{64*nt}")
        a(f"ds_read_b128 v[44:47], v133 offset:{192 + 64*nt}")
        a("s_waitcnt lgkmcnt(0)")
        a("v_cmp_eq_u32 vcc, 0, v48")
        H = [12*(i // 2) + 4*nt + 2*(i % 2) for i in range(6)]
        a(f"v_pk_fma_f32 {pr(Y)}, {pr(H[0])}, v[40:41], v[44:45]")
        a(f"s_cbranch_vccnz L_c_wait{nt}")
        if T and nt == 2: a("s_memtime s[88:89]")
        for i in range(1, 6): a(f"v_pk_fma_f32 {pr(Y+2*i)}, {pr(H[i])}, {pr(40+2*(i%2))}, {pr(44+2*(i%2))}")
        for i in range(6): a(f"v_pk_mul_f32 {pr(U+2*i)}, {pr(Y+2*i)}, {pr(Y+2*i)}")
        for i in range(6): a(f"v_pk_fma_f32 {pr(U+2*i)}, {pr(U+2*i)}, v[146:147], v[144:145]")
        for i in range(6): a(f"v_pk_mul_f32 {pr(U+2*i)}, {pr(U+2*i)}, {pr(Y+2*i)}")
        for i in range(12): a(f"v_exp_f32 v{U+i}, v{U+i}")
        for i in range(6): a(f"v_pk_add_f32 {pr(U+2*i)}, {pr(U+2*i)}, v[148:149]")
        Ot = O + 6*nt
        for t in range(3):
            for i in range(4*t, 4*t+4): a(f"v_rcp_f32 v{U+i}, v{U+i}")
            if t > 0: a(f"buffer_store_dwordx2 v[{Ot+2*t-2}:{Ot+2*t-1}], v135, s[32:35], 0 offen offset:{288*(t-1) + 32*nt}{o.stflag}")
            else: a("s_nop 0")
            for i in (2*t, 2*t+1): a(f"v_pk_mul_f32 {pr(Y+2*i)}, {pr(Y+2*i)}, {pr(U+2*i)}")
            for i in (2*t, 2*t+1): a(f"v_cvt_pk_bf16_f32 v{Ot+i}, v{Y+2*i}, v{Y+2*i+1}")
        a(f"buffer_store_dwordx2 v[{Ot+4}:{Ot+5}], v135, s[32:35], 0 offen offset:{576 + 32*nt}{o.stflag}")
    if T:
        a("s_memtime s[64:65]")
        a("s_waitcnt vmcnt(0)")
        a("s_memtime s[66:67]")
        a("s_memrealtime s[68:69]")
        a("s_cmp_lg_u32 s18, 0")
        a("s_cbranch_scc1 L_end")
        a("s_waitcnt lgkmcnt(0)")
        a("s_lshl_b32 s44, s2, 7")
        a("s_add_u32 s44, s44, 0x100040")
        a("v_mov_b32 v40, s60"); a("v_mov_b32 v41, s62"); a("v_mov_b32 v42, s64"); a("v_mov_b32 v43, s66")
        a("v_mov_b32 v44, s68"); a("v_mov_b32 v45, s88")
        a("v_mov_b32 v48, s44")
        a("s_mov_b64 exec, 1")
        a("global_store_dwordx4 v48, v[40:43], s[16:17]")
        a("global_store_dwordx2 v48, v[44:45], s[16:17] offset:16")
        a("v_mov_b32 v52, s80"); a("v_mov_b32 v53, s82"); a("v_mov_b32 v54, s84"); a("v_mov_b32 v55, s86")
        a("global_store_dwordx4 v48, v[52:55], s[16:17] offset:48")
    if o.light:
        a("s_cmp_lg_u32 s18, 0")
        a("s_cbranch_scc1 L_end")
        a("s_waitcnt vmcnt(0)")
        a("s_memrealtime s[68:69]")
        a("s_lshl_b32 s44, s2, 7")
        a("s_add_u32 s44, s44, 0x100040")
        a("v_mov_b32 v48, s44")
        a("s_waitcnt lgkmcnt(0)")
        a("v_mov_b32 v40, s62"); a("v_mov_b32 v41, s68")
        a("s_mov_b64 exec, 1")
        a("global_store_dwordx2 v48, v[40:41], s[16:17]")
    if o.probe == "done":
        a("s_waitcnt vmcnt(0)"); probe("done"); probe_end("L_probe_c", 4)
    a("s_endpgm")
    for nt in range(3):
        a.label(f"L_c_mask{nt}")
        for t in range(3):
            a(f"s_mov_b64 exec, s[{70+2*t}:{71+2*t}]")
            for h in (0, 2): a(f"v_mov_b64 {pr(12*t + 4*nt + h)}, 0")
        a("s_mov_b64 exec, -1")
        a(f"s_branch L_c_masked{nt}")

    a.label("L_wepi")
    a("v_and_b32 v140, 7, v129")
    a("v_lshlrev_b32 v140, 4, v140")
    a("s_lshl_b32 s44, s49, 7")
    a("v_add_u32 v140, s44, v140")
    a(f"v_add_u32 v141, {PART}, v140")
    a("v_lshrrev_b32 v142, 3, v129")
    a("v_mul_u32_u24 v142, 384, v142")
    a("v_add_u32 v142, v142, v140")
    a("s_mul_i32 s50, s22, 384")
    a("v_lshlrev_b32 v143, 2, v135")
    a(f"v_add_u32 v143, {AB}, v143")
    a("s_lshl_b32 s44, s49, 2")
    a(f"s_add_u32 s44, s44, {FLAG}")
    a("v_mov_b32 v144, s44")
    a("v_mov_b32 v145, 1")
    a(f"s_mov_b32 s44, {f2u(1.0/L):#x}")
    a("s_mov_b32 s45, 0")
    a("s_movk_i32 s46, 3072"); a("s_movk_i32 s47, 9216"); a("s_movk_i32 s48, 15360")
    a("s_waitcnt vmcnt(0)")
    a("v_lshlrev_b32 v137, 16, v137")
    a("v_lshlrev_b32 v138, 16, v138")
    a("s_mov_b64 exec, 0xff")
    a("s_mov_b32 s42, 0")
    a.label("L_w_e1")
    a("s_barrier")
    if o.trace:
        a("s_memtime s[88:89]"); a("s_waitcnt lgkmcnt(0)"); a("s_sub_u32 s88, s88, s60")
        a("s_add_u32 m0, s42, 61"); a("v_writelane_b32 v150, s88, m0")
    a("s_cmp_lg_u32 s42, s49")
    a("s_cbranch_scc1 L_w_nopub")
    if T: a("s_memtime s[86:87]")
    probe("E1")
    for w in range(4): a(f"ds_read_b128 v[{40+4*w}:{43+4*w}], v141 offset:{384*w}")
    a("s_waitcnt lgkmcnt(2)" if not T else "s_waitcnt lgkmcnt(0)")
    a("v_pk_add_f32 v[40:41], v[40:41], v[44:45]")
    a("v_pk_add_f32 v[42:43], v[42:43], v[46:47]")
    a("s_waitcnt lgkmcnt(0)")
    a("v_pk_add_f32 v[48:49], v[48:49], v[52:53]")
    a("v_pk_add_f32 v[50:51], v[50:51], v[54:55]")
    a("v_pk_add_f32 v[40:41], v[40:41], v[48:49]")
    a("v_pk_add_f32 v[42:43], v[42:43], v[50:51]")
    for i in range(4): a(f"v_min_u32 v{40+i}, -2, v{40+i}")
    a("buffer_store_dwordx4 v[40:43], v140, s[36:39], s50 offen sc1")
    a.label("L_w_nopub")
    a("s_add_u32 s42, s42, 1")
    a("s_cmp_lt_u32 s42, 3")
    a("s_cbranch_scc1 L_w_e1")
    a("s_mov_b64 exec, -1")
    if o.pubfirst:
        a("s_barrier")
    a.label("L_poll")
    so = ["0", "s46", "s46", "s47", "s47", "s48"]; io = [0, 0, 3072, 0, 3072, 0]
    for k in range(6): a(f"buffer_load_dwordx4 v[{44+4*k}:{47+4*k}], v142, s[36:39], {so[k]} offen offset:{io[k]} sc1")
    a("s_waitcnt vmcnt(4)")
    a("v_pk_add_f32 v[68:69], v[44:45], v[48:49]")
    a("v_pk_add_f32 v[70:71], v[46:47], v[50:51]")
    a("s_waitcnt vmcnt(2)")
    a("v_pk_add_f32 v[72:73], v[52:53], v[56:57]")
    a("v_pk_add_f32 v[74:75], v[54:55], v[58:59]")
    a("v_pk_add_f32 v[68:69], v[68:69], v[72:73]")
    a("v_pk_add_f32 v[70:71], v[70:71], v[74:75]")
    a("s_waitcnt vmcnt(0)")
    a("v_pk_add_f32 v[72:73], v[60:61], v[64:65]")
    a("v_pk_add_f32 v[74:75], v[62:63], v[66:67]")
    a("v_pk_add_f32 v[68:69], v[68:69], v[72:73]")
    a("v_pk_add_f32 v[70:71], v[70:71], v[74:75]")
    a("v_cmp_u_f32 vcc, v68, v69")
    a("v_cmp_u_f32 s[90:91], v70, v71")
    a("s_nop 0")
    a("s_or_b64 vcc, vcc, s[90:91]")
    a("s_cbranch_vccnz L_recheck")
    a.label("L_polled")
    probe("gath")
    if T: a("s_memtime s[88:89]")
    a("v_permlane32_swap_b32 v68, v70")
    a("v_permlane32_swap_b32 v69, v71")
    a("v_add_f32 v68, v68, v70")
    a("v_add_f32 v69, v69, v71")
    a("s_nop 1")
    a("v_permlane16_swap_b32 v68, v69")
    a("v_add_f32 v68, v68, v69")
    a("s_nop 1")
    a("v_add_f32_dpp v68, v68, v68 row_ror:8 row_mask:0xf bank_mask:0xf")
    a("v_mul_f32 v68, s44, v68")
    a("v_mov_b32 v69, v68")
    a("s_nop 1")
    a("v_permlane16_swap_b32 v68, v69")
    a("v_fma_f32 v69, -v68, v68, v69")
    a("v_max_f32 v69, 0, v69")
    a(f"v_add_f32 v69, {f2u(1e-5):#x}, v69")
    a("v_rsq_f32 v69, v69")
    a("s_mov_b32 exec_lo, 0xff")
    a("s_mov_b32 exec_hi, 0xff")
    a("v_mul_f32 v69, v137, v69")
    a("v_fma_f32 v68, -v68, v69, v138")
    a("ds_write2_b32 v143, v69, v68 offset0:0 offset1:48")
    a("ds_write_b32 v144, v145")
    if T:
        a("s_cmp_lg_u32 s18, 6")
        a("s_cbranch_scc1 L_end")
        a("s_waitcnt lgkmcnt(0)")
        a("s_memtime s[90:91]")
        a("s_waitcnt lgkmcnt(0)")
        a("s_lshl_b32 s44, s2, 7")
        a("s_add_u32 s44, s44, 0x100000")
        regs = [60, 64] + list(range(66, 86, 2)) + [86, 88, 90, 62]
        for i, r in enumerate(regs): a(f"v_mov_b32 v{40+i}, s{r}")
        a("v_mov_b32 v60, s44")
        a("v_mov_b32 v62, s98"); a("v_mov_b32 v63, s100")
        a("s_mov_b64 exec, 1")
        for k in range(4): a(f"global_store_dwordx4 v60, v[{40+4*k}:{43+4*k}], s[16:17] offset:{16*k}")
        a("global_store_dwordx2 v60, v[62:63], s[16:17] offset:96")
        a("global_store_dword v60, v149, s[16:17] offset:108")
        if o.trace:
            a("s_mov_b64 exec, -1")
            a("s_lshl_b32 s44, s2, 9"); a("s_add_u32 s44, s44, 0x200000")
            a("v_lshlrev_b32 v60, 2, v129"); a("v_add_u32 v60, s44, v60")
            a("global_store_dword v60, v150, s[16:17]")
            a("global_store_dword v60, v151, s[16:17] offset:256")
    if o.probe and o.probe != "done": probe_end("L_probe_w", 0 if o.probe == "fixed" else 4)
    a("s_endpgm")
    a.label("L_recheck")
    a.c("a NaN sum: a word not yet written, or a genuine NaN")
    for k in range(8): a(f"v_max3_u32 v{72+k}, v{44+3*k}, v{45+3*k}, v{46+3*k}")
    a("v_max3_u32 v72, v72, v73, v74"); a("v_max3_u32 v75, v75, v76, v77")
    a("v_max3_u32 v72, v72, v78, v79"); a("v_max_u32 v72, v72, v75")
    a("v_cmp_eq_u32 vcc, -1, v72")
    a("s_add_u32 s45, s45, 1")
    a("s_cmp_ge_u32 s45, 0x100000")
    a("s_cbranch_scc1 L_polled")
    a("s_cbranch_vccnz L_poll")
    a("s_branch L_polled")
    a.label("L_epi_end")

    XT = NS - 1 - R
    assert NB - 1 >= XT
    qw0, nxt0, qx0 = qw, nxt, qx
    for sl in range(3):
        wops, xops = schedule(sl)
        qw = qw0.copy(); nxt = nxt0
        a.label(f"L_wmain{sl}")
        def run_wops(n):
            for op in wops.pop(n, []): xround(qw, *op)
        run_wops(-2)
        if T:
            a("s_waitcnt lgkmcnt(0)"); a("s_sub_u32 s90, s90, s60"); a("v_mov_b32 v149, s90")
        qw.wait(lambda t: t == ("W", 0))
        while nxt < o.winit0: wload(qw, nxt); nxt += 1
        qw.wait(lambda t: t == ("W", 1))
        while nxt < o.winitp: wload(qw, nxt); nxt += 1
        if T: a("s_memtime s[64:65]")
        probe("P0")
        a("s_barrier")
        probe("P")
        while nxt < o.winit2: wload(qw, nxt); nxt += 1
        run_wops(-1)
        qw.wait(lambda t: t == ("W", 2))
        stamp = 66
        for n in range(NB):
            a("s_barrier")
            if T and n in o.stamps:
                a(f"s_memtime s[{stamp}:{stamp+1}]"); stamp += 2
                if n == 0: a("s_memrealtime s[98:99]")
                if n == o.stamps[-1]: a("s_memrealtime s[100:101]")
            probe(f"b{n}")
            if o.trace:
                a("s_memtime s[88:89]"); a("s_waitcnt lgkmcnt(0)"); a("s_sub_u32 s88, s88, s60")
                a(f"v_writelane_b32 v{150 + n // 64}, s88, {n % 64}")
            busy = len(wops.get(n, []))
            run_wops(n)
            k = 0
            while nxt < NS and nxt <= n + R and (k < o.wrate - (busy > 0) or nxt <= n + o.wmin):
                wload(qw, nxt); nxt += 1; k += 1
            if n == XT:
                a("buffer_load_ushort v137, v134, s[52:55], 0 offen"); qw.issue("gb")
                a("buffer_load_ushort v138, v134, s[56:59], 0 offen"); qw.issue("gb")
            if n < NB - 1:
                assert all(m < nxt for m in WNEED if WNEED[m] <= n + 1), (n, nxt)
                qw.wait(lambda t: (WNEED[t[1]] <= n + 1) if isinstance(t, tuple) else (t in NEED and NEED[t] <= n + 1))
        assert not wops, wops
        assert nxt == NS
        a("s_branch L_wepi")

        qx = qx0.copy()
        a.label(f"L_xmain{sl}")
        def run_xops(n):
            for op in xops.pop(n, []):
                if op[0] == "x": xround(qx, *op[1:])
                elif op[0] == "rot": xrot(qx, *op[1:])
                else: xhalf(qx, *op[1:])
        run_xops(-2)
        if T: a("s_memtime s[66:67]"); a("s_memtime s[68:69]")
        a("s_barrier")
        run_xops(-1)
        for n in range(XT + 1):
            qx.wait(lambda t: t in NEED and NEED[t] <= n)
            a("s_barrier")
            run_xops(n)
        assert not xops, xops
        if sl < 2: a("s_branch L_xtail")
    a.label("L_xtail")
    a("s_lshl_b32 s44, s23, 5")
    a("v_mov_b32 v140, s44")
    a("global_load_dword v142, v140, s[14:15] sc1")
    if o.codepf:
        a("s_getpc_b64 s[56:57]")
        a.label("L_pc")
        a(f"s_sub_u32 s56, s56, L_pc-L_epi")
        a("s_subb_u32 s57, s57, 0")
        a("s_and_b32 s56, s56, 0xffffff80")
        a(f"s_mov_b32 s58, L_epi_end-L_epi+128")
        a("s_mov_b32 s59, 0x20000")
        a("v_lshlrev_b32 v147, 7, v129")
        a("buffer_load_dword v148, v147, s[56:59], 0 offen")
    for n in range(XT + 1, NB): a("s_barrier")
    a("s_mov_b32 s45, 0")
    a.label("L_cnt_wait")
    a("s_waitcnt vmcnt(0)")
    a("v_readfirstlane_b32 s44, v142")
    a("s_add_u32 s45, s45, 1")
    a("s_cmp_ge_u32 s44, 42")
    a("s_cbranch_scc1 L_cnt_ok")
    a("s_cmp_ge_u32 s45, 0x100000")
    a("s_cbranch_scc1 L_cnt_ok")
    a("global_load_dword v142, v140, s[14:15] sc1")
    a("s_branch L_cnt_wait")
    a.label("L_cnt_ok")
    a("s_barrier")
    if T:
        a("s_waitcnt lgkmcnt(0)")
        a("s_lshl_b32 s44, s2, 7")
        a("s_add_u32 s44, s44, 0x100000")
        a("s_sub_u32 s64, s64, s60"); a("s_sub_u32 s66, s66, s60"); a("s_sub_u32 s68, s68, s60")
        a("v_mov_b32 v40, s64"); a("v_mov_b32 v41, s66"); a("v_mov_b32 v42, s68"); a("v_mov_b32 v43, s44")
        a("s_mov_b64 exec, 1")
        a("global_store_dwordx2 v43, v[40:41], s[16:17] offset:88")
        a("global_store_dword v43, v42, s[16:17] offset:104")
    a.label("L_end")
    a("s_endpgm")

    hdr = f"""; Fused strided conv1d (im2col GEMM on MFMA) + per-channel norm over time + tanh-GELU.
; @launch grid=(256,1,1) block=(512,1,1) lds={LDS}
.amdgcn_target "amdgcn-amd-amdhsa--gfx950"
.text
.globl {NAME}_kernel
.p2align 8
.type {NAME}_kernel,@function
{NAME}_kernel:
"""
    ftr = f""".section .rodata,"a"
.p2align 6
.amdhsa_kernel {NAME}_kernel
  .amdhsa_next_free_vgpr 200
  .amdhsa_next_free_sgpr 102
  .amdhsa_accum_offset 200
  .amdhsa_group_segment_fixed_size 0
  .amdhsa_kernarg_size 56
  .amdhsa_float_denorm_mode_32 3
  .amdhsa_user_sgpr_count 2
  .amdhsa_user_sgpr_kernarg_segment_ptr 1
  .amdhsa_system_sgpr_workgroup_id_x 1
.end_amdhsa_kernel
"""
    return hdr + a.text() + ftr

def options(argv=None):
    ap = argparse.ArgumentParser()
    ap.add_argument("-o", default=f"cdna_kernels/{NAME}.s")
    ap.add_argument("--timing", action="store_true")
    ap.add_argument("--probe", default="")
    ap.add_argument("--stamps", default="[0, 4, 8, 16, 24, 32, 40, 46, 50, 53]")
    for k, d in dict(light=0, trace=0, ring=15, x_nt=0, wpreq=2, winit=2, winit0=5, winitp=0, winit2=8, wrate=2, wmin=5,
                     brate=2, orate=2, rotrate=4, codepf=1, kc=1, tdist=6, srate=2, wp0=1, atomstep=8, pubfirst=1).items():
        ap.add_argument("--" + k, type=int, default=d)
    ap.add_argument("--stflag", default="")
    ap.add_argument("--tbars", default="[0]")
    ap.add_argument("--b1", default="[2,6,7]")
    ap.add_argument("--own", default="{1:(0,-1),3:(1,9),5:(2,17),8:(0,24),0:(1,32),4:(2,39)}")
    ap.add_argument("--oth", default="{7:-1,1:7,3:15,5:22,8:30,0:37,4:45}")
    o = ap.parse_args(argv)
    for k in ("b1", "own", "oth", "stamps", "tbars"): setattr(o, k, eval(getattr(o, k)))
    if o.stflag: o.stflag = " " + o.stflag
    return o

if __name__ == "__main__":
    o = options()
    open(o.o, "w").write(gen(o))
```

```python
import sys, struct, argparse, re

NAME = "standalone__self_sup_conv_stem_wavlm__speech"
L = 7993
ARR = 12800
WB = 9 * ARR
import os
CLASS_ORDER = eval(os.environ.get('CORDER', '[4, 5, 3, 6, 2, 7, 1, 8, 0]'))
def nst(c): return 8 if c <= 4 else 7
STEPS = [(c, p) for c in CLASS_ORDER for p in range(8 if c <= 4 else 7)]
NS = len(STEPS)
def f2u(x): return struct.unpack('<I', struct.pack('<f', x))[0]
def lam_of(c): return (c >> 1, 4 + ((c + 1) >> 1))
NEED = {}
_n = 0
for _c in CLASS_ORDER:
    for _l in lam_of(_c): NEED.setdefault(_l, _n - 2)
    _n += 8 if _c <= 4 else 7
LAM_ORDER = sorted(NEED, key=lambda l: NEED[l])
class Asm:
    def __init__(s): s.lines = []; s.n = 0; s.wv = {}; s.wm = {}
    def __call__(s, t):
        s.lines.append("  " + t)
        m = re.match(r"s_nop (\d+)", t)
        s.n += int(m.group(1)) + 1 if m else 1
    def label(s, t): s.lines.append(t + ":")
    def c(s, t): s.lines.append("  ; " + t)
    def text(s): return "\n".join(s.lines) + "\n"
    def pad(s, since, need):
        d = s.n - since - 1
        if d < need: s(f"s_nop {need - d - 1}")
    def mfma(s, t, dst):
        s(t)
        for r in dst: s.wm[r] = s.n - 1
    def valu(s, t, rd=(), wr=(), dpp=()):
        for r in list(rd) + list(wr) + list(dpp):
            if r in s.wm: s.pad(s.wm[r] - 0, 8)
        for r in dpp:
            if r in s.wv: s.pad(s.wv[r], 2)
        s(t)
        for r in wr: s.wv[r] = s.n - 1

class Q:
    def __init__(s, a, name, cap): s.a = a; s.q = []; s.done = 0; s.name = name; s.cap = cap
    def copy(s):
        t = Q(s.a, s.name, s.cap); t.q = list(s.q); t.done = s.done; return t
    def issue(s, tag):
        s.q.append(tag)
        if s.name == "vmcnt": assert len(s.q) - s.done <= s.cap, "vmcnt overflow"
    def wait(s, pred):
        last = -1
        for i, t in enumerate(s.q):
            if pred(t): last = i
        if last < s.done: return
        s.a(f"s_waitcnt {s.name}({min(len(s.q) - 1 - last, s.cap)})")
        s.done = last + 1

def gen(o):
    R = o.ring
    NM = NS - sum(nst(c) for c in CLASS_ORDER[-o.kc:])
    TS = list(range(NM, NS)); NT_ = len(TS); D = o.tdist
    assert R >= NT_
    WNEED = {}
    PART = WB + R * 3072
    AB = PART + 1536
    FLAG = AB + 384
    LDS = FLAG + 16
    assert LDS <= 163840
    a = Asm()
    xnt = " nt" if o.x_nt else o.xcflag
    T = o.timing
    def probe(tag):
        if o.probe == tag: a("s_memrealtime s[98:99]"); a("s_waitcnt lgkmcnt(0)")
    def probe_end(lbl, mult):
        a("s_waitcnt lgkmcnt(0)")
        if mult:
            a("s_sub_u32 s44, s98, s62"); a(f"s_mul_i32 s44, s44, {mult}")
        else: a("s_mov_b32 s44, 0")
        a("s_add_u32 s44, s44, 3000")
        a.label(lbl)
        a("s_memrealtime s[46:47]"); a("s_waitcnt lgkmcnt(0)"); a("s_sub_u32 s46, s46, s62")
        a("s_cmp_lt_u32 s46, s44"); a(f"s_cbranch_scc1 {lbl}")
    a("s_load_dwordx8 s[4:11], s[0:1], 0")
    a("s_load_dwordx4 s[12:15], s[0:1], 32")
    a("s_load_dwordx2 s[16:17], s[0:1], 48")
    if T: a("s_memtime s[60:61]")
    if T or o.probe or o.light: a("s_memrealtime s[62:63]")
    a("s_cmp_ge_u32 s2, 256")
    a("s_cbranch_scc1 L_end")
    a("v_lshrrev_b32 v130, 6, v0")
    a("v_and_b32 v129, 63, v0")
    a("v_readfirstlane_b32 s18, v130")
    a("s_and_b32 s3, s2, 7")
    a("s_lshr_b32 s49, s2, 3")
    a("s_lshl_b32 s46, s3, 1")
    a("s_add_u32 s46, s46, s49")
    a("s_sub_u32 s46, s46, 30")
    a("s_mul_i32 s47, s3, 10")
    a("s_cmp_lt_u32 s49, 30")
    a("s_cselect_b32 s46, s49, s46")
    a("s_cselect_b32 s47, s47, 80")
    a("s_cselect_b32 s48, 0, s46")
    a("s_cmp_ge_u32 s48, 12")
    a("s_cbranch_scc1 L_end")
    a("s_mul_i32 s48, s46, 43")
    a("s_lshr_b32 s48, s48, 7")
    a("s_add_u32 s19, s47, s48")
    a("s_mul_i32 s48, s48, 3")
    a("s_sub_u32 s20, s46, s48")
    a("s_cmp_ge_u32 s19, 42")
    a("s_cselect_b32 s21, 1, 0")
    a("s_cselect_b32 s48, 42, 0")
    a("s_cselect_b32 s23, 3, 0")
    a("s_cselect_b32 s44, 4608000, 0")
    a("s_sub_u32 s22, s19, s48")
    a("s_add_u32 s23, s23, s20")
    a("s_mul_i32 s45, s22, 110592")
    a("s_add_u32 s44, s44, s45")
    a("s_sub_u32 s26, 4607712, s45")
    a("s_mov_b32 s27, 0x20000")
    a("v_lshrrev_b32 v136, 4, v129")
    a("v_lshrrev_b32 v132, 3, v129")
    a("v_and_b32 v133, 2, v132")
    a("v_and_b32 v134, 7, v129")
    a("v_xor_b32 v133, v133, v134")
    a("v_lshlrev_b32 v133, 4, v133")
    a("v_mul_u32_u24 v131, 1152, v132")
    a("v_add_u32 v131, v131, v133")
    a("s_mul_i32 s43, s20, 96")
    a("s_cmp_ge_u32 s18, 7")
    a("s_cselect_b32 s48, 0, s18")
    a("s_cmp_ge_u32 s48, 4")
    a("s_cbranch_scc1 L_wpro")
    a("s_add_u32 s46, s20, 1")
    a("s_cmp_eq_u32 s46, 3")
    a("s_cselect_b32 s46, 0, s46")
    a("s_add_u32 s47, s20, s46")
    a("s_sub_u32 s47, 3, s47")
    a("s_lshl_b32 s92, s20, 10"); a("s_lshl_b32 s93, s46, 10"); a("s_lshl_b32 s94, s47, 10")
    a("s_mul_i32 s95, s20, 9216"); a("s_mul_i32 s96, s46, 9216"); a("s_mul_i32 s97, s47, 9216")
    a("s_cmp_eq_u32 s18, 7")
    a("s_cbranch_scc1 L_xpro")

    def x_srd():
        a("s_add_u32 s24, s4, s44")
        a("s_addc_u32 s25, s5, 0")
    def pub_srd():
        a("s_lshl_b32 s44, s23, 14")
        a("s_add_u32 s36, s16, s44")
        a("s_addc_u32 s37, s17, 0")
        a("s_mov_b32 s38, 16128")
        a("s_mov_b32 s39, 0x20000")

    a.c("consumer prologue: wave w loads piece m = w of the first arrays")
    a("s_mul_i32 s46, s18, 3072")
    a("s_mul_i32 s47, s18, 27648")
    for d in range(3):
        a(f"s_add_u32 s{92+d}, s{92+d}, s46")
        a(f"s_add_u32 s{95+d}, s{95+d}, s47")
    for k, lam in enumerate(o.b1[:4]):
        a(f"s_cmp_eq_u32 s18, {3-k}")
        a(f"s_cselect_b32 s46, {lam*ARR + 12*1024}, s46")
        a(f"s_cselect_b32 s47, {12*9216 + lam*128}, s47")
    a("s_waitcnt lgkmcnt(0)")
    if T: a("s_memtime s[80:81]")
    x_srd()
    def cload(lam, d):
        a(f"s_add_u32 m0, s{92+d}, {lam*ARR}")
        a(f"s_add_u32 s50, s{95+d}, {lam*128}")
        a(f"buffer_load_dwordx4 v131, s[24:27], s50 offen{xnt if d == 0 else o.xflag} lds")
    for lam in o.b1[:2]: cload(lam, 0)
    a(f"s_cmp_lt_u32 s18, {4 - len(o.b1[:4])}")
    a("s_cbranch_scc1 L_c_nohalf")
    a("s_mov_b32 m0, s46")
    a("s_mov_b32 exec_hi, 0")
    a(f"buffer_load_dwordx4 v131, s[24:27], s47 offen{xnt} lds")
    a("s_mov_b32 exec_hi, -1")
    a.label("L_c_nohalf")
    for lam in o.b1[2:]: cload(lam, 0)
    if T: a("s_memtime s[82:83]")
    for d in (1, 2):
        for lam in LAM_ORDER[:2]: cload(lam, d)
    a("s_branch L_cons")

    a.label("L_wpro")
    qw = Q(a, "vmcnt", 63)
    a("v_subrev_u32 v140, 256, v0")
    a("v_mul_u32_u24 v141, 171, v140")
    a("v_lshrrev_b32 v141, 10, v141")
    a("v_mul_u32_u24 v142, 6, v141")
    a("v_sub_u32 v142, v140, v142")
    a("v_and_b32 v143, 0x13, v141")
    a("v_and_b32 v144, 4, v141")
    a("v_lshl_add_u32 v143, v144, 1, v143")
    a("v_and_b32 v144, 8, v141")
    a("v_lshrrev_b32 v144, 1, v144")
    a("v_add_u32 v143, v143, v144")
    a("v_mul_u32_u24 v143, 288, v143")
    a("v_lshl_add_u32 v139, v142, 4, v143")
    a("s_sub_u32 s49, s18, 4")
    a("s_lshl_b32 s51, s49, 10")
    a("s_sub_u32 s30, 622080, s43")
    a("s_mov_b32 s31, 0x20000")
    a("s_waitcnt lgkmcnt(0)")
    a("s_add_u32 s28, s6, s43")
    a("s_addc_u32 s29, s7, 0")
    probe("K")
    if o.prio & 4: a("s_setprio 3")
    def wload(q, n):
        c, p = STEPS[n]
        a(f"s_add_u32 m0, s51, {WB + (n % R)*3072}")
        a(f"s_mov_b32 s50, {(288*p + 32*c)*288}")
        a(f"buffer_load_dwordx4 v139, s[28:31], s50 offen{o.wflag} lds")
        q.issue(("W", n))
    nxt = 0
    while nxt < o.wpreq: wload(qw, nxt); nxt += 1
    a("s_mov_b32 s92, s51")
    a("s_mul_i32 s95, s49, 9216")
    x_srd()
    a("v_and_b32 v135, 7, v129")
    a("v_lshlrev_b32 v135, 1, v135")
    a("v_lshrrev_b32 v134, 5, v129")
    a("v_add_u32 v135, v135, v134")
    a("s_lshl_b32 s44, s49, 4")
    a("v_add_u32 v135, s44, v135")
    a("v_lshlrev_b32 v134, 1, v135")
    a("v_add_u32 v134, s43, v134")
    a("s_mov_b32 s52, s8"); a("s_mov_b32 s53, s9"); a("s_mov_b32 s54, 288"); a("s_mov_b32 s55, 0x20000")
    a("s_mov_b32 s56, s10"); a("s_mov_b32 s57, s11"); a("s_mov_b32 s58, 288"); a("s_mov_b32 s59, 0x20000")
    pub_srd()
    while nxt < o.winit: wload(qw, nxt); nxt += 1
    if T: a("s_memtime s[90:91]")
    a("s_cmp_eq_u32 s20, 1")
    a("s_cbranch_scc1 L_wmain1")
    a("s_cmp_eq_u32 s20, 2")
    a("s_cbranch_scc1 L_wmain2")
    a("s_branch L_wmain0")

    a.label("L_xpro")
    qx = Q(a, "vmcnt", 63)
    a("s_mov_b32 s30, 622080")
    a("s_mov_b32 s31, 0x20000")
    a("v_lshlrev_b32 v100, 8, v129")
    a("v_add_u32 v100, s2, v100")
    a("v_lshlrev_b32 v100, 7, v100")
    if o.wp0:
        a("v_lshl_add_u32 v141, v129, 5, s49")
        a("v_mul_u32_u24 v142, 911, v141")
        a("v_lshrrev_b32 v142, 16, v142")
        a("v_mul_u32_u24 v143, 73728, v142")
        a("v_lshl_add_u32 v143, v141, 7, v143")
        a(f"v_add_u32 v101, {CLASS_ORDER[0]*9216}, v143")
    def xround(q, lam, r, cold):
        a(f"s_add_u32 m0, s92, {lam*ARR + r*4096}")
        a(f"s_add_u32 s50, s95, {lam*128 + r*36864}")
        a(f"buffer_load_dwordx4 v131, s[24:27], s50 offen{xnt if cold else o.xflag} lds")
        q.issue(lam)
    def xrot(q, lam, d, m):
        a(f"s_add_u32 m0, s{80+d}, {lam*ARR + m*3072}")
        a(f"s_add_u32 s50, s{83+d}, {lam*128 + m*27648}")
        a(f"buffer_load_dwordx4 v131, s[24:27], s50 offen{o.xflag} lds")
        q.issue(lam)
    def xhalf(q, lam, cold=True):
        a(f"s_mov_b32 m0, {lam*ARR + 12*1024}")
        a(f"s_mov_b32 s50, {12*9216 + lam*128}")
        a("s_mov_b32 exec_hi, 0")
        a(f"buffer_load_dwordx4 v131, s[24:27], s50 offen{xnt if cold else o.xflag} lds")
        a("s_mov_b32 exec_hi, -1")
        q.issue(lam)
    a("s_waitcnt lgkmcnt(0)")
    a("s_mov_b32 s28, s6")
    a("s_mov_b32 s29, s7")
    if o.wp0:
        a("s_mov_b64 exec, 0x3ffff")
        a("buffer_load_dword v146, v101, s[28:31], 0 offen"); qx.issue("wp")
    a("s_mov_b64 exec, 0x7ffff")
    a("buffer_load_dword v146, v100, s[28:31], 0 offen"); qx.issue("wm")
    a("s_mov_b64 exec, -1")
    x_srd()
    for d in range(3):
        a(f"s_mov_b32 s{80+d}, s{92+d}"); a(f"s_mov_b32 s{83+d}, s{95+d}")
    a("s_movk_i32 s92, 3072")
    a("s_movk_i32 s95, 27648")
    a(f"v_mov_b32 v140, {FLAG}")
    for i in range(4): a(f"v_mov_b32 v{40+i}, 0")
    a("ds_write_b128 v140, v[40:43]")
    a("s_waitcnt lgkmcnt(0)")
    if T: a("s_memtime s[64:65]")
    a("s_cmp_eq_u32 s20, 1")
    a("s_cbranch_scc1 L_xmain1")
    a("s_cmp_eq_u32 s20, 2")
    a("s_cbranch_scc1 L_xmain2")
    a("s_branch L_xmain0")

    def schedule(sl):
        wops = {}; xops = {}
        for lam in LAM_ORDER[2:]:
            if lam in o.b1:
                k = 0
                for d in (1, 2):
                    for m in range(4):
                        xops.setdefault(o.oth[lam] + k // o.rotrate, []).append(("rot", lam, d, m)); k += 1
                continue
            for r in range(3):
                owner, at = o.own[lam][r] if isinstance(o.own[lam], list) else o.own[lam]
                cold = owner == sl
                st = at + r // o.brate if cold else o.oth[lam] + r // o.orate
                wops.setdefault(st, []).append((lam, r, cold))
                xops.setdefault(st, []).append(("x", lam, r, cold))
            xops.setdefault(st, []).append(("h", lam, cold))
        return wops, xops

    a.label("L_cons")
    pub_srd()
    a("s_cmp_lg_u32 s18, 0")
    a("s_cbranch_scc1 L_c_noclr")
    a.c("wave 0 clears this workgroup's hand-off words")
    a("s_mov_b64 exec, 0xffffff")
    a("v_lshlrev_b32 v142, 4, v129")
    a("s_mul_i32 s50, s22, 384")
    for i in range(4): a(f"v_mov_b32 v{40+i}, -1")
    a("buffer_store_dwordx4 v[40:43], v142, s[36:39], s50 offen sc1")
    a("s_mov_b64 exec, -1")
    a.label("L_c_noclr")
    a("v_and_b32 v139, 15, v129")
    a("v_mul_u32_u24 v140, 3, v139")
    a("v_mul_u32_u24 v141, 48, v130")
    a("v_add_u32 v140, v140, v141")
    a("v_and_b32 v141, 1, v140")
    a("v_lshrrev_b32 v142, 1, v140")
    a("v_cmp_eq_u32 vcc, 1, v141")
    for k in range(5):
        if k: a("v_add_u32 v142, 1, v142")
        a("v_and_b32 v143, 2, v142")
        a("v_xor_b32 v143, v143, v136")
        a("v_lshlrev_b32 v143, 4, v143")
        a(f"v_lshl_add_u32 v{100+k}, v142, 7, v143")
    a(f"v_mul_u32_u24 v105, {4*ARR+64}, v141")
    a(f"v_sub_u32 v106, {4*ARR+64}, v105")
    a(f"v_mul_u32_u24 v107, {5*ARR-64}, v141")
    a(f"v_sub_u32 v108, {5*ARR}, v107")
    a("v_add_u32 v107, 64, v107")
    for s in range(8):
        if s % 2 == 0:
            a(f"v_add_u32 v{112+s}, v{100+s//2}, v105")
            a(f"v_add_u32 v{120+s}, v{100+s//2}, v107")
        else:
            a(f"v_cndmask_b32 v143, v{100+s//2}, v{101+s//2}, vcc")
            a(f"v_add_u32 v{112+s}, v143, v106")
            a(f"v_add_u32 v{120+s}, v143, v108")
    a("v_lshrrev_b32 v141, 1, v136")
    a("v_lshlrev_b32 v141, 4, v141")
    a("v_and_b32 v142, 1, v136")
    a("v_lshl_add_u32 v141, v142, 2, v141")
    a("v_bfe_u32 v142, v129, 2, 2")
    a("v_add_u32 v141, v141, v142")
    a("v_mul_u32_u24 v141, 96, v141")
    a("v_and_b32 v142, 3, v129")
    a("v_lshl_add_u32 v141, v142, 3, v141")
    a(f"v_add_u32 v128, {WB}, v141")
    a("v_mul_u32_u24 v141, 384, v130")
    a("v_and_b32 v143, 12, v139")
    a("v_lshl_add_u32 v142, v136, 5, v143")
    a("v_add_u32 v132, v141, v142")
    a(f"v_add_u32 v132, {PART}, v132")
    a("v_lshlrev_b32 v133, 4, v136")
    a(f"v_add_u32 v133, {AB}, v133")
    a(f"v_mov_b32 v134, {FLAG}")
    a("v_mul_u32_u24 v135, 288, v140")
    a("v_lshl_add_u32 v135, v136, 3, v135")
    C0 = -2.0 * 0.7978845608028654 * 1.4426950408889634
    C1 = C0 * 0.044715
    a(f"v_mov_b32 v144, {f2u(C0):#x}"); a(f"v_mov_b32 v145, {f2u(C0):#x}")
    a(f"v_mov_b32 v146, {f2u(C1):#x}"); a(f"v_mov_b32 v147, {f2u(C1):#x}")
    a("v_mov_b32 v148, 1.0"); a("v_mov_b32 v149, 1.0")
    a(f"s_mul_i32 s44, s21, {L}")
    a("s_mul_i32 s45, s22, 192")
    a("s_add_u32 s44, s44, s45")
    a("s_mul_i32 s44, s44, 288")
    a("s_add_u32 s44, s44, s43")
    a("s_add_u32 s32, s12, s44")
    a("s_addc_u32 s33, s13, 0")
    a(f"s_sub_u32 s34, {L}, s45")
    a("s_mul_i32 s34, s34, 288")
    a("s_sub_u32 s34, s34, s43")
    a("s_mov_b32 s35, 0x20000")
    for t in range(3):
        a(f"s_movk_i32 s46, {L - 41*192 - t}")
        a(f"v_cmp_le_u32 s[{70+2*t}:{71+2*t}], s46, v140")
    a("s_lshl_b32 s44, s23, 5")
    a("v_mov_b32 v141, s44")
    a("v_mov_b32 v142, 1")
    a("s_waitcnt vmcnt(1)")
    a("s_cmp_eq_u32 s18, 0")
    a("s_cbranch_scc1 L_c_p")
    a("s_waitcnt vmcnt(0)")
    a.label("L_c_p")
    if T: a("s_memtime s[84:85]")
    if o.prio & 1: a("s_setprio 3")
    a("s_barrier")
    if T: a("s_memtime s[86:87]"); a("s_waitcnt lgkmcnt(0)")

    lq = Q(a, "lgkmcnt", 15)
    nbar = [0]
    def bar(): a("s_barrier"); nbar[0] += 1
    cl = CLASS_ORDER[-1]
    def freg(c, s): return (160 if (o.kc == 2 and c == cl) else 36) + 4*s
    def wread(n, nt, d):
        return [(f"ds_read_b64_tr_b16 v[{d+2*kh}:{d+2*kh+1}], v128 offset:{(n % R)*3072 + kh*768 + 32*nt}", ("W", n, nt)) for kh in range(2)]
    def xread(c, s):
        d = freg(c, s)
        return [(f"ds_read_b128 v[{d}:{d+3}], v{112 + 8*(c & 1) + (s & 7)} offset:{(c >> 1)*ARR + (512 if s >= 8 else 0)}", ("F", c, s))]
    def ureg(u): return 76 + 4*((u + 3*(NM % 3)) % 9)
    def uread(u): return wread(TS[u % NT_], u // NT_, ureg(u)) if u < 3*NT_ else []
    c0 = STEPS[NM][0]
    tailF = [(c0, s) for s in range(5, nst(c0) + 2)] + ([(cl, s) for s in range(nst(cl) + 2)] if o.kc == 2 else [])
    def reads_for(n):
        if n == NM: return xread(c0, 0) + xread(c0, 1) + xread(c0, 2) + uread(0) + uread(1) + uread(2)
        if n == NM + 1: return xread(c0, 3) + xread(c0, 4) + sum([uread(u) for u in range(3, D)], [])
        c, p = STEPS[n]
        r = []
        for s in ([0, 1, 2] if p == 0 else [p + 2]): r += xread(c, s)
        for nt in range(3): r += wread(n, nt, 76 + 12*(n % 3) + 4*nt)
        return r
    def put(rd):
        t, tag = rd.pop(0); a(t); lq.issue(tag)
        if tag[0] == "W": WNEED.setdefault(tag[1], nbar[0] - 1)
        else:
            for lam in lam_of(tag[1]): assert NEED[lam] <= max(nbar[0] - 1, -2 if nbar[0] == 0 else 0) or nbar[0] == 0
    rd = reads_for(0)
    while rd: put(rd)
    lq.wait(lambda t: t[0] == "F" or t == ("W", 0, 0))
    rd = reads_for(1)
    while rd: put(rd)
    for n in range(NM):
        c, p = STEPS[n]
        a.c(f"step {n}: class {c} p {p}")
        lq.wait(lambda t: (t[0] == "W" and t[1] == n) or (t[0] == "F" and t[1] == c and t[2] <= p + 2))
        bar()
        rd = reads_for(n + 2)
        bb = 76 + 12 * (n % 3)
        for t in range(3):
            for k in range(3):
                nt = k if t % 2 == 0 else 2 - k
                acc = 12*t + 4*nt
                f = freg(c, p + t)
                cin = "0" if n == 0 else f"v[{acc}:{acc+3}]"
                a.mfma(f"v_mfma_f32_16x16x32_bf16 v[{acc}:{acc+3}], v[{bb+4*nt}:{bb+4*nt+3}], v[{f}:{f+3}], {cin}", range(acc, acc+4))
                if rd: put(rd)
        assert not rd
        if n == o.atomstep:
            a("s_cmp_lg_u32 s18, 0")
            a("s_cbranch_scc1 L_c_noatom")
            a("s_waitcnt vmcnt(0)")
            a("s_mov_b64 exec, 1")
            a("global_atomic_add v141, v142, s[14:15]")
            a("s_mov_b64 exec, -1")
            a.label("L_c_noatom")
    a.label("L_epi")
    S1, S2, PQ, RR = 200, 204, 152, 156
    def pr(x): return f"v[{x}:{x+1}]"
    def stats_ops(nt, packed):
        ops = []
        A = [12*t + 4*nt for t in range(3)]
        def V(t, rd=(), wr=(), dpp=()): ops.append(lambda: a.valu(t, rd, wr, dpp))
        def mask():
            for k in range(3):
                for r in range(A[k], A[k]+4): a.pad(a.wm[r], 6)
            a("s_cmp_eq_u32 s22, 41")
            a(f"s_cbranch_scc1 L_c_mask{nt}")
            a.label(f"L_c_masked{nt}")
        ops.append(mask)
        if packed:
            for h in (0, 2): V(f"v_pk_mul_f32 {pr(S2+h)}, {pr(A[0]+h)}, {pr(A[0]+h)}", [A[0]+h, A[0]+h+1], [S2+h, S2+h+1])
            for h in (0, 2): V(f"v_pk_add_f32 {pr(S1+h)}, {pr(A[0]+h)}, {pr(A[1]+h)}", [A[1]+h, A[1]+h+1], [S1+h, S1+h+1])
            for h in (0, 2): V(f"v_pk_fma_f32 {pr(S2+h)}, {pr(A[1]+h)}, {pr(A[1]+h)}, {pr(S2+h)}", [], [S2+h, S2+h+1])
            for h in (0, 2): V(f"v_pk_add_f32 {pr(S1+h)}, {pr(S1+h)}, {pr(A[2]+h)}", [A[2]+h, A[2]+h+1], [S1+h, S1+h+1])
            for h in (0, 2): V(f"v_pk_fma_f32 {pr(S2+h)}, {pr(A[2]+h)}, {pr(A[2]+h)}, {pr(S2+h)}", [], [S2+h, S2+h+1])
        else:
            for h in range(4): V(f"v_mul_f32 v{S2+h}, v{A[0]+h}, v{A[0]+h}", [A[0]+h], [S2+h])
            for h in range(4): V(f"v_add_f32 v{S1+h}, v{A[0]+h}, v{A[1]+h}", [A[1]+h], [S1+h])
            for h in range(4): V(f"v_fmac_f32 v{S2+h}, v{A[1]+h}, v{A[1]+h}", [], [S2+h])
            for h in range(4): V(f"v_add_f32 v{S1+h}, v{S1+h}, v{A[2]+h}", [A[2]+h], [S1+h])
            for h in range(4): V(f"v_fmac_f32 v{S2+h}, v{A[2]+h}, v{A[2]+h}", [], [S2+h])
        for k, S in enumerate((S1, S2)):
            for m in range(2):
                d = PQ + 2*k + m
                V(f"v_add_f32_dpp v{d}, v{S+2*m}, v{S+2*m} row_shl:8 row_mask:0xf bank_mask:0x3", [], [d], [S+2*m])
                V(f"v_add_f32_dpp v{d}, v{S+2*m+1}, v{S+2*m+1} row_shr:8 row_mask:0xf bank_mask:0xc", [], [d], [S+2*m+1])
        for m in range(2): V(f"v_add_f32_dpp v{RR+m}, v{PQ+m}, v{PQ+m} row_shl:4 row_mask:0xf bank_mask:0x5", [], [RR+m], [PQ+m])
        for m in range(2): V(f"v_add_f32_dpp v{RR+m}, v{PQ+2+m}, v{PQ+2+m} row_shr:4 row_mask:0xf bank_mask:0xa", [], [RR+m], [PQ+2+m])
        for qp in ("[2,3,0,1]", "[1,0,3,2]"):
            for m in range(2): V(f"v_add_f32_dpp v{RR+m}, v{RR+m}, v{RR+m} quad_perm:{qp} row_mask:0xf bank_mask:0xf", [], [RR+m], [RR+m])
        def wr():
            a(f"ds_write2_b32 v132, v{RR}, v{RR+1} offset0:{32*nt} offset1:{32*nt+4}"); lq.issue(("S", nt))
        ops.append(wr)
        return ops
    pend = []; bar_due = None; ne1 = 0
    for u in range(3*NT_):
        nt, n = u // NT_, TS[u % NT_]
        c, p = STEPS[n]
        a.c(f"column tile {nt}, step {n}")
        n0 = a.n
        lq.wait(lambda t: t == ("W", n, nt) or (t[0] == "F" and t[1] == c and t[2] <= p + 2))
        if u in o.tbars: bar()
        if bar_due is not None and bar_due[1] <= u:
            lq.wait(lambda t: t == ("S", bar_due[0])); a("s_barrier"); bar_due = None; ne1 += 1
        head = a.n - n0
        rd = []
        for _ in range(2 if (o.kc == 2 and u < 4) else 1):
            if tailF: rd += xread(*tailF.pop(0))
        rd += uread(u + D)
        if u % NT_ == 1 and nt > 0: pend = pend + stats_ops(nt - 1, False)
        w = ureg(u)
        for k in range(3):
            t = k if (u % 2 == 0 or not o.tsnake) else 2 - k
            acc = 12*t + 4*nt
            f = freg(c, p + t)
            a.mfma(f"v_mfma_f32_16x16x32_bf16 v[{acc}:{acc+3}], v[{w}:{w+3}], v[{f}:{f+3}], v[{acc}:{acc+3}]", range(acc, acc+4))
            n1 = a.n
            if rd: put(rd)
            if len(rd) > 2 - k: put(rd)
            room = o.srate - (1 if k == 2 else 0)
            while pend and a.n - n1 < room:
                pend.pop(0)()
                if lq.q[-1][0] == "S" and lq.q[-1][1] == ne1 and bar_due is None: bar_due = (ne1, u + 2)
        assert not rd
    while pend: pend.pop(0)()
    while ne1 < 2:
        assert ("S", ne1) in lq.q
        lq.wait(lambda t: t == ("S", ne1)); a("s_barrier"); ne1 += 1
    for op in stats_ops(2, True): op()
    lq.wait(lambda t: t == ("S", 2))
    a("s_barrier")
    if o.pubfirst: a("s_barrier")
    NB = nbar[0]
    Y, U, O = 72, 84, 96
    for nt in range(3):
        a.label(f"L_c_wait{nt}")
        a(f"ds_read_b32 v48, v134 offset:{4*nt}")
        a(f"ds_read_b128 v[40:43], v133 offset:{64*nt}")
        a(f"ds_read_b128 v[44:47], v133 offset:{192 + 64*nt}")
        a("s_waitcnt lgkmcnt(0)")
        a("v_cmp_eq_u32 vcc, 0, v48")
        H = [12*(i // 2) + 4*nt + 2*(i % 2) for i in range(6)]
        a(f"v_pk_fma_f32 {pr(Y)}, {pr(H[0])}, v[40:41], v[44:45]")
        a(f"s_cbranch_vccnz L_c_wait{nt}")
        if T and nt == 2: a("s_memtime s[88:89]")
        for i in range(1, 6): a(f"v_pk_fma_f32 {pr(Y+2*i)}, {pr(H[i])}, {pr(40+2*(i%2))}, {pr(44+2*(i%2))}")
        for i in range(6): a(f"v_pk_mul_f32 {pr(U+2*i)}, {pr(Y+2*i)}, {pr(Y+2*i)}")
        for i in range(6): a(f"v_pk_fma_f32 {pr(U+2*i)}, {pr(U+2*i)}, v[146:147], v[144:145]")
        for i in range(6): a(f"v_pk_mul_f32 {pr(U+2*i)}, {pr(U+2*i)}, {pr(Y+2*i)}")
        for i in range(12): a(f"v_exp_f32 v{U+i}, v{U+i}")
        for i in range(6): a(f"v_pk_add_f32 {pr(U+2*i)}, {pr(U+2*i)}, v[148:149]")
        Ot = O + 6*nt
        for t in range(3):
            for i in range(4*t, 4*t+4): a(f"v_rcp_f32 v{U+i}, v{U+i}")
            if t > 0: a(f"buffer_store_dwordx2 v[{Ot+2*t-2}:{Ot+2*t-1}], v135, s[32:35], 0 offen offset:{288*(t-1) + 32*nt}{o.stflag}")
            else: a("s_nop 0")
            for i in (2*t, 2*t+1): a(f"v_pk_mul_f32 {pr(Y+2*i)}, {pr(Y+2*i)}, {pr(U+2*i)}")
            for i in (2*t, 2*t+1): a(f"v_cvt_pk_bf16_f32 v{Ot+i}, v{Y+2*i}, v{Y+2*i+1}")
        a(f"buffer_store_dwordx2 v[{Ot+4}:{Ot+5}], v135, s[32:35], 0 offen offset:{576 + 32*nt}{o.stflag}")
    if T:
        a("s_memtime s[64:65]")
        a("s_waitcnt vmcnt(0)")
        a("s_memtime s[66:67]")
        a("s_memrealtime s[68:69]")
        a("s_cmp_lg_u32 s18, 0")
        a("s_cbranch_scc1 L_end")
        a("s_waitcnt lgkmcnt(0)")
        a("s_lshl_b32 s44, s2, 7")
        a("s_add_u32 s44, s44, 0x100040")
        a("v_mov_b32 v40, s60"); a("v_mov_b32 v41, s62"); a("v_mov_b32 v42, s64"); a("v_mov_b32 v43, s66")
        a("v_mov_b32 v44, s68"); a("v_mov_b32 v45, s88")
        a("v_mov_b32 v48, s44")
        a("s_mov_b64 exec, 1")
        a("global_store_dwordx4 v48, v[40:43], s[16:17]")
        a("global_store_dwordx2 v48, v[44:45], s[16:17] offset:16")
        a("v_mov_b32 v52, s80"); a("v_mov_b32 v53, s82"); a("v_mov_b32 v54, s84"); a("v_mov_b32 v55, s86")
        a("global_store_dwordx4 v48, v[52:55], s[16:17] offset:48")
    if o.light:
        a("s_cmp_lg_u32 s18, 0")
        a("s_cbranch_scc1 L_end")
        a("s_waitcnt vmcnt(0)")
        a("s_memrealtime s[68:69]")
        a("s_lshl_b32 s44, s2, 7")
        a("s_add_u32 s44, s44, 0x100040")
        a("v_mov_b32 v48, s44")
        a("s_waitcnt lgkmcnt(0)")
        a("v_mov_b32 v40, s62"); a("v_mov_b32 v41, s68")
        a("s_mov_b64 exec, 1")
        a("global_store_dwordx2 v48, v[40:41], s[16:17]")
    if o.probe == "done":
        a("s_waitcnt vmcnt(0)"); probe("done"); probe_end("L_probe_c", 4)
    a("s_endpgm")
    for nt in range(3):
        a.label(f"L_c_mask{nt}")
        for t in range(3):
            a(f"s_mov_b64 exec, s[{70+2*t}:{71+2*t}]")
            for h in (0, 2): a(f"v_mov_b64 {pr(12*t + 4*nt + h)}, 0")
        a("s_mov_b64 exec, -1")
        a(f"s_branch L_c_masked{nt}")

    a.label("L_wepi")
    if o.prio & 2: a("s_setprio 3")
    a("v_and_b32 v140, 7, v129")
    a("v_lshlrev_b32 v140, 4, v140")
    a("s_lshl_b32 s44, s49, 7")
    a("v_add_u32 v140, s44, v140")
    a(f"v_add_u32 v141, {PART}, v140")
    a("v_lshrrev_b32 v142, 3, v129")
    a("v_mul_u32_u24 v142, 384, v142")
    a("v_add_u32 v142, v142, v140")
    a("s_mul_i32 s50, s22, 384")
    a("v_lshlrev_b32 v143, 2, v135")
    a(f"v_add_u32 v143, {AB}, v143")
    a("s_lshl_b32 s44, s49, 2")
    a(f"s_add_u32 s44, s44, {FLAG}")
    a("v_mov_b32 v144, s44")
    a("v_mov_b32 v145, 1")
    a(f"s_mov_b32 s44, {f2u(1.0/L):#x}")
    a("s_mov_b32 s45, 0")
    a("s_movk_i32 s46, 3072"); a("s_movk_i32 s47, 9216"); a("s_movk_i32 s48, 15360")
    a("s_waitcnt vmcnt(0)")
    a("v_lshlrev_b32 v137, 16, v137")
    a("v_lshlrev_b32 v138, 16, v138")
    a("s_mov_b64 exec, 0xff")
    a("s_mov_b32 s42, 0")
    a.label("L_w_e1")
    a("s_barrier")
    if o.trace:
        a("s_memtime s[88:89]"); a("s_waitcnt lgkmcnt(0)"); a("s_sub_u32 s88, s88, s60")
        a("s_add_u32 m0, s42, 61"); a("v_writelane_b32 v150, s88, m0")
    a("s_cmp_lg_u32 s42, s49")
    a("s_cbranch_scc1 L_w_nopub")
    if T: a("s_memtime s[86:87]")
    if T and o.rt2: a("s_memrealtime s[98:99]")
    probe("E1")
    for w in range(4): a(f"ds_read_b128 v[{40+4*w}:{43+4*w}], v141 offset:{384*w}")
    a("s_waitcnt lgkmcnt(2)" if not T else "s_waitcnt lgkmcnt(0)")
    a("v_pk_add_f32 v[40:41], v[40:41], v[44:45]")
    a("v_pk_add_f32 v[42:43], v[42:43], v[46:47]")
    a("s_waitcnt lgkmcnt(0)")
    a("v_pk_add_f32 v[48:49], v[48:49], v[52:53]")
    a("v_pk_add_f32 v[50:51], v[50:51], v[54:55]")
    a("v_pk_add_f32 v[40:41], v[40:41], v[48:49]")
    a("v_pk_add_f32 v[42:43], v[42:43], v[50:51]")
    for i in range(4): a(f"v_min_u32 v{40+i}, -2, v{40+i}")
    a("buffer_store_dwordx4 v[40:43], v140, s[36:39], s50 offen sc1")
    so = ["0", "s46", "s46", "s47", "s47", "s48"]; io = [0, 0, 3072, 0, 3072, 0]
    def polls():
        for k in range(6): a(f"buffer_load_dwordx4 v[{44+4*k}:{47+4*k}], v142, s[36:39], {so[k]} offen offset:{io[k]} sc1")
    if o.early:
        a(f"s_cmp_ge_u32 s49, {o.early}")
        a("s_cbranch_scc1 L_w_nopub")
        a("s_mov_b64 exec, -1")
        polls()
    a.label("L_w_nopub")
    a("s_add_u32 s42, s42, 1")
    a("s_cmp_lt_u32 s42, 3")
    a("s_cbranch_scc1 L_w_e1")
    a("s_mov_b64 exec, -1")
    if o.pubfirst:
        a("s_barrier")
    if o.early:
        a(f"s_cmp_lt_u32 s49, {o.early}")
        a("s_cbranch_scc1 L_pollwait")
    if o.chain:
        a("s_cmp_eq_u32 s49, 0")
        a("s_cbranch_scc1 L_poll")
        a(f"v_mov_b32 v146, {FLAG}")
        if o.chain == 2:
            a("s_lshl_b32 s42, s49, 2"); a("s_sub_u32 s42, s42, 4"); a("v_add_u32 v146, s42, v146")
        if o.chain == 3:
            a("s_cmp_eq_u32 s49, 1"); a("s_cbranch_scc1 L_poll"); a("v_add_u32 v146, 4, v146")
        if o.chain == 4:
            a("s_cmp_eq_u32 s49, 1"); a("s_cbranch_scc1 L_poll")
        a.label("L_chain")
        a("ds_read_b32 v147, v146")
        a("s_waitcnt lgkmcnt(0)")
        a("v_cmp_eq_u32 vcc, 0, v147")
        a("s_nop 0")
        a("s_cbranch_vccnz L_chain")
    a.label("L_poll")
    polls()
    a.label("L_pollwait")
    a("s_waitcnt vmcnt(4)")
    a("v_pk_add_f32 v[68:69], v[44:45], v[48:49]")
    a("v_pk_add_f32 v[70:71], v[46:47], v[50:51]")
    a("s_waitcnt vmcnt(2)")
    a("v_pk_add_f32 v[72:73], v[52:53], v[56:57]")
    a("v_pk_add_f32 v[74:75], v[54:55], v[58:59]")
    a("v_pk_add_f32 v[68:69], v[68:69], v[72:73]")
    a("v_pk_add_f32 v[70:71], v[70:71], v[74:75]")
    a("s_waitcnt vmcnt(0)")
    a("v_pk_add_f32 v[72:73], v[60:61], v[64:65]")
    a("v_pk_add_f32 v[74:75], v[62:63], v[66:67]")
    a("v_pk_add_f32 v[68:69], v[68:69], v[72:73]")
    a("v_pk_add_f32 v[70:71], v[70:71], v[74:75]")
    a("v_cmp_u_f32 vcc, v68, v69")
    a("v_cmp_u_f32 s[90:91], v70, v71")
    a("s_nop 0")
    a("s_or_b64 vcc, vcc, s[90:91]")
    a("s_cbranch_vccnz L_recheck")
    a.label("L_polled")
    probe("gath")
    if T and o.rt2: a("s_memrealtime s[100:101]")
    if T: a("s_memtime s[88:89]")
    a("v_permlane32_swap_b32 v68, v70")
    a("v_permlane32_swap_b32 v69, v71")
    a("v_add_f32 v68, v68, v70")
    a("v_add_f32 v69, v69, v71")
    a("s_nop 1")
    a("v_permlane16_swap_b32 v68, v69")
    a("v_add_f32 v68, v68, v69")
    a("s_nop 1")
    a("v_add_f32_dpp v68, v68, v68 row_ror:8 row_mask:0xf bank_mask:0xf")
    a("v_mul_f32 v68, s44, v68")
    a("v_mov_b32 v69, v68")
    a("s_nop 1")
    a("v_permlane16_swap_b32 v68, v69")
    a("v_fma_f32 v69, -v68, v68, v69")
    a("v_max_f32 v69, 0, v69")
    a(f"v_add_f32 v69, {f2u(1e-5):#x}, v69")
    a("v_rsq_f32 v69, v69")
    a("s_mov_b32 exec_lo, 0xff")
    a("s_mov_b32 exec_hi, 0xff")
    a("v_mul_f32 v69, v137, v69")
    a("v_fma_f32 v68, -v68, v69, v138")
    a("ds_write2_b32 v143, v69, v68 offset0:0 offset1:48")
    a("ds_write_b32 v144, v145")
    if T:
        a(f"s_cmp_lg_u32 s18, {o.twave}")
        a("s_cbranch_scc1 L_end")
        a("s_waitcnt lgkmcnt(0)")
        a("s_memtime s[90:91]")
        a("s_waitcnt lgkmcnt(0)")
        a("s_lshl_b32 s44, s2, 7")
        a("s_add_u32 s44, s44, 0x100000")
        regs = [60, 64] + list(range(66, 86, 2)) + [86, 88, 90, 62]
        for i, r in enumerate(regs): a(f"v_mov_b32 v{40+i}, s{r}")
        a("v_mov_b32 v60, s44")
        a("v_mov_b32 v62, s98"); a("v_mov_b32 v63, s100")
        a("s_mov_b64 exec, 1")
        for k in range(4): a(f"global_store_dwordx4 v60, v[{40+4*k}:{43+4*k}], s[16:17] offset:{16*k}")
        a("global_store_dwordx2 v60, v[62:63], s[16:17] offset:96")
        a("global_store_dword v60, v149, s[16:17] offset:108")
        if o.trace:
            a("s_mov_b64 exec, -1")
            a("s_lshl_b32 s44, s2, 9"); a("s_add_u32 s44, s44, 0x200000")
            a("v_lshlrev_b32 v60, 2, v129"); a("v_add_u32 v60, s44, v60")
            a("global_store_dword v60, v150, s[16:17]")
            a("global_store_dword v60, v151, s[16:17] offset:256")
    if o.probe and o.probe != "done": probe_end("L_probe_w", 0 if o.probe == "fixed" else 4)
    a("s_endpgm")
    a.label("L_recheck")
    a.c("a NaN sum: a word not yet written, or a genuine NaN")
    for k in range(8): a(f"v_max3_u32 v{72+k}, v{44+3*k}, v{45+3*k}, v{46+3*k}")
    a("v_max3_u32 v72, v72, v73, v74"); a("v_max3_u32 v75, v75, v76, v77")
    a("v_max3_u32 v72, v72, v78, v79"); a("v_max_u32 v72, v72, v75")
    a("v_cmp_eq_u32 vcc, -1, v72")
    a("s_add_u32 s45, s45, 1")
    a("s_cmp_ge_u32 s45, 0x100000")
    a("s_cbranch_scc1 L_polled")
    a("s_cbranch_vccnz L_poll")
    a("s_branch L_polled")
    a.label("L_epi_end")

    XT = NS - 1 - R
    assert NB - 1 >= XT
    qw0, nxt0, qx0 = qw, nxt, qx
    for sl in range(3):
        wops, xops = schedule(sl)
        qw = qw0.copy(); nxt = nxt0
        a.label(f"L_wmain{sl}")
        def run_wops(n):
            for op in wops.pop(n, []): xround(qw, *op)
        run_wops(-2)
        if T:
            a("s_waitcnt lgkmcnt(0)"); a("s_sub_u32 s90, s90, s60"); a("v_mov_b32 v149, s90")
        qw.wait(lambda t: t == ("W", 0))
        while nxt < o.winit0: wload(qw, nxt); nxt += 1
        qw.wait(lambda t: t == ("W", 1))
        while nxt < o.winitp: wload(qw, nxt); nxt += 1
        if T: a("s_memtime s[64:65]")
        probe("P0")
        a("s_barrier")
        probe("P")
        while nxt < o.winit2: wload(qw, nxt); nxt += 1
        run_wops(-1)
        qw.wait(lambda t: t == ("W", 2))
        stamp = 66
        for n in range(NB):
            a("s_barrier")
            if T and n in o.stamps:
                a(f"s_memtime s[{stamp}:{stamp+1}]"); stamp += 2
                if n == 0 and not o.rt2: a("s_memrealtime s[98:99]")
                if n == o.stamps[-1] and not o.rt2: a("s_memrealtime s[100:101]")
            probe(f"b{n}")
            if o.trace:
                a("s_memtime s[88:89]"); a("s_waitcnt lgkmcnt(0)"); a("s_sub_u32 s88, s88, s60")
                a(f"v_writelane_b32 v{150 + n // 64}, s88, {n % 64}")
            busy = len(wops.get(n, []))
            run_wops(n)
            k = 0
            while nxt < NS and nxt <= n + R and (k < o.wrate - (busy > 0) or nxt <= n + o.wmin):
                wload(qw, nxt); nxt += 1; k += 1
            if n == XT:
                a("buffer_load_ushort v137, v134, s[52:55], 0 offen"); qw.issue("gb")
                a("buffer_load_ushort v138, v134, s[56:59], 0 offen"); qw.issue("gb")
            if n < NB - 1:
                assert all(m < nxt for m in WNEED if WNEED[m] <= n + 1), (n, nxt)
                qw.wait(lambda t: (WNEED[t[1]] <= n + 1) if isinstance(t, tuple) else (t in NEED and NEED[t] <= n + 1))
        assert not wops, wops
        assert nxt == NS
        a("s_branch L_wepi")

        qx = qx0.copy()
        a.label(f"L_xmain{sl}")
        def run_xops(n):
            for op in xops.pop(n, []):
                if op[0] == "x": xround(qx, *op[1:])
                elif op[0] == "rot": xrot(qx, *op[1:])
                else: xhalf(qx, *op[1:])
        run_xops(-2)
        if T: a("s_memtime s[66:67]"); a("s_memtime s[68:69]")
        a("s_barrier")
        run_xops(-1)
        for n in range(XT + 1):
            qx.wait(lambda t: t in NEED and NEED[t] <= n)
            a("s_barrier")
            run_xops(n)
        assert not xops, xops
        if sl < 2: a("s_branch L_xtail")
    a.label("L_xtail")
    a("s_lshl_b32 s44, s23, 5")
    a("v_mov_b32 v140, s44")
    a("global_load_dword v142, v140, s[14:15] sc1")
    if o.codepf:
        a("s_getpc_b64 s[56:57]")
        a.label("L_pc")
        a(f"s_sub_u32 s56, s56, L_pc-L_epi")
        a("s_subb_u32 s57, s57, 0")
        a("s_and_b32 s56, s56, 0xffffff80")
        a(f"s_mov_b32 s58, L_epi_end-L_epi+128")
        a("s_mov_b32 s59, 0x20000")
        a("v_lshlrev_b32 v147, 7, v129")
        a("buffer_load_dword v148, v147, s[56:59], 0 offen")
    for n in range(XT + 1, NB): a("s_barrier")
    a("s_mov_b32 s45, 0")
    a.label("L_cnt_wait")
    a("s_waitcnt vmcnt(0)")
    a("v_readfirstlane_b32 s44, v142")
    a("s_add_u32 s45, s45, 1")
    a("s_cmp_ge_u32 s44, 42")
    a("s_cbranch_scc1 L_cnt_ok")
    a("s_cmp_ge_u32 s45, 0x100000")
    a("s_cbranch_scc1 L_cnt_ok")
    a("global_load_dword v142, v140, s[14:15] sc1")
    a("s_branch L_cnt_wait")
    a.label("L_cnt_ok")
    a("s_barrier")
    if T:
        a("s_waitcnt lgkmcnt(0)")
        a("s_lshl_b32 s44, s2, 7")
        a("s_add_u32 s44, s44, 0x100000")
        a("s_sub_u32 s64, s64, s60"); a("s_sub_u32 s66, s66, s60"); a("s_sub_u32 s68, s68, s60")
        a("v_mov_b32 v40, s64"); a("v_mov_b32 v41, s66"); a("v_mov_b32 v42, s68"); a("v_mov_b32 v43, s44")
        a("s_mov_b64 exec, 1")
        a("global_store_dwordx2 v43, v[40:41], s[16:17] offset:88")
        a("global_store_dword v43, v42, s[16:17] offset:104")
    a.label("L_end")
    a("s_endpgm")

    hdr = f"""; Fused strided conv1d (im2col GEMM on MFMA) + per-channel norm over time + tanh-GELU.
; @launch grid=(256,1,1) block=(512,1,1) lds={LDS}
.amdgcn_target "amdgcn-amd-amdhsa--gfx950"
.text
.globl {NAME}_kernel
.p2align 8
.type {NAME}_kernel,@function
{NAME}_kernel:
"""
    ftr = f""".section .rodata,"a"
.p2align 6
.amdhsa_kernel {NAME}_kernel
  .amdhsa_next_free_vgpr 208
  .amdhsa_next_free_sgpr 102
  .amdhsa_accum_offset 208
  .amdhsa_group_segment_fixed_size 0
  .amdhsa_kernarg_size 56
  .amdhsa_float_denorm_mode_32 3
  .amdhsa_user_sgpr_count 2
  .amdhsa_user_sgpr_kernarg_segment_ptr 1
  .amdhsa_system_sgpr_workgroup_id_x 1
.end_amdhsa_kernel
"""
    return hdr + a.text() + ftr

def options(argv=None):
    ap = argparse.ArgumentParser()
    ap.add_argument("-o", default=f"cdna_kernels/{NAME}.s")
    ap.add_argument("--timing", action="store_true")
    ap.add_argument("--probe", default="")
    ap.add_argument("--stamps", default="[0, 4, 8, 16, 24, 32, 40, 46, 50, 53]")
    for k, d in dict(light=0, trace=0, ring=15, x_nt=0, wpreq=2, winit=2, winit0=5, winitp=0, winit2=8, wrate=2, wmin=5,
                     brate=2, orate=2, rotrate=4, codepf=1, prio=0, rt2=0, twave=6, chain=1, early=0, tsnake=1, kc=2, tdist=4, srate=3, wp0=1, atomstep=8, pubfirst=1).items():
        ap.add_argument("--" + k, type=int, default=d)
    ap.add_argument("--stflag", default="")
    ap.add_argument("--wflag", default="")
    ap.add_argument("--xflag", default="")
    ap.add_argument("--xcflag", default="")
    ap.add_argument("--tbars", default="[0,4,8]")
    ap.add_argument("--b1", default="[2,6,7]")
    ap.add_argument("--own", default="{1:(0,-1),3:(1,9),5:(2,17),8:(0,24),0:(1,32),4:(2,39)}")
    ap.add_argument("--oth", default="{7:-1,1:7,3:15,5:22,8:30,0:37,4:45}")
    o = ap.parse_args(argv)
    for k in ("b1", "own", "oth", "stamps", "tbars"): setattr(o, k, eval(getattr(o, k)))
    for k in ("stflag", "wflag", "xflag", "xcflag"):
        if getattr(o, k): setattr(o, k, " " + getattr(o, k))
    return o

if __name__ == "__main__":
    o = options()
    open(o.o, "w").write(gen(o))
```

```python
import sys, struct, argparse, re

NAME = "standalone__self_sup_conv_stem_wavlm__speech"
L = 7993
ARR = 12800
WB = 9 * ARR
import os
CLASS_ORDER = eval(os.environ.get('CORDER', '[4, 5, 3, 6, 2, 7, 1, 8, 0]'))
def nst(c): return 8 if c <= 4 else 7
STEPS = [(c, p) for c in CLASS_ORDER for p in range(8 if c <= 4 else 7)]
NS = len(STEPS)
def f2u(x): return struct.unpack('<I', struct.pack('<f', x))[0]
def lam_of(c): return (c >> 1, 4 + ((c + 1) >> 1))
NEED = {}
_n = 0
for _c in CLASS_ORDER:
    for _l in lam_of(_c): NEED.setdefault(_l, _n - 2)
    _n += 8 if _c <= 4 else 7
LAM_ORDER = sorted(NEED, key=lambda l: NEED[l])
class Asm:
    def __init__(s): s.lines = []; s.n = 0; s.wv = {}; s.wm = {}
    def __call__(s, t):
        s.lines.append("  " + t)
        m = re.match(r"s_nop (\d+)", t)
        s.n += int(m.group(1)) + 1 if m else 1
    def label(s, t): s.lines.append(t + ":")
    def c(s, t): s.lines.append("  ; " + t)
    def text(s): return "\n".join(s.lines) + "\n"
    def pad(s, since, need):
        d = s.n - since - 1
        if d < need: s(f"s_nop {need - d - 1}")
    def mfma(s, t, dst):
        s(t)
        for r in dst: s.wm[r] = s.n - 1
    def valu(s, t, rd=(), wr=(), dpp=()):
        for r in list(rd) + list(wr) + list(dpp):
            if r in s.wm: s.pad(s.wm[r] - 0, 8)
        for r in dpp:
            if r in s.wv: s.pad(s.wv[r], 2)
        s(t)
        for r in wr: s.wv[r] = s.n - 1

class Q:
    def __init__(s, a, name, cap): s.a = a; s.q = []; s.done = 0; s.name = name; s.cap = cap
    def copy(s):
        t = Q(s.a, s.name, s.cap); t.q = list(s.q); t.done = s.done; return t
    def issue(s, tag):
        s.q.append(tag)
        if s.name == "vmcnt": assert len(s.q) - s.done <= s.cap, "vmcnt overflow"
    def wait(s, pred):
        last = -1
        for i, t in enumerate(s.q):
            if pred(t): last = i
        if last < s.done: return
        s.a(f"s_waitcnt {s.name}({min(len(s.q) - 1 - last, s.cap)})")
        s.done = last + 1

def gen(o):
    R = o.ring
    NM = NS - sum(nst(c) for c in CLASS_ORDER[-o.kc:])
    TS = list(range(NM, NS)); NT_ = len(TS); D = o.tdist
    assert R >= NT_
    WNEED = {}
    PART = WB + R * 3072
    AB = PART + 1536
    FLAG = AB + 384
    LDS = FLAG + 16
    assert LDS <= 163840
    a = Asm()
    xnt = " nt" if o.x_nt else o.xcflag
    T = o.timing
    def probe(tag):
        if o.probe == tag: a("s_memrealtime s[98:99]"); a("s_waitcnt lgkmcnt(0)")
    def probe_end(lbl, mult):
        a("s_waitcnt lgkmcnt(0)")
        if mult:
            a("s_sub_u32 s44, s98, s62"); a(f"s_mul_i32 s44, s44, {mult}")
        else: a("s_mov_b32 s44, 0")
        a("s_add_u32 s44, s44, 3000")
        a.label(lbl)
        a("s_memrealtime s[46:47]"); a("s_waitcnt lgkmcnt(0)"); a("s_sub_u32 s46, s46, s62")
        a("s_cmp_lt_u32 s46, s44"); a(f"s_cbranch_scc1 {lbl}")
    a("s_load_dwordx8 s[4:11], s[0:1], 0")
    a("s_load_dwordx4 s[12:15], s[0:1], 32")
    a("s_load_dwordx2 s[16:17], s[0:1], 48")
    if T: a("s_memtime s[60:61]")
    if T or o.probe or o.light: a("s_memrealtime s[62:63]")
    a("s_cmp_ge_u32 s2, 256")
    a("s_cbranch_scc1 L_end")
    a("v_lshrrev_b32 v130, 6, v0")
    a("v_and_b32 v129, 63, v0")
    a("v_readfirstlane_b32 s18, v130")
    a("s_and_b32 s3, s2, 7")
    a("s_lshr_b32 s49, s2, 3")
    a("s_lshl_b32 s46, s3, 1")
    a("s_add_u32 s46, s46, s49")
    a("s_sub_u32 s46, s46, 30")
    a("s_mul_i32 s47, s3, 10")
    a("s_cmp_lt_u32 s49, 30")
    a("s_cselect_b32 s46, s49, s46")
    a("s_cselect_b32 s47, s47, 80")
    a("s_cselect_b32 s48, 0, s46")
    a("s_cmp_ge_u32 s48, 12")
    a("s_cbranch_scc1 L_end")
    a("s_mul_i32 s48, s46, 43")
    a("s_lshr_b32 s48, s48, 7")
    a("s_add_u32 s19, s47, s48")
    a("s_mul_i32 s48, s48, 3")
    a("s_sub_u32 s20, s46, s48")
    a("s_cmp_ge_u32 s19, 42")
    a("s_cselect_b32 s21, 1, 0")
    a("s_cselect_b32 s48, 42, 0")
    a("s_cselect_b32 s23, 3, 0")
    a("s_cselect_b32 s44, 4608000, 0")
    a("s_sub_u32 s22, s19, s48")
    a("s_add_u32 s23, s23, s20")
    a("s_mul_i32 s45, s22, 110592")
    a("s_add_u32 s44, s44, s45")
    a("s_sub_u32 s26, 4607712, s45")
    a("s_mov_b32 s27, 0x20000")
    a("v_lshrrev_b32 v136, 4, v129")
    a("v_lshrrev_b32 v132, 3, v129")
    a("v_and_b32 v133, 2, v132")
    a("v_and_b32 v134, 7, v129")
    a("v_xor_b32 v133, v133, v134")
    a("v_lshlrev_b32 v133, 4, v133")
    a("v_mul_u32_u24 v131, 1152, v132")
    a("v_add_u32 v131, v131, v133")
    a("s_mul_i32 s43, s20, 96")
    a("s_cmp_ge_u32 s18, 7")
    a("s_cselect_b32 s48, 0, s18")
    a("s_cmp_ge_u32 s48, 4")
    a("s_cbranch_scc1 L_wpro")
    a("s_add_u32 s46, s20, 1")
    a("s_cmp_eq_u32 s46, 3")
    a("s_cselect_b32 s46, 0, s46")
    a("s_add_u32 s47, s20, s46")
    a("s_sub_u32 s47, 3, s47")
    a("s_lshl_b32 s92, s20, 10"); a("s_lshl_b32 s93, s46, 10"); a("s_lshl_b32 s94, s47, 10")
    a("s_mul_i32 s95, s20, 9216"); a("s_mul_i32 s96, s46, 9216"); a("s_mul_i32 s97, s47, 9216")
    a("s_cmp_eq_u32 s18, 7")
    a("s_cbranch_scc1 L_xpro")

    def x_srd():
        a("s_add_u32 s24, s4, s44")
        a("s_addc_u32 s25, s5, 0")
    def pub_srd():
        a("s_lshl_b32 s44, s23, 14")
        a("s_add_u32 s36, s16, s44")
        a("s_addc_u32 s37, s17, 0")
        a("s_mov_b32 s38, 16128")
        a("s_mov_b32 s39, 0x20000")

    a.c("consumer prologue: wave w loads piece m = w of the first arrays")
    a("s_mul_i32 s46, s18, 3072")
    a("s_mul_i32 s47, s18, 27648")
    for d in range(3):
        a(f"s_add_u32 s{92+d}, s{92+d}, s46")
        a(f"s_add_u32 s{95+d}, s{95+d}, s47")
    for k, lam in enumerate(o.b1[:4]):
        a(f"s_cmp_eq_u32 s18, {3-k}")
        a(f"s_cselect_b32 s46, {lam*ARR + 12*1024}, s46")
        a(f"s_cselect_b32 s47, {12*9216 + lam*128}, s47")
    a("s_waitcnt lgkmcnt(0)")
    if T: a("s_memtime s[80:81]")
    x_srd()
    def cload(lam, d):
        a(f"s_add_u32 m0, s{92+d}, {lam*ARR}")
        a(f"s_add_u32 s50, s{95+d}, {lam*128}")
        a(f"buffer_load_dwordx4 v131, s[24:27], s50 offen{xnt if d == 0 else o.xflag} lds")
    for lam in o.b1[:2]: cload(lam, 0)
    a(f"s_cmp_lt_u32 s18, {4 - len(o.b1[:4])}")
    a("s_cbranch_scc1 L_c_nohalf")
    a("s_mov_b32 m0, s46")
    a("s_mov_b32 exec_hi, 0")
    a(f"buffer_load_dwordx4 v131, s[24:27], s47 offen{xnt} lds")
    a("s_mov_b32 exec_hi, -1")
    a.label("L_c_nohalf")
    for lam in o.b1[2:]: cload(lam, 0)
    if T: a("s_memtime s[82:83]")
    for d in (1, 2):
        for lam in LAM_ORDER[:2]: cload(lam, d)
    a("s_branch L_cons")

    a.label("L_wpro")
    qw = Q(a, "vmcnt", 63)
    a("v_subrev_u32 v140, 256, v0")
    a("v_mul_u32_u24 v141, 171, v140")
    a("v_lshrrev_b32 v141, 10, v141")
    a("v_mul_u32_u24 v142, 6, v141")
    a("v_sub_u32 v142, v140, v142")
    a("v_and_b32 v143, 0x13, v141")
    a("v_and_b32 v144, 4, v141")
    a("v_lshl_add_u32 v143, v144, 1, v143")
    a("v_and_b32 v144, 8, v141")
    a("v_lshrrev_b32 v144, 1, v144")
    a("v_add_u32 v143, v143, v144")
    a("v_mul_u32_u24 v143, 288, v143")
    a("v_lshl_add_u32 v139, v142, 4, v143")
    a("s_sub_u32 s49, s18, 4")
    a("s_lshl_b32 s51, s49, 10")
    a("s_sub_u32 s30, 622080, s43")
    a("s_mov_b32 s31, 0x20000")
    a("s_waitcnt lgkmcnt(0)")
    a("s_add_u32 s28, s6, s43")
    a("s_addc_u32 s29, s7, 0")
    probe("K")
    if o.prio & 4: a("s_setprio 3")
    def wload(q, n):
        c, p = STEPS[n]
        a(f"s_add_u32 m0, s51, {WB + (n % R)*3072}")
        a(f"s_mov_b32 s50, {(288*p + 32*c)*288}")
        a(f"buffer_load_dwordx4 v139, s[28:31], s50 offen{o.wflag} lds")
        q.issue(("W", n))
    nxt = 0
    while nxt < o.wpreq: wload(qw, nxt); nxt += 1
    a("s_mov_b32 s92, s51")
    a("s_mul_i32 s95, s49, 9216")
    x_srd()
    a("v_and_b32 v135, 7, v129")
    a("v_lshlrev_b32 v135, 1, v135")
    a("v_lshrrev_b32 v134, 5, v129")
    a("v_add_u32 v135, v135, v134")
    a("s_lshl_b32 s44, s49, 4")
    a("v_add_u32 v135, s44, v135")
    a("v_lshlrev_b32 v134, 1, v135")
    a("v_add_u32 v134, s43, v134")
    a("s_mov_b32 s52, s8"); a("s_mov_b32 s53, s9"); a("s_mov_b32 s54, 288"); a("s_mov_b32 s55, 0x20000")
    a("s_mov_b32 s56, s10"); a("s_mov_b32 s57, s11"); a("s_mov_b32 s58, 288"); a("s_mov_b32 s59, 0x20000")
    pub_srd()
    while nxt < o.winit: wload(qw, nxt); nxt += 1
    if T: a("s_memtime s[90:91]")
    a("s_cmp_eq_u32 s20, 1")
    a("s_cbranch_scc1 L_wmain1")
    a("s_cmp_eq_u32 s20, 2")
    a("s_cbranch_scc1 L_wmain2")
    a("s_branch L_wmain0")

    a.label("L_xpro")
    qx = Q(a, "vmcnt", 63)
    a("s_mov_b32 s30, 622080")
    a("s_mov_b32 s31, 0x20000")
    a("v_lshlrev_b32 v100, 8, v129")
    a("v_add_u32 v100, s2, v100")
    a("v_lshlrev_b32 v100, 7, v100")
    if o.wp0:
        a("v_lshl_add_u32 v141, v129, 5, s49")
        a("v_mul_u32_u24 v142, 911, v141")
        a("v_lshrrev_b32 v142, 16, v142")
        a("v_mul_u32_u24 v143, 73728, v142")
        a("v_lshl_add_u32 v143, v141, 7, v143")
        a(f"v_add_u32 v101, {CLASS_ORDER[0]*9216}, v143")
    def xround(q, lam, r, cold):
        a(f"s_add_u32 m0, s92, {lam*ARR + r*4096}")
        a(f"s_add_u32 s50, s95, {lam*128 + r*36864}")
        a(f"buffer_load_dwordx4 v131, s[24:27], s50 offen{xnt if cold else o.xflag} lds")
        q.issue(lam)
    def xrot(q, lam, d, m):
        a(f"s_add_u32 m0, s{80+d}, {lam*ARR + m*3072}")
        a(f"s_add_u32 s50, s{83+d}, {lam*128 + m*27648}")
        a(f"buffer_load_dwordx4 v131, s[24:27], s50 offen{o.xflag} lds")
        q.issue(lam)
    def xhalf(q, lam, cold=True):
        a(f"s_mov_b32 m0, {lam*ARR + 12*1024}")
        a(f"s_mov_b32 s50, {12*9216 + lam*128}")
        a("s_mov_b32 exec_hi, 0")
        a(f"buffer_load_dwordx4 v131, s[24:27], s50 offen{xnt if cold else o.xflag} lds")
        a("s_mov_b32 exec_hi, -1")
        q.issue(lam)
    a("s_waitcnt lgkmcnt(0)")
    a("s_mov_b32 s28, s6")
    a("s_mov_b32 s29, s7")
    if o.wp0:
        a("s_mov_b64 exec, 0x3ffff")
        a("buffer_load_dword v146, v101, s[28:31], 0 offen"); qx.issue("wp")
    a("s_mov_b64 exec, 0x7ffff")
    a("buffer_load_dword v146, v100, s[28:31], 0 offen"); qx.issue("wm")
    a("s_mov_b64 exec, -1")
    x_srd()
    for d in range(3):
        a(f"s_mov_b32 s{80+d}, s{92+d}"); a(f"s_mov_b32 s{83+d}, s{95+d}")
    a("s_movk_i32 s92, 3072")
    a("s_movk_i32 s95, 27648")
    a(f"v_mov_b32 v140, {FLAG}")
    for i in range(4): a(f"v_mov_b32 v{40+i}, 0")
    a("ds_write_b128 v140, v[40:43]")
    a("s_waitcnt lgkmcnt(0)")
    if T: a("s_memtime s[64:65]")
    a("s_cmp_eq_u32 s20, 1")
    a("s_cbranch_scc1 L_xmain1")
    a("s_cmp_eq_u32 s20, 2")
    a("s_cbranch_scc1 L_xmain2")
    a("s_branch L_xmain0")

    def schedule(sl):
        wops = {}; xops = {}
        for lam in LAM_ORDER[2:]:
            if lam in o.b1:
                k = 0
                for d in (1, 2):
                    for m in range(4):
                        xops.setdefault(o.oth[lam] + k // o.rotrate, []).append(("rot", lam, d, m)); k += 1
                continue
            for r in range(3):
                owner, at = o.own[lam][r] if isinstance(o.own[lam], list) else o.own[lam]
                cold = owner == sl
                st = at + r // o.brate if cold else o.oth[lam] + r // o.orate
                wops.setdefault(st, []).append((lam, r, cold))
                xops.setdefault(st, []).append(("x", lam, r, cold))
            xops.setdefault(st, []).append(("h", lam, cold))
        return wops, xops

    a.label("L_cons")
    pub_srd()
    a("s_cmp_lg_u32 s18, 0")
    a("s_cbranch_scc1 L_c_noclr")
    a.c("wave 0 clears this workgroup's hand-off words")
    a("v_lshlrev_b32 v142, 4, v129")
    a("s_mul_i32 s50, s22, 384")
    for i in range(4): a(f"v_mov_b32 v{40+i}, -1")
    if o.gate:
        a("s_mov_b64 exec, 0x1000000")
        a("v_mov_b32 v142, 16256")
        for i in range(4): a(f"v_mov_b32 v{40+i}, 0")
        a("s_cmp_eq_u32 s22, 0")
        a("s_mov_b32 s46, 0xffffff")
        a("s_cselect_b32 exec_lo, 0x1ffffff, s46")
        a("s_mov_b32 s38, 16384")
    else:
        a("s_mov_b64 exec, 0xffffff")
    a("buffer_store_dwordx4 v[40:43], v142, s[36:39], s50 offen sc1")
    a("s_mov_b64 exec, -1")
    a.label("L_c_noclr")
    a("v_and_b32 v139, 15, v129")
    a("v_mul_u32_u24 v140, 3, v139")
    a("v_mul_u32_u24 v141, 48, v130")
    a("v_add_u32 v140, v140, v141")
    a("v_and_b32 v141, 1, v140")
    a("v_lshrrev_b32 v142, 1, v140")
    a("v_cmp_eq_u32 vcc, 1, v141")
    for k in range(5):
        if k: a("v_add_u32 v142, 1, v142")
        a("v_and_b32 v143, 2, v142")
        a("v_xor_b32 v143, v143, v136")
        a("v_lshlrev_b32 v143, 4, v143")
        a(f"v_lshl_add_u32 v{100+k}, v142, 7, v143")
    a(f"v_mul_u32_u24 v105, {4*ARR+64}, v141")
    a(f"v_sub_u32 v106, {4*ARR+64}, v105")
    a(f"v_mul_u32_u24 v107, {5*ARR-64}, v141")
    a(f"v_sub_u32 v108, {5*ARR}, v107")
    a("v_add_u32 v107, 64, v107")
    for s in range(8):
        if s % 2 == 0:
            a(f"v_add_u32 v{112+s}, v{100+s//2}, v105")
            a(f"v_add_u32 v{120+s}, v{100+s//2}, v107")
        else:
            a(f"v_cndmask_b32 v143, v{100+s//2}, v{101+s//2}, vcc")
            a(f"v_add_u32 v{112+s}, v143, v106")
            a(f"v_add_u32 v{120+s}, v143, v108")
    a("v_lshrrev_b32 v141, 1, v136")
    a("v_lshlrev_b32 v141, 4, v141")
    a("v_and_b32 v142, 1, v136")
    a("v_lshl_add_u32 v141, v142, 2, v141")
    a("v_bfe_u32 v142, v129, 2, 2")
    a("v_add_u32 v141, v141, v142")
    a("v_mul_u32_u24 v141, 96, v141")
    a("v_and_b32 v142, 3, v129")
    a("v_lshl_add_u32 v141, v142, 3, v141")
    a(f"v_add_u32 v128, {WB}, v141")
    a("v_mul_u32_u24 v141, 384, v130")
    a("v_and_b32 v143, 12, v139")
    a("v_lshl_add_u32 v142, v136, 5, v143")
    a("v_add_u32 v132, v141, v142")
    a(f"v_add_u32 v132, {PART}, v132")
    a("v_lshlrev_b32 v133, 4, v136")
    a(f"v_add_u32 v133, {AB}, v133")
    a(f"v_mov_b32 v134, {FLAG}")
    a("v_mul_u32_u24 v135, 288, v140")
    a("v_lshl_add_u32 v135, v136, 3, v135")
    C0 = -2.0 * 0.7978845608028654 * 1.4426950408889634
    C1 = C0 * 0.044715
    a(f"v_mov_b32 v144, {f2u(C0):#x}"); a(f"v_mov_b32 v145, {f2u(C0):#x}")
    a(f"v_mov_b32 v146, {f2u(C1):#x}"); a(f"v_mov_b32 v147, {f2u(C1):#x}")
    a("v_mov_b32 v148, 1.0"); a("v_mov_b32 v149, 1.0")
    a(f"s_mul_i32 s44, s21, {L}")
    a("s_mul_i32 s45, s22, 192")
    a("s_add_u32 s44, s44, s45")
    a("s_mul_i32 s44, s44, 288")
    a("s_add_u32 s44, s44, s43")
    a("s_add_u32 s32, s12, s44")
    a("s_addc_u32 s33, s13, 0")
    a(f"s_sub_u32 s34, {L}, s45")
    a("s_mul_i32 s34, s34, 288")
    a("s_sub_u32 s34, s34, s43")
    a("s_mov_b32 s35, 0x20000")
    for t in range(3):
        a(f"s_movk_i32 s46, {L - 41*192 - t}")
        a(f"v_cmp_le_u32 s[{70+2*t}:{71+2*t}], s46, v140")
    a("s_lshl_b32 s44, s23, 5")
    a("v_mov_b32 v141, s44")
    a("v_mov_b32 v142, 1")
    a("s_waitcnt vmcnt(1)")
    a("s_cmp_eq_u32 s18, 0")
    a("s_cbranch_scc1 L_c_p")
    a("s_waitcnt vmcnt(0)")
    a.label("L_c_p")
    if T: a("s_memtime s[84:85]")
    if o.prio & 1: a("s_setprio 3")
    a("s_barrier")
    if T: a("s_memtime s[86:87]"); a("s_waitcnt lgkmcnt(0)")

    lq = Q(a, "lgkmcnt", 15)
    nbar = [0]
    def bar(): a("s_barrier"); nbar[0] += 1
    cl = CLASS_ORDER[-1]
    def freg(c, s): return (160 if (o.kc == 2 and c == cl) else 36) + 4*s
    def wread(n, nt, d):
        return [(f"ds_read_b64_tr_b16 v[{d+2*kh}:{d+2*kh+1}], v128 offset:{(n % R)*3072 + kh*768 + 32*nt}", ("W", n, nt)) for kh in range(2)]
    def xread(c, s):
        d = freg(c, s)
        return [(f"ds_read_b128 v[{d}:{d+3}], v{112 + 8*(c & 1) + (s & 7)} offset:{(c >> 1)*ARR + (512 if s >= 8 else 0)}", ("F", c, s))]
    def ureg(u): return 76 + 4*((u + 3*(NM % 3)) % 9)
    def uread(u): return wread(TS[u % NT_], u // NT_, ureg(u)) if u < 3*NT_ else []
    c0 = STEPS[NM][0]
    tailF = [(c0, s) for s in range(5, nst(c0) + 2)] + ([(cl, s) for s in range(nst(cl) + 2)] if o.kc == 2 else [])
    def reads_for(n):
        if n == NM: return xread(c0, 0) + xread(c0, 1) + xread(c0, 2) + uread(0) + uread(1) + uread(2)
        if n == NM + 1: return xread(c0, 3) + xread(c0, 4) + sum([uread(u) for u in range(3, D)], [])
        c, p = STEPS[n]
        r = []
        for s in ([0, 1, 2] if p == 0 else [p + 2]): r += xread(c, s)
        for nt in range(3): r += wread(n, nt, 76 + 12*(n % 3) + 4*nt)
        return r
    def put(rd):
        t, tag = rd.pop(0); a(t); lq.issue(tag)
        if tag[0] == "W": WNEED.setdefault(tag[1], nbar[0] - 1)
        else:
            for lam in lam_of(tag[1]): assert NEED[lam] <= max(nbar[0] - 1, -2 if nbar[0] == 0 else 0) or nbar[0] == 0
    rd = reads_for(0)
    while rd: put(rd)
    lq.wait(lambda t: t[0] == "F" or t == ("W", 0, 0))
    rd = reads_for(1)
    while rd: put(rd)
    for n in range(NM):
        c, p = STEPS[n]
        a.c(f"step {n}: class {c} p {p}")
        lq.wait(lambda t: (t[0] == "W" and t[1] == n) or (t[0] == "F" and t[1] == c and t[2] <= p + 2))
        bar()
        rd = reads_for(n + 2)
        bb = 76 + 12 * (n % 3)
        for t in range(3):
            for k in range(3):
                nt = k if t % 2 == 0 else 2 - k
                acc = 12*t + 4*nt
                f = freg(c, p + t)
                cin = "0" if n == 0 else f"v[{acc}:{acc+3}]"
                a.mfma(f"v_mfma_f32_16x16x32_bf16 v[{acc}:{acc+3}], v[{bb+4*nt}:{bb+4*nt+3}], v[{f}:{f+3}], {cin}", range(acc, acc+4))
                if rd: put(rd)
        assert not rd
        if n == o.atomstep:
            a("s_cmp_lg_u32 s18, 0")
            a("s_cbranch_scc1 L_c_noatom")
            a("s_waitcnt vmcnt(0)")
            a("s_mov_b64 exec, 1")
            a("global_atomic_add v141, v142, s[14:15]")
            a("s_mov_b64 exec, -1")
            a.label("L_c_noatom")
    a.label("L_epi")
    S1, S2, PQ, RR = 200, 204, 152, 156
    def pr(x): return f"v[{x}:{x+1}]"
    def stats_ops(nt, packed):
        ops = []
        A = [12*t + 4*nt for t in range(3)]
        def V(t, rd=(), wr=(), dpp=()): ops.append(lambda: a.valu(t, rd, wr, dpp))
        def mask():
            for k in range(3):
                for r in range(A[k], A[k]+4): a.pad(a.wm[r], 6)
            a("s_cmp_eq_u32 s22, 41")
            a(f"s_cbranch_scc1 L_c_mask{nt}")
            a.label(f"L_c_masked{nt}")
        ops.append(mask)
        if packed:
            for h in (0, 2): V(f"v_pk_mul_f32 {pr(S2+h)}, {pr(A[0]+h)}, {pr(A[0]+h)}", [A[0]+h, A[0]+h+1], [S2+h, S2+h+1])
            for h in (0, 2): V(f"v_pk_add_f32 {pr(S1+h)}, {pr(A[0]+h)}, {pr(A[1]+h)}", [A[1]+h, A[1]+h+1], [S1+h, S1+h+1])
            for h in (0, 2): V(f"v_pk_fma_f32 {pr(S2+h)}, {pr(A[1]+h)}, {pr(A[1]+h)}, {pr(S2+h)}", [], [S2+h, S2+h+1])
            for h in (0, 2): V(f"v_pk_add_f32 {pr(S1+h)}, {pr(S1+h)}, {pr(A[2]+h)}", [A[2]+h, A[2]+h+1], [S1+h, S1+h+1])
            for h in (0, 2): V(f"v_pk_fma_f32 {pr(S2+h)}, {pr(A[2]+h)}, {pr(A[2]+h)}, {pr(S2+h)}", [], [S2+h, S2+h+1])
        else:
            for h in range(4): V(f"v_mul_f32 v{S2+h}, v{A[0]+h}, v{A[0]+h}", [A[0]+h], [S2+h])
            for h in range(4): V(f"v_add_f32 v{S1+h}, v{A[0]+h}, v{A[1]+h}", [A[1]+h], [S1+h])
            for h in range(4): V(f"v_fmac_f32 v{S2+h}, v{A[1]+h}, v{A[1]+h}", [], [S2+h])
            for h in range(4): V(f"v_add_f32 v{S1+h}, v{S1+h}, v{A[2]+h}", [A[2]+h], [S1+h])
            for h in range(4): V(f"v_fmac_f32 v{S2+h}, v{A[2]+h}, v{A[2]+h}", [], [S2+h])
        for k, S in enumerate((S1, S2)):
            for m in range(2):
                d = PQ + 2*k + m
                V(f"v_add_f32_dpp v{d}, v{S+2*m}, v{S+2*m} row_shl:8 row_mask:0xf bank_mask:0x3", [], [d], [S+2*m])
                V(f"v_add_f32_dpp v{d}, v{S+2*m+1}, v{S+2*m+1} row_shr:8 row_mask:0xf bank_mask:0xc", [], [d], [S+2*m+1])
        for m in range(2): V(f"v_add_f32_dpp v{RR+m}, v{PQ+m}, v{PQ+m} row_shl:4 row_mask:0xf bank_mask:0x5", [], [RR+m], [PQ+m])
        for m in range(2): V(f"v_add_f32_dpp v{RR+m}, v{PQ+2+m}, v{PQ+2+m} row_shr:4 row_mask:0xf bank_mask:0xa", [], [RR+m], [PQ+2+m])
        for qp in ("[2,3,0,1]", "[1,0,3,2]"):
            for m in range(2): V(f"v_add_f32_dpp v{RR+m}, v{RR+m}, v{RR+m} quad_perm:{qp} row_mask:0xf bank_mask:0xf", [], [RR+m], [RR+m])
        def wr():
            a(f"ds_write2_b32 v132, v{RR}, v{RR+1} offset0:{32*nt} offset1:{32*nt+4}"); lq.issue(("S", nt))
        ops.append(wr)
        return ops
    pend = []; bar_due = None; ne1 = 0
    for u in range(3*NT_):
        nt, n = u // NT_, TS[u % NT_]
        c, p = STEPS[n]
        a.c(f"column tile {nt}, step {n}")
        n0 = a.n
        lq.wait(lambda t: t == ("W", n, nt) or (t[0] == "F" and t[1] == c and t[2] <= p + 2))
        if u in o.tbars: bar()
        if bar_due is not None and bar_due[1] <= u:
            lq.wait(lambda t: t == ("S", bar_due[0])); a("s_barrier"); bar_due = None; ne1 += 1
        head = a.n - n0
        rd = []
        for _ in range(2 if (o.kc == 2 and u < 4) else 1):
            if tailF: rd += xread(*tailF.pop(0))
        rd += uread(u + D)
        if u % NT_ == 1 and nt > 0: pend = pend + stats_ops(nt - 1, False)
        w = ureg(u)
        for k in range(3):
            t = k if (u % 2 == 0 or not o.tsnake) else 2 - k
            acc = 12*t + 4*nt
            f = freg(c, p + t)
            a.mfma(f"v_mfma_f32_16x16x32_bf16 v[{acc}:{acc+3}], v[{w}:{w+3}], v[{f}:{f+3}], v[{acc}:{acc+3}]", range(acc, acc+4))
            n1 = a.n
            if rd: put(rd)
            if len(rd) > 2 - k: put(rd)
            room = o.srate - (1 if k == 2 else 0)
            while pend and a.n - n1 < room:
                pend.pop(0)()
                if lq.q[-1][0] == "S" and lq.q[-1][1] == ne1 and bar_due is None: bar_due = (ne1, u + 2)
        assert not rd
    while pend: pend.pop(0)()
    while ne1 < 2:
        assert ("S", ne1) in lq.q
        lq.wait(lambda t: t == ("S", ne1)); a("s_barrier"); ne1 += 1
    for op in stats_ops(2, True): op()
    lq.wait(lambda t: t == ("S", 2))
    a("s_barrier")
    if o.pubfirst: a("s_barrier")
    NB = nbar[0]
    Y, U, O = 72, 84, 96
    for nt in range(3):
        a.label(f"L_c_wait{nt}")
        a(f"ds_read_b32 v48, v134 offset:{4*nt}")
        a(f"ds_read_b128 v[40:43], v133 offset:{64*nt}")
        a(f"ds_read_b128 v[44:47], v133 offset:{192 + 64*nt}")
        a("s_waitcnt lgkmcnt(0)")
        a("v_cmp_eq_u32 vcc, 0, v48")
        H = [12*(i // 2) + 4*nt + 2*(i % 2) for i in range(6)]
        a(f"v_pk_fma_f32 {pr(Y)}, {pr(H[0])}, v[40:41], v[44:45]")
        a(f"s_cbranch_vccnz L_c_wait{nt}")
        if T and nt == 2: a("s_memtime s[88:89]")
        for i in range(1, 6): a(f"v_pk_fma_f32 {pr(Y+2*i)}, {pr(H[i])}, {pr(40+2*(i%2))}, {pr(44+2*(i%2))}")
        for i in range(6): a(f"v_pk_mul_f32 {pr(U+2*i)}, {pr(Y+2*i)}, {pr(Y+2*i)}")
        for i in range(6): a(f"v_pk_fma_f32 {pr(U+2*i)}, {pr(U+2*i)}, v[146:147], v[144:145]")
        for i in range(6): a(f"v_pk_mul_f32 {pr(U+2*i)}, {pr(U+2*i)}, {pr(Y+2*i)}")
        for i in range(12): a(f"v_exp_f32 v{U+i}, v{U+i}")
        for i in range(6): a(f"v_pk_add_f32 {pr(U+2*i)}, {pr(U+2*i)}, v[148:149]")
        Ot = O + 6*nt
        for t in range(3):
            for i in range(4*t, 4*t+4): a(f"v_rcp_f32 v{U+i}, v{U+i}")
            if t > 0: a(f"buffer_store_dwordx2 v[{Ot+2*t-2}:{Ot+2*t-1}], v135, s[32:35], 0 offen offset:{288*(t-1) + 32*nt}{o.stflag}")
            else: a("s_nop 0")
            for i in (2*t, 2*t+1): a(f"v_pk_mul_f32 {pr(Y+2*i)}, {pr(Y+2*i)}, {pr(U+2*i)}")
            for i in (2*t, 2*t+1): a(f"v_cvt_pk_bf16_f32 v{Ot+i}, v{Y+2*i}, v{Y+2*i+1}")
        a(f"buffer_store_dwordx2 v[{Ot+4}:{Ot+5}], v135, s[32:35], 0 offen offset:{576 + 32*nt}{o.stflag}")
    if T:
        a("s_memtime s[64:65]")
        a("s_waitcnt vmcnt(0)")
        a("s_memtime s[66:67]")
        a("s_memrealtime s[68:69]")
        a("s_cmp_lg_u32 s18, 0")
        a("s_cbranch_scc1 L_end")
        a("s_waitcnt lgkmcnt(0)")
        a("s_lshl_b32 s44, s2, 7")
        a("s_add_u32 s44, s44, 0x100040")
        a("v_mov_b32 v40, s60"); a("v_mov_b32 v41, s62"); a("v_mov_b32 v42, s64"); a("v_mov_b32 v43, s66")
        a("v_mov_b32 v44, s68"); a("v_mov_b32 v45, s88")
        a("v_mov_b32 v48, s44")
        a("s_mov_b64 exec, 1")
        a("global_store_dwordx4 v48, v[40:43], s[16:17]")
        a("global_store_dwordx2 v48, v[44:45], s[16:17] offset:16")
        a("v_mov_b32 v52, s80"); a("v_mov_b32 v53, s82"); a("v_mov_b32 v54, s84"); a("v_mov_b32 v55, s86")
        a("global_store_dwordx4 v48, v[52:55], s[16:17] offset:48")
    if o.light:
        a("s_cmp_lg_u32 s18, 0")
        a("s_cbranch_scc1 L_end")
        a("s_waitcnt vmcnt(0)")
        a("s_memrealtime s[68:69]")
        a("s_lshl_b32 s44, s2, 7")
        a("s_add_u32 s44, s44, 0x100040")
        a("v_mov_b32 v48, s44")
        a("s_waitcnt lgkmcnt(0)")
        a("v_mov_b32 v40, s62"); a("v_mov_b32 v41, s68")
        a("s_mov_b64 exec, 1")
        a("global_store_dwordx2 v48, v[40:41], s[16:17]")
    if o.probe == "done":
        a("s_waitcnt vmcnt(0)"); probe("done"); probe_end("L_probe_c", 4)
    a("s_endpgm")
    for nt in range(3):
        a.label(f"L_c_mask{nt}")
        for t in range(3):
            a(f"s_mov_b64 exec, s[{70+2*t}:{71+2*t}]")
            for h in (0, 2): a(f"v_mov_b64 {pr(12*t + 4*nt + h)}, 0")
        a("s_mov_b64 exec, -1")
        a(f"s_branch L_c_masked{nt}")

    a.label("L_wepi")
    if o.prio & 2: a("s_setprio 3")
    a("v_and_b32 v140, 7, v129")
    a("v_lshlrev_b32 v140, 4, v140")
    a("s_lshl_b32 s44, s49, 7")
    a("v_add_u32 v140, s44, v140")
    a(f"v_add_u32 v141, {PART}, v140")
    a("v_lshrrev_b32 v142, 3, v129")
    a("v_mul_u32_u24 v142, 384, v142")
    a("v_add_u32 v142, v142, v140")
    a("s_mul_i32 s50, s22, 384")
    a("v_lshlrev_b32 v143, 2, v135")
    a(f"v_add_u32 v143, {AB}, v143")
    a("s_lshl_b32 s44, s49, 2")
    a(f"s_add_u32 s44, s44, {FLAG}")
    a("v_mov_b32 v144, s44")
    a("v_mov_b32 v145, 1")
    a(f"s_mov_b32 s44, {f2u(1.0/L):#x}")
    a("s_mov_b32 s45, 0")
    a("s_movk_i32 s46, 3072"); a("s_movk_i32 s47, 9216"); a("s_movk_i32 s48, 15360")
    a("s_waitcnt vmcnt(0)")
    a("v_lshlrev_b32 v137, 16, v137")
    a("v_lshlrev_b32 v138, 16, v138")
    if o.gate:
        a("s_lshl_b32 s42, s23, 14")
        a("s_add_u32 s42, s42, 16256")
        a("v_mov_b32 v149, s42")
    a("s_mov_b64 exec, 0xff")
    a("s_mov_b32 s42, 0")
    a.label("L_w_e1")
    a("s_barrier")
    if o.trace:
        a("s_memtime s[88:89]"); a("s_waitcnt lgkmcnt(0)"); a("s_sub_u32 s88, s88, s60")
        a("s_add_u32 m0, s42, 61"); a("v_writelane_b32 v150, s88, m0")
    a("s_cmp_lg_u32 s42, s49")
    a("s_cbranch_scc1 L_w_nopub")
    if T: a("s_memtime s[86:87]")
    if T and o.rt2: a("s_memrealtime s[98:99]")
    probe("E1")
    for w in range(4): a(f"ds_read_b128 v[{40+4*w}:{43+4*w}], v141 offset:{384*w}")
    a("s_waitcnt lgkmcnt(2)" if not T else "s_waitcnt lgkmcnt(0)")
    a("v_pk_add_f32 v[40:41], v[40:41], v[44:45]")
    a("v_pk_add_f32 v[42:43], v[42:43], v[46:47]")
    a("s_waitcnt lgkmcnt(0)")
    a("v_pk_add_f32 v[48:49], v[48:49], v[52:53]")
    a("v_pk_add_f32 v[50:51], v[50:51], v[54:55]")
    a("v_pk_add_f32 v[40:41], v[40:41], v[48:49]")
    a("v_pk_add_f32 v[42:43], v[42:43], v[50:51]")
    for i in range(4): a(f"v_min_u32 v{40+i}, -2, v{40+i}")
    a("buffer_store_dwordx4 v[40:43], v140, s[36:39], s50 offen sc1")
    so = ["0", "s46", "s46", "s47", "s47", "s48"]; io = [0, 0, 3072, 0, 3072, 0]
    def polls():
        for k in range(6): a(f"buffer_load_dwordx4 v[{44+4*k}:{47+4*k}], v142, s[36:39], {so[k]} offen offset:{io[k]} sc1")
    if o.early:
        a(f"s_cmp_ge_u32 s49, {o.early}")
        a("s_cbranch_scc1 L_w_nopub")
        a("s_mov_b64 exec, -1")
        polls()
    a.label("L_w_nopub")
    if o.gate:
        a("s_cmp_lg_u32 s42, 1")
        a("s_cbranch_scc1 L_w_nogate")
        a("global_load_dword v148, v149, s[16:17] sc1")
        a.label("L_w_nogate")
    a("s_add_u32 s42, s42, 1")
    a("s_cmp_lt_u32 s42, 3")
    a("s_cbranch_scc1 L_w_e1")
    a("s_mov_b64 exec, -1")
    if o.pubfirst:
        a("s_barrier")
    if o.early:
        a(f"s_cmp_lt_u32 s49, {o.early}")
        a("s_cbranch_scc1 L_pollwait")
    if o.chain:
        a("s_cmp_eq_u32 s49, 0")
        a("s_cbranch_scc1 L_gate" if o.gate else "s_cbranch_scc1 L_poll")
        a(f"v_mov_b32 v146, {FLAG}")
        if o.chain == 2:
            a("s_lshl_b32 s42, s49, 2"); a("s_sub_u32 s42, s42, 4"); a("v_add_u32 v146, s42, v146")
        if o.chain == 3:
            a("s_cmp_eq_u32 s49, 1"); a("s_cbranch_scc1 L_poll"); a("v_add_u32 v146, 4, v146")
        if o.chain == 4:
            a("s_cmp_eq_u32 s49, 1"); a("s_cbranch_scc1 L_poll")
        a.label("L_chain")
        a("ds_read_b32 v147, v146")
        a("s_waitcnt lgkmcnt(0)")
        a("v_cmp_eq_u32 vcc, 0, v147")
        a("s_nop 0")
        a("s_cbranch_vccnz L_chain")
    a.label("L_poll")
    polls()
    a.label("L_pollwait")
    a("s_waitcnt vmcnt(4)")
    a("v_pk_add_f32 v[68:69], v[44:45], v[48:49]")
    a("v_pk_add_f32 v[70:71], v[46:47], v[50:51]")
    a("s_waitcnt vmcnt(2)")
    a("v_pk_add_f32 v[72:73], v[52:53], v[56:57]")
    a("v_pk_add_f32 v[74:75], v[54:55], v[58:59]")
    a("v_pk_add_f32 v[68:69], v[68:69], v[72:73]")
    a("v_pk_add_f32 v[70:71], v[70:71], v[74:75]")
    a("s_waitcnt vmcnt(0)")
    a("v_pk_add_f32 v[72:73], v[60:61], v[64:65]")
    a("v_pk_add_f32 v[74:75], v[62:63], v[66:67]")
    a("v_pk_add_f32 v[68:69], v[68:69], v[72:73]")
    a("v_pk_add_f32 v[70:71], v[70:71], v[74:75]")
    a("v_cmp_u_f32 vcc, v68, v69")
    a("v_cmp_u_f32 s[90:91], v70, v71")
    a("s_nop 0")
    a("s_or_b64 vcc, vcc, s[90:91]")
    a("s_cbranch_vccnz L_recheck")
    a.label("L_polled")
    probe("gath")
    if T and o.rt2: a("s_memrealtime s[100:101]")
    if T: a("s_memtime s[88:89]")
    a("v_permlane32_swap_b32 v68, v70")
    a("v_permlane32_swap_b32 v69, v71")
    a("v_add_f32 v68, v68, v70")
    a("v_add_f32 v69, v69, v71")
    a("s_nop 1")
    a("v_permlane16_swap_b32 v68, v69")
    a("v_add_f32 v68, v68, v69")
    a("s_nop 1")
    a("v_add_f32_dpp v68, v68, v68 row_ror:8 row_mask:0xf bank_mask:0xf")
    a("v_mul_f32 v68, s44, v68")
    a("v_mov_b32 v69, v68")
    a("s_nop 1")
    a("v_permlane16_swap_b32 v68, v69")
    a("v_fma_f32 v69, -v68, v68, v69")
    a("v_max_f32 v69, 0, v69")
    a(f"v_add_f32 v69, {f2u(1e-5):#x}, v69")
    a("v_rsq_f32 v69, v69")
    a("s_mov_b32 exec_lo, 0xff")
    a("s_mov_b32 exec_hi, 0xff")
    a("v_mul_f32 v69, v137, v69")
    a("v_fma_f32 v68, -v68, v69, v138")
    a("ds_write2_b32 v143, v69, v68 offset0:0 offset1:48")
    a("ds_write_b32 v144, v145")
    if T:
        a(f"s_cmp_lg_u32 s18, {o.twave}")
        a("s_cbranch_scc1 L_end")
        a("s_waitcnt lgkmcnt(0)")
        a("s_memtime s[90:91]")
        a("s_waitcnt lgkmcnt(0)")
        a("s_lshl_b32 s44, s2, 7")
        a("s_add_u32 s44, s44, 0x100000")
        regs = [60, 64] + list(range(66, 86, 2)) + [86, 88, 90, 62]
        for i, r in enumerate(regs): a(f"v_mov_b32 v{40+i}, s{r}")
        a("v_mov_b32 v60, s44")
        a("v_mov_b32 v62, s98"); a("v_mov_b32 v63, s100")
        a("s_mov_b64 exec, 1")
        for k in range(4): a(f"global_store_dwordx4 v60, v[{40+4*k}:{43+4*k}], s[16:17] offset:{16*k}")
        a("global_store_dwordx2 v60, v[62:63], s[16:17] offset:96")
        a("global_store_dword v60, v149, s[16:17] offset:108")
        if o.trace:
            a("s_mov_b64 exec, -1")
            a("s_lshl_b32 s44, s2, 9"); a("s_add_u32 s44, s44, 0x200000")
            a("v_lshlrev_b32 v60, 2, v129"); a("v_add_u32 v60, s44, v60")
            a("global_store_dword v60, v150, s[16:17]")
            a("global_store_dword v60, v151, s[16:17] offset:256")
    if o.probe and o.probe != "done": probe_end("L_probe_w", 0 if o.probe == "fixed" else 4)
    a("s_endpgm")
    if o.gate:
        a.label("L_gate")
        a.c("line 0 is first read once every workgroup of the group is close to its end")
        a("s_waitcnt vmcnt(0)")
        a("v_readfirstlane_b32 s42, v148")
        a("s_add_u32 s45, s45, 1")
        a("s_cmp_ge_u32 s42, 42")
        a("s_cbranch_scc1 L_poll")
        a("s_cmp_ge_u32 s45, 0x100000")
        a("s_cbranch_scc1 L_poll")
        a("global_load_dword v148, v149, s[16:17] sc1")
        a("s_branch L_gate")
    a.label("L_recheck")
    a.c("a NaN sum: a word not yet written, or a genuine NaN")
    for k in range(8): a(f"v_max3_u32 v{72+k}, v{44+3*k}, v{45+3*k}, v{46+3*k}")
    a("v_max3_u32 v72, v72, v73, v74"); a("v_max3_u32 v75, v75, v76, v77")
    a("v_max3_u32 v72, v72, v78, v79"); a("v_max_u32 v72, v72, v75")
    a("v_cmp_eq_u32 vcc, -1, v72")
    a("s_add_u32 s45, s45, 1")
    a("s_cmp_ge_u32 s45, 0x100000")
    a("s_cbranch_scc1 L_polled")
    a("s_cbranch_vccnz L_poll")
    a("s_branch L_polled")
    a.label("L_epi_end")

    XT = NS - 1 - R
    assert NB - 1 >= XT
    qw0, nxt0, qx0 = qw, nxt, qx
    for sl in range(3):
        wops, xops = schedule(sl)
        qw = qw0.copy(); nxt = nxt0
        a.label(f"L_wmain{sl}")
        def run_wops(n):
            for op in wops.pop(n, []): xround(qw, *op)
        run_wops(-2)
        if T:
            a("s_waitcnt lgkmcnt(0)"); a("s_sub_u32 s90, s90, s60"); a("v_mov_b32 v149, s90")
        qw.wait(lambda t: t == ("W", 0))
        while nxt < o.winit0: wload(qw, nxt); nxt += 1
        qw.wait(lambda t: t == ("W", 1))
        while nxt < o.winitp: wload(qw, nxt); nxt += 1
        if T: a("s_memtime s[64:65]")
        probe("P0")
        a("s_barrier")
        probe("P")
        while nxt < o.winit2: wload(qw, nxt); nxt += 1
        run_wops(-1)
        qw.wait(lambda t: t == ("W", 2))
        stamp = 66
        for n in range(NB):
            a("s_barrier")
            if T and n in o.stamps:
                a(f"s_memtime s[{stamp}:{stamp+1}]"); stamp += 2
                if n == 0 and not o.rt2: a("s_memrealtime s[98:99]")
                if n == o.stamps[-1] and not o.rt2: a("s_memrealtime s[100:101]")
            probe(f"b{n}")
            if o.trace:
                a("s_memtime s[88:89]"); a("s_waitcnt lgkmcnt(0)"); a("s_sub_u32 s88, s88, s60")
                a(f"v_writelane_b32 v{150 + n // 64}, s88, {n % 64}")
            busy = len(wops.get(n, []))
            run_wops(n)
            k = 0
            while nxt < NS and nxt <= n + R and (k < o.wrate - (busy > 0) or nxt <= n + o.wmin):
                wload(qw, nxt); nxt += 1; k += 1
            if n == XT:
                a("buffer_load_ushort v137, v134, s[52:55], 0 offen"); qw.issue("gb")
                a("buffer_load_ushort v138, v134, s[56:59], 0 offen"); qw.issue("gb")
            if n < NB - 1:
                assert all(m < nxt for m in WNEED if WNEED[m] <= n + 1), (n, nxt)
                qw.wait(lambda t: (WNEED[t[1]] <= n + 1) if isinstance(t, tuple) else (t in NEED and NEED[t] <= n + 1))
        assert not wops, wops
        assert nxt == NS
        a("s_branch L_wepi")

        qx = qx0.copy()
        a.label(f"L_xmain{sl}")
        def run_xops(n):
            for op in xops.pop(n, []):
                if op[0] == "x": xround(qx, *op[1:])
                elif op[0] == "rot": xrot(qx, *op[1:])
                else: xhalf(qx, *op[1:])
        run_xops(-2)
        if T: a("s_memtime s[66:67]"); a("s_memtime s[68:69]")
        a("s_barrier")
        run_xops(-1)
        for n in range(XT + 1):
            qx.wait(lambda t: t in NEED and NEED[t] <= n)
            a("s_barrier")
            run_xops(n)
        assert not xops, xops
        if sl < 2: a("s_branch L_xtail")
    a.label("L_xtail")
    a("s_lshl_b32 s44, s23, 5")
    a("v_mov_b32 v140, s44")
    a("global_load_dword v142, v140, s[14:15] sc1")
    if o.codepf:
        a("s_getpc_b64 s[56:57]")
        a.label("L_pc")
        a(f"s_sub_u32 s56, s56, L_pc-L_epi")
        a("s_subb_u32 s57, s57, 0")
        a("s_and_b32 s56, s56, 0xffffff80")
        a(f"s_mov_b32 s58, L_epi_end-L_epi+128")
        a("s_mov_b32 s59, 0x20000")
        a("v_lshlrev_b32 v147, 7, v129")
        a("buffer_load_dword v148, v147, s[56:59], 0 offen")
    for n in range(XT + 1, NB - (1 if o.gate == 2 else 0)): a("s_barrier")
    a("s_mov_b32 s45, 0")
    a.label("L_cnt_wait")
    a("s_waitcnt vmcnt(0)")
    a("v_readfirstlane_b32 s44, v142")
    a("s_add_u32 s45, s45, 1")
    a("s_cmp_ge_u32 s44, 42")
    a("s_cbranch_scc1 L_cnt_ok")
    a("s_cmp_ge_u32 s45, 0x100000")
    a("s_cbranch_scc1 L_cnt_ok")
    a("global_load_dword v142, v140, s[14:15] sc1")
    a("s_branch L_cnt_wait")
    a.label("L_cnt_ok")
    if o.gate:
        a("s_lshl_b32 s44, s23, 14")
        a("s_add_u32 s44, s44, 16256")
        a("v_mov_b32 v140, s44")
        a("v_mov_b32 v141, 1")
        a("s_mov_b64 exec, 1")
        a("global_atomic_add v140, v141, s[16:17]")
    if o.gate == 2: a("s_barrier")
    a("s_barrier")
    if T:
        a("s_waitcnt lgkmcnt(0)")
        a("s_lshl_b32 s44, s2, 7")
        a("s_add_u32 s44, s44, 0x100000")
        a("s_sub_u32 s64, s64, s60"); a("s_sub_u32 s66, s66, s60"); a("s_sub_u32 s68, s68, s60")
        a("v_mov_b32 v40, s64"); a("v_mov_b32 v41, s66"); a("v_mov_b32 v42, s68"); a("v_mov_b32 v43, s44")
        a("s_mov_b64 exec, 1")
        a("global_store_dwordx2 v43, v[40:41], s[16:17] offset:88")
        a("global_store_dword v43, v42, s[16:17] offset:104")
    a.label("L_end")
    a("s_endpgm")

    hdr = f"""; Fused strided conv1d (im2col GEMM on MFMA) + per-channel norm over time + tanh-GELU.
; @launch grid=(256,1,1) block=(512,1,1) lds={LDS}
.amdgcn_target "amdgcn-amd-amdhsa--gfx950"
.text
.globl {NAME}_kernel
.p2align 8
.type {NAME}_kernel,@function
{NAME}_kernel:
"""
    ftr = f""".section .rodata,"a"
.p2align 6
.amdhsa_kernel {NAME}_kernel
  .amdhsa_next_free_vgpr 208
  .amdhsa_next_free_sgpr 102
  .amdhsa_accum_offset 208
  .amdhsa_group_segment_fixed_size 0
  .amdhsa_kernarg_size 56
  .amdhsa_float_denorm_mode_32 3
  .amdhsa_user_sgpr_count 2
  .amdhsa_user_sgpr_kernarg_segment_ptr 1
  .amdhsa_system_sgpr_workgroup_id_x 1
.end_amdhsa_kernel
"""
    return hdr + a.text() + ftr

def options(argv=None):
    ap = argparse.ArgumentParser()
    ap.add_argument("-o", default=f"cdna_kernels/{NAME}.s")
    ap.add_argument("--timing", action="store_true")
    ap.add_argument("--probe", default="")
    ap.add_argument("--stamps", default="[0, 4, 8, 16, 24, 32, 40, 46, 50, 53]")
    for k, d in dict(light=0, trace=0, ring=15, x_nt=0, wpreq=2, winit=2, winit0=4, winitp=0, winit2=7, wrate=2, wmin=6,
                     brate=2, orate=2, rotrate=4, codepf=1, gate=0, prio=0, rt2=0, twave=6, chain=1, early=0, tsnake=1, kc=2, tdist=4, srate=3, wp0=1, atomstep=8, pubfirst=1).items():
        ap.add_argument("--" + k, type=int, default=d)
    ap.add_argument("--stflag", default="")
    ap.add_argument("--wflag", default="")
    ap.add_argument("--xflag", default="")
    ap.add_argument("--xcflag", default="")
    ap.add_argument("--tbars", default="[0,4,8]")
    ap.add_argument("--b1", default="[2,6,7]")
    ap.add_argument("--own", default="{1:(0,-1),3:(1,9),5:(2,17),8:(0,24),0:(1,32),4:(2,39)}")
    ap.add_argument("--oth", default="{7:-1,1:7,3:15,5:22,8:30,0:37,4:45}")
    o = ap.parse_args(argv)
    for k in ("b1", "own", "oth", "stamps", "tbars"): setattr(o, k, eval(getattr(o, k)))
    for k in ("stflag", "wflag", "xflag", "xcflag"):
        if getattr(o, k): setattr(o, k, " " + getattr(o, k))
    return o

if __name__ == "__main__":
    o = options()
    open(o.o, "w").write(gen(o))
```

```python
import sys, struct, argparse, re

NAME = "standalone__self_sup_conv_stem_wavlm__speech"
L = 7993
ARR = 12800
WB = 9 * ARR
import os
CLASS_ORDER = eval(os.environ.get('CORDER', '[4, 5, 3, 6, 2, 7, 1, 8, 0]'))
def nst(c): return 8 if c <= 4 else 7
STEPS = [(c, p) for c in CLASS_ORDER for p in range(8 if c <= 4 else 7)]
NS = len(STEPS)
def f2u(x): return struct.unpack('<I', struct.pack('<f', x))[0]
def lam_of(c): return (c >> 1, 4 + ((c + 1) >> 1))
NEED = {}
_n = 0
for _c in CLASS_ORDER:
    for _l in lam_of(_c): NEED.setdefault(_l, _n - 2)
    _n += 8 if _c <= 4 else 7
LAM_ORDER = sorted(NEED, key=lambda l: NEED[l])
class Asm:
    def __init__(s): s.lines = []; s.n = 0; s.wv = {}; s.wm = {}
    def __call__(s, t):
        s.lines.append("  " + t)
        m = re.match(r"s_nop (\d+)", t)
        s.n += int(m.group(1)) + 1 if m else 1
    def label(s, t): s.lines.append(t + ":")
    def c(s, t): s.lines.append("  ; " + t)
    def text(s): return "\n".join(s.lines) + "\n"
    def pad(s, since, need):
        d = s.n - since - 1
        if d < need: s(f"s_nop {need - d - 1}")
    def mfma(s, t, dst):
        s(t)
        for r in dst: s.wm[r] = s.n - 1
    def valu(s, t, rd=(), wr=(), dpp=()):
        for r in list(rd) + list(wr) + list(dpp):
            if r in s.wm: s.pad(s.wm[r] - 0, 8)
        for r in dpp:
            if r in s.wv: s.pad(s.wv[r], 2)
        s(t)
        for r in wr: s.wv[r] = s.n - 1

class Q:
    def __init__(s, a, name, cap): s.a = a; s.q = []; s.done = 0; s.name = name; s.cap = cap
    def copy(s):
        t = Q(s.a, s.name, s.cap); t.q = list(s.q); t.done = s.done; return t
    def issue(s, tag):
        s.q.append(tag)
        if s.name == "vmcnt": assert len(s.q) - s.done <= s.cap, "vmcnt overflow"
    def wait(s, pred):
        last = -1
        for i, t in enumerate(s.q):
            if pred(t): last = i
        if last < s.done: return
        s.a(f"s_waitcnt {s.name}({min(len(s.q) - 1 - last, s.cap)})")
        s.done = last + 1

def gen(o):
    R = o.ring
    NM = NS - sum(nst(c) for c in CLASS_ORDER[-o.kc:])
    TS = list(range(NM, NS)); NT_ = len(TS); D = o.tdist
    assert R >= NT_
    WNEED = {}
    PART = WB + R * 3072
    AB = PART + 1536
    FLAG = AB + 384
    LDS = FLAG + 16
    assert LDS <= 163840
    a = Asm()
    xnt = " nt" if o.x_nt else o.xcflag
    T = o.timing
    def probe(tag):
        if o.probe == tag: a("s_memrealtime s[98:99]"); a("s_waitcnt lgkmcnt(0)")
    def probe_end(lbl, mult):
        a("s_waitcnt lgkmcnt(0)")
        if mult:
            a("s_sub_u32 s44, s98, s62"); a(f"s_mul_i32 s44, s44, {mult}")
        else: a("s_mov_b32 s44, 0")
        a("s_add_u32 s44, s44, 3000")
        a.label(lbl)
        a("s_memrealtime s[46:47]"); a("s_waitcnt lgkmcnt(0)"); a("s_sub_u32 s46, s46, s62")
        a("s_cmp_lt_u32 s46, s44"); a(f"s_cbranch_scc1 {lbl}")
    a("s_load_dwordx8 s[4:11], s[0:1], 0")
    a("s_load_dwordx4 s[12:15], s[0:1], 32")
    a("s_load_dwordx2 s[16:17], s[0:1], 48")
    if T: a("s_memtime s[60:61]")
    if T or o.probe or o.light: a("s_memrealtime s[62:63]")
    a("s_cmp_ge_u32 s2, 256")
    a("s_cbranch_scc1 L_end")
    a("v_lshrrev_b32 v130, 6, v0")
    a("v_and_b32 v129, 63, v0")
    a("v_readfirstlane_b32 s18, v130")
    a("s_and_b32 s3, s2, 7")
    a("s_lshr_b32 s49, s2, 3")
    a("s_lshl_b32 s46, s3, 1")
    a("s_add_u32 s46, s46, s49")
    a("s_sub_u32 s46, s46, 30")
    a("s_mul_i32 s47, s3, 10")
    a("s_cmp_lt_u32 s49, 30")
    a("s_cselect_b32 s46, s49, s46")
    a("s_cselect_b32 s47, s47, 80")
    a("s_cselect_b32 s48, 0, s46")
    a("s_cmp_ge_u32 s48, 12")
    a("s_cbranch_scc1 L_end")
    a("s_mul_i32 s48, s46, 43")
    a("s_lshr_b32 s48, s48, 7")
    a("s_add_u32 s19, s47, s48")
    a("s_mul_i32 s48, s48, 3")
    a("s_sub_u32 s20, s46, s48")
    a("s_cmp_ge_u32 s19, 42")
    a("s_cselect_b32 s21, 1, 0")
    a("s_cselect_b32 s48, 42, 0")
    a("s_cselect_b32 s23, 3, 0")
    a("s_cselect_b32 s44, 4608000, 0")
    a("s_sub_u32 s22, s19, s48")
    a("s_add_u32 s23, s23, s20")
    a("s_mul_i32 s45, s22, 110592")
    a("s_add_u32 s44, s44, s45")
    a("s_sub_u32 s26, 4607712, s45")
    a("s_mov_b32 s27, 0x20000")
    a("v_lshrrev_b32 v136, 4, v129")
    a("v_lshrrev_b32 v132, 3, v129")
    a("v_and_b32 v133, 2, v132")
    a("v_and_b32 v134, 7, v129")
    a("v_xor_b32 v133, v133, v134")
    a("v_lshlrev_b32 v133, 4, v133")
    a("v_mul_u32_u24 v131, 1152, v132")
    a("v_add_u32 v131, v131, v133")
    a("s_mul_i32 s43, s20, 96")
    a("s_cmp_ge_u32 s18, 7")
    a("s_cselect_b32 s48, 0, s18")
    a("s_cmp_ge_u32 s48, 4")
    a("s_cbranch_scc1 L_wpro")
    a("s_add_u32 s46, s20, 1")
    a("s_cmp_eq_u32 s46, 3")
    a("s_cselect_b32 s46, 0, s46")
    a("s_add_u32 s47, s20, s46")
    a("s_sub_u32 s47, 3, s47")
    a("s_lshl_b32 s92, s20, 10"); a("s_lshl_b32 s93, s46, 10"); a("s_lshl_b32 s94, s47, 10")
    a("s_mul_i32 s95, s20, 9216"); a("s_mul_i32 s96, s46, 9216"); a("s_mul_i32 s97, s47, 9216")
    a("s_cmp_eq_u32 s18, 7")
    a("s_cbranch_scc1 L_xpro")

    def x_srd():
        a("s_add_u32 s24, s4, s44")
        a("s_addc_u32 s25, s5, 0")
    def pub_srd():
        a("s_lshl_b32 s44, s23, 14")
        a("s_add_u32 s36, s16, s44")
        a("s_addc_u32 s37, s17, 0")
        a("s_mov_b32 s38, 16128")
        a("s_mov_b32 s39, 0x20000")

    a.c("consumer prologue: wave w loads piece m = w of the first arrays")
    a("s_mul_i32 s46, s18, 3072")
    a("s_mul_i32 s47, s18, 27648")
    for d in range(3):
        a(f"s_add_u32 s{92+d}, s{92+d}, s46")
        a(f"s_add_u32 s{95+d}, s{95+d}, s47")
    for k, lam in enumerate(o.b1[:4]):
        a(f"s_cmp_eq_u32 s18, {3-k}")
        a(f"s_cselect_b32 s46, {lam*ARR + 12*1024}, s46")
        a(f"s_cselect_b32 s47, {12*9216 + lam*128}, s47")
    a("s_waitcnt lgkmcnt(0)")
    if T: a("s_memtime s[80:81]")
    x_srd()
    def cload(lam, d):
        a(f"s_add_u32 m0, s{92+d}, {lam*ARR}")
        a(f"s_add_u32 s50, s{95+d}, {lam*128}")
        a(f"buffer_load_dwordx4 v131, s[24:27], s50 offen{xnt if d == 0 else o.xflag} lds")
    for lam in o.b1[:2]: cload(lam, 0)
    a(f"s_cmp_lt_u32 s18, {4 - len(o.b1[:4])}")
    a("s_cbranch_scc1 L_c_nohalf")
    a("s_mov_b32 m0, s46")
    a("s_mov_b32 exec_hi, 0")
    a(f"buffer_load_dwordx4 v131, s[24:27], s47 offen{xnt} lds")
    a("s_mov_b32 exec_hi, -1")
    a.label("L_c_nohalf")
    for lam in o.b1[2:]: cload(lam, 0)
    if T: a("s_memtime s[82:83]")
    for d in (1, 2):
        for lam in LAM_ORDER[:2]: cload(lam, d)
    a("s_branch L_cons")

    a.label("L_wpro")
    qw = Q(a, "vmcnt", 63)
    a("v_subrev_u32 v140, 256, v0")
    a("v_mul_u32_u24 v141, 171, v140")
    a("v_lshrrev_b32 v141, 10, v141")
    a("v_mul_u32_u24 v142, 6, v141")
    a("v_sub_u32 v142, v140, v142")
    a("v_and_b32 v143, 0x13, v141")
    a("v_and_b32 v144, 4, v141")
    a("v_lshl_add_u32 v143, v144, 1, v143")
    a("v_and_b32 v144, 8, v141")
    a("v_lshrrev_b32 v144, 1, v144")
    a("v_add_u32 v143, v143, v144")
    a("v_mul_u32_u24 v143, 288, v143")
    a("v_lshl_add_u32 v139, v142, 4, v143")
    a("s_sub_u32 s49, s18, 4")
    a("s_lshl_b32 s51, s49, 10")
    a("s_sub_u32 s30, 622080, s43")
    a("s_mov_b32 s31, 0x20000")
    a("s_waitcnt lgkmcnt(0)")
    a("s_add_u32 s28, s6, s43")
    a("s_addc_u32 s29, s7, 0")
    probe("K")
    if o.prio & 4: a("s_setprio 3")
    def wload(q, n):
        c, p = STEPS[n]
        a(f"s_add_u32 m0, s51, {WB + (n % R)*3072}")
        a(f"s_mov_b32 s50, {(288*p + 32*c)*288}")
        a(f"buffer_load_dwordx4 v139, s[28:31], s50 offen{o.wflag} lds")
        q.issue(("W", n))
    nxt = 0
    while nxt < o.wpreq: wload(qw, nxt); nxt += 1
    a("s_mov_b32 s92, s51")
    a("s_mul_i32 s95, s49, 9216")
    x_srd()
    a("v_and_b32 v135, 7, v129")
    a("v_lshlrev_b32 v135, 1, v135")
    a("v_lshrrev_b32 v134, 5, v129")
    a("v_add_u32 v135, v135, v134")
    a("s_lshl_b32 s44, s49, 4")
    a("v_add_u32 v135, s44, v135")
    a("v_lshlrev_b32 v134, 1, v135")
    a("v_add_u32 v134, s43, v134")
    a("s_mov_b32 s52, s8"); a("s_mov_b32 s53, s9"); a("s_mov_b32 s54, 288"); a("s_mov_b32 s55, 0x20000")
    a("s_mov_b32 s56, s10"); a("s_mov_b32 s57, s11"); a("s_mov_b32 s58, 288"); a("s_mov_b32 s59, 0x20000")
    pub_srd()
    while nxt < o.winit: wload(qw, nxt); nxt += 1
    if T: a("s_memtime s[90:91]")
    a("s_cmp_eq_u32 s20, 1")
    a("s_cbranch_scc1 L_wmain1")
    a("s_cmp_eq_u32 s20, 2")
    a("s_cbranch_scc1 L_wmain2")
    a("s_branch L_wmain0")

    a.label("L_xpro")
    qx = Q(a, "vmcnt", 63)
    a("s_mov_b32 s30, 622080")
    a("s_mov_b32 s31, 0x20000")
    a("v_lshlrev_b32 v100, 8, v129")
    a("v_add_u32 v100, s2, v100")
    a("v_lshlrev_b32 v100, 7, v100")
    if o.wp0:
        a("v_lshl_add_u32 v141, v129, 5, s49")
        a("v_mul_u32_u24 v142, 911, v141")
        a("v_lshrrev_b32 v142, 16, v142")
        a("v_mul_u32_u24 v143, 73728, v142")
        a("v_lshl_add_u32 v143, v141, 7, v143")
        a(f"v_add_u32 v101, {CLASS_ORDER[0]*9216}, v143")
    def xround(q, lam, r, cold):
        a(f"s_add_u32 m0, s92, {lam*ARR + r*4096}")
        a(f"s_add_u32 s50, s95, {lam*128 + r*36864}")
        a(f"buffer_load_dwordx4 v131, s[24:27], s50 offen{xnt if cold else o.xflag} lds")
        q.issue(lam)
    def xrot(q, lam, d, m):
        a(f"s_add_u32 m0, s{80+d}, {lam*ARR + m*3072}")
        a(f"s_add_u32 s50, s{83+d}, {lam*128 + m*27648}")
        a(f"buffer_load_dwordx4 v131, s[24:27], s50 offen{o.xflag} lds")
        q.issue(lam)
    def xhalf(q, lam, cold=True):
        a(f"s_mov_b32 m0, {lam*ARR + 12*1024}")
        a(f"s_mov_b32 s50, {12*9216 + lam*128}")
        a("s_mov_b32 exec_hi, 0")
        a(f"buffer_load_dwordx4 v131, s[24:27], s50 offen{xnt if cold else o.xflag} lds")
        a("s_mov_b32 exec_hi, -1")
        q.issue(lam)
    a("s_waitcnt lgkmcnt(0)")
    a("s_mov_b32 s28, s6")
    a("s_mov_b32 s29, s7")
    if o.wp0:
        a("s_mov_b64 exec, 0x3ffff")
        a("buffer_load_dword v146, v101, s[28:31], 0 offen"); qx.issue("wp")
    a("s_mov_b64 exec, 0x7ffff")
    a("buffer_load_dword v146, v100, s[28:31], 0 offen"); qx.issue("wm")
    a("s_mov_b64 exec, -1")
    x_srd()
    for d in range(3):
        a(f"s_mov_b32 s{80+d}, s{92+d}"); a(f"s_mov_b32 s{83+d}, s{95+d}")
    a("s_movk_i32 s92, 3072")
    a("s_movk_i32 s95, 27648")
    a(f"v_mov_b32 v140, {FLAG}")
    for i in range(4): a(f"v_mov_b32 v{40+i}, 0")
    a("ds_write_b128 v140, v[40:43]")
    a("s_waitcnt lgkmcnt(0)")
    if T: a("s_memtime s[64:65]")
    a("s_cmp_eq_u32 s20, 1")
    a("s_cbranch_scc1 L_xmain1")
    a("s_cmp_eq_u32 s20, 2")
    a("s_cbranch_scc1 L_xmain2")
    a("s_branch L_xmain0")

    def schedule(sl):
        wops = {}; xops = {}
        for lam in LAM_ORDER[2:]:
            if lam in o.b1:
                k = 0
                for d in (1, 2):
                    for m in range(4):
                        xops.setdefault(o.oth[lam] + k // o.rotrate, []).append(("rot", lam, d, m)); k += 1
                continue
            for r in range(3):
                owner, at = o.own[lam][r] if isinstance(o.own[lam], list) else o.own[lam]
                cold = owner == sl
                st = at + r // o.brate if cold else o.oth[lam] + r // o.orate
                wops.setdefault(st, []).append((lam, r, cold))
                xops.setdefault(st, []).append(("x", lam, r, cold))
            xops.setdefault(st, []).append(("h", lam, cold))
        return wops, xops

    a.label("L_cons")
    pub_srd()
    a("s_cmp_lg_u32 s18, 0")
    a("s_cbranch_scc1 L_c_noclr")
    a.c("wave 0 clears this workgroup's hand-off words")
    a("v_lshlrev_b32 v142, 4, v129")
    a("s_mul_i32 s50, s22, 384")
    for i in range(4): a(f"v_mov_b32 v{40+i}, -1")
    if o.gate:
        a("s_mov_b64 exec, 0x1000000")
        a("v_mov_b32 v142, 16256")
        for i in range(4): a(f"v_mov_b32 v{40+i}, 0")
        a("s_cmp_eq_u32 s22, 0")
        a("s_mov_b32 s46, 0xffffff")
        a("s_cselect_b32 exec_lo, 0x1ffffff, s46")
        a("s_mov_b32 s38, 16384")
    else:
        a("s_mov_b64 exec, 0xffffff")
    a("buffer_store_dwordx4 v[40:43], v142, s[36:39], s50 offen sc1")
    a("s_mov_b64 exec, -1")
    a.label("L_c_noclr")
    a("v_and_b32 v139, 15, v129")
    a("v_mul_u32_u24 v140, 3, v139")
    a("v_mul_u32_u24 v141, 48, v130")
    a("v_add_u32 v140, v140, v141")
    a("v_and_b32 v141, 1, v140")
    a("v_lshrrev_b32 v142, 1, v140")
    a("v_cmp_eq_u32 vcc, 1, v141")
    for k in range(5):
        if k: a("v_add_u32 v142, 1, v142")
        a("v_and_b32 v143, 2, v142")
        a("v_xor_b32 v143, v143, v136")
        a("v_lshlrev_b32 v143, 4, v143")
        a(f"v_lshl_add_u32 v{100+k}, v142, 7, v143")
    a(f"v_mul_u32_u24 v105, {4*ARR+64}, v141")
    a(f"v_sub_u32 v106, {4*ARR+64}, v105")
    a(f"v_mul_u32_u24 v107, {5*ARR-64}, v141")
    a(f"v_sub_u32 v108, {5*ARR}, v107")
    a("v_add_u32 v107, 64, v107")
    for s in range(8):
        if s % 2 == 0:
            a(f"v_add_u32 v{112+s}, v{100+s//2}, v105")
            a(f"v_add_u32 v{120+s}, v{100+s//2}, v107")
        else:
            a(f"v_cndmask_b32 v143, v{100+s//2}, v{101+s//2}, vcc")
            a(f"v_add_u32 v{112+s}, v143, v106")
            a(f"v_add_u32 v{120+s}, v143, v108")
    a("v_lshrrev_b32 v141, 1, v136")
    a("v_lshlrev_b32 v141, 4, v141")
    a("v_and_b32 v142, 1, v136")
    a("v_lshl_add_u32 v141, v142, 2, v141")
    a("v_bfe_u32 v142, v129, 2, 2")
    a("v_add_u32 v141, v141, v142")
    a("v_mul_u32_u24 v141, 96, v141")
    a("v_and_b32 v142, 3, v129")
    a("v_lshl_add_u32 v141, v142, 3, v141")
    a(f"v_add_u32 v128, {WB}, v141")
    a("v_mul_u32_u24 v141, 384, v130")
    a("v_and_b32 v143, 12, v139")
    a("v_lshl_add_u32 v142, v136, 5, v143")
    a("v_add_u32 v132, v141, v142")
    a(f"v_add_u32 v132, {PART}, v132")
    a("v_lshlrev_b32 v133, 4, v136")
    a(f"v_add_u32 v133, {AB}, v133")
    a(f"v_mov_b32 v134, {FLAG}")
    a("v_mul_u32_u24 v135, 288, v140")
    a("v_lshl_add_u32 v135, v136, 3, v135")
    C0 = -2.0 * 0.7978845608028654 * 1.4426950408889634
    C1 = C0 * 0.044715
    a(f"v_mov_b32 v144, {f2u(C0):#x}"); a(f"v_mov_b32 v145, {f2u(C0):#x}")
    a(f"v_mov_b32 v146, {f2u(C1):#x}"); a(f"v_mov_b32 v147, {f2u(C1):#x}")
    a("v_mov_b32 v148, 1.0"); a("v_mov_b32 v149, 1.0")
    a(f"s_mul_i32 s44, s21, {L}")
    a("s_mul_i32 s45, s22, 192")
    a("s_add_u32 s44, s44, s45")
    a("s_mul_i32 s44, s44, 288")
    a("s_add_u32 s44, s44, s43")
    a("s_add_u32 s32, s12, s44")
    a("s_addc_u32 s33, s13, 0")
    a(f"s_sub_u32 s34, {L}, s45")
    a("s_mul_i32 s34, s34, 288")
    a("s_sub_u32 s34, s34, s43")
    a("s_mov_b32 s35, 0x20000")
    for t in range(3):
        a(f"s_movk_i32 s46, {L - 41*192 - t}")
        a(f"v_cmp_le_u32 s[{70+2*t}:{71+2*t}], s46, v140")
    a("s_lshl_b32 s44, s23, 5")
    a("v_mov_b32 v141, s44")
    a("v_mov_b32 v142, 1")
    a("s_waitcnt vmcnt(1)")
    a("s_cmp_eq_u32 s18, 0")
    a("s_cbranch_scc1 L_c_p")
    a("s_waitcnt vmcnt(0)")
    a.label("L_c_p")
    if T: a("s_memtime s[84:85]")
    if o.prio & 1: a("s_setprio 3")
    a("s_barrier")
    if T: a("s_memtime s[86:87]"); a("s_waitcnt lgkmcnt(0)")

    lq = Q(a, "lgkmcnt", 15)
    nbar = [0]
    def bar(): a("s_barrier"); nbar[0] += 1
    cl = CLASS_ORDER[-1]
    def freg(c, s): return (160 if (o.kc == 2 and c == cl) else 36) + 4*s
    def wread(n, nt, d):
        return [(f"ds_read_b64_tr_b16 v[{d+2*kh}:{d+2*kh+1}], v128 offset:{(n % R)*3072 + kh*768 + 32*nt}", ("W", n, nt)) for kh in range(2)]
    def xread(c, s):
        d = freg(c, s)
        return [(f"ds_read_b128 v[{d}:{d+3}], v{112 + 8*(c & 1) + (s & 7)} offset:{(c >> 1)*ARR + (512 if s >= 8 else 0)}", ("F", c, s))]
    def ureg(u): return 76 + 4*((u + 3*(NM % 3)) % 9)
    def uread(u): return wread(TS[u % NT_], u // NT_, ureg(u)) if u < 3*NT_ else []
    c0 = STEPS[NM][0]
    tailF = [(c0, s) for s in range(5, nst(c0) + 2)] + ([(cl, s) for s in range(nst(cl) + 2)] if o.kc == 2 else [])
    def reads_for(n):
        if n == NM: return xread(c0, 0) + xread(c0, 1) + xread(c0, 2) + uread(0) + uread(1) + uread(2)
        if n == NM + 1: return xread(c0, 3) + xread(c0, 4) + sum([uread(u) for u in range(3, D)], [])
        c, p = STEPS[n]
        r = []
        for s in ([0, 1, 2] if p == 0 else [p + 2]): r += xread(c, s)
        for nt in range(3): r += wread(n, nt, 76 + 12*(n % 3) + 4*nt)
        return r
    def put(rd):
        t, tag = rd.pop(0); a(t); lq.issue(tag)
        if tag[0] == "W": WNEED.setdefault(tag[1], nbar[0] - 1)
        else:
            for lam in lam_of(tag[1]): assert NEED[lam] <= max(nbar[0] - 1, -2 if nbar[0] == 0 else 0) or nbar[0] == 0
    rd = reads_for(0)
    while rd: put(rd)
    lq.wait(lambda t: t[0] == "F" or t == ("W", 0, 0))
    rd = reads_for(1)
    while rd: put(rd)
    for n in range(NM):
        c, p = STEPS[n]
        a.c(f"step {n}: class {c} p {p}")
        lq.wait(lambda t: (t[0] == "W" and t[1] == n) or (t[0] == "F" and t[1] == c and t[2] <= p + 2))
        bar()
        rd = reads_for(n + 2)
        bb = 76 + 12 * (n % 3)
        for t in range(3):
            for k in range(3):
                nt = k if t % 2 == 0 else 2 - k
                acc = 12*t + 4*nt
                f = freg(c, p + t)
                cin = "0" if n == 0 else f"v[{acc}:{acc+3}]"
                a.mfma(f"v_mfma_f32_16x16x32_bf16 v[{acc}:{acc+3}], v[{bb+4*nt}:{bb+4*nt+3}], v[{f}:{f+3}], {cin}", range(acc, acc+4))
                if rd: put(rd)
        assert not rd
        if n == o.atomstep:
            a("s_cmp_lg_u32 s18, 0")
            a("s_cbranch_scc1 L_c_noatom")
            a("s_waitcnt vmcnt(0)")
            a("s_mov_b64 exec, 1")
            a("global_atomic_add v141, v142, s[14:15]")
            a("s_mov_b64 exec, -1")
            a.label("L_c_noatom")
    a.label("L_epi")
    S1, S2, PQ, RR = 200, 204, 152, 156
    def pr(x): return f"v[{x}:{x+1}]"
    def stats_ops(nt, packed):
        ops = []
        A = [12*t + 4*nt for t in range(3)]
        def V(t, rd=(), wr=(), dpp=()): ops.append(lambda: a.valu(t, rd, wr, dpp))
        def mask():
            for k in range(3):
                for r in range(A[k], A[k]+4): a.pad(a.wm[r], 6)
            a("s_cmp_eq_u32 s22, 41")
            a(f"s_cbranch_scc1 L_c_mask{nt}")
            a.label(f"L_c_masked{nt}")
        ops.append(mask)
        if packed:
            for h in (0, 2): V(f"v_pk_mul_f32 {pr(S2+h)}, {pr(A[0]+h)}, {pr(A[0]+h)}", [A[0]+h, A[0]+h+1], [S2+h, S2+h+1])
            for h in (0, 2): V(f"v_pk_add_f32 {pr(S1+h)}, {pr(A[0]+h)}, {pr(A[1]+h)}", [A[1]+h, A[1]+h+1], [S1+h, S1+h+1])
            for h in (0, 2): V(f"v_pk_fma_f32 {pr(S2+h)}, {pr(A[1]+h)}, {pr(A[1]+h)}, {pr(S2+h)}", [], [S2+h, S2+h+1])
            for h in (0, 2): V(f"v_pk_add_f32 {pr(S1+h)}, {pr(S1+h)}, {pr(A[2]+h)}", [A[2]+h, A[2]+h+1], [S1+h, S1+h+1])
            for h in (0, 2): V(f"v_pk_fma_f32 {pr(S2+h)}, {pr(A[2]+h)}, {pr(A[2]+h)}, {pr(S2+h)}", [], [S2+h, S2+h+1])
        else:
            for h in range(4): V(f"v_mul_f32 v{S2+h}, v{A[0]+h}, v{A[0]+h}", [A[0]+h], [S2+h])
            for h in range(4): V(f"v_add_f32 v{S1+h}, v{A[0]+h}, v{A[1]+h}", [A[1]+h], [S1+h])
            for h in range(4): V(f"v_fmac_f32 v{S2+h}, v{A[1]+h}, v{A[1]+h}", [], [S2+h])
            for h in range(4): V(f"v_add_f32 v{S1+h}, v{S1+h}, v{A[2]+h}", [A[2]+h], [S1+h])
            for h in range(4): V(f"v_fmac_f32 v{S2+h}, v{A[2]+h}, v{A[2]+h}", [], [S2+h])
        for k, S in enumerate((S1, S2)):
            for m in range(2):
                d = PQ + 2*k + m
                V(f"v_add_f32_dpp v{d}, v{S+2*m}, v{S+2*m} row_shl:8 row_mask:0xf bank_mask:0x3", [], [d], [S+2*m])
                V(f"v_add_f32_dpp v{d}, v{S+2*m+1}, v{S+2*m+1} row_shr:8 row_mask:0xf bank_mask:0xc", [], [d], [S+2*m+1])
        for m in range(2): V(f"v_add_f32_dpp v{RR+m}, v{PQ+m}, v{PQ+m} row_shl:4 row_mask:0xf bank_mask:0x5", [], [RR+m], [PQ+m])
        for m in range(2): V(f"v_add_f32_dpp v{RR+m}, v{PQ+2+m}, v{PQ+2+m} row_shr:4 row_mask:0xf bank_mask:0xa", [], [RR+m], [PQ+2+m])
        for qp in ("[2,3,0,1]", "[1,0,3,2]"):
            for m in range(2): V(f"v_add_f32_dpp v{RR+m}, v{RR+m}, v{RR+m} quad_perm:{qp} row_mask:0xf bank_mask:0xf", [], [RR+m], [RR+m])
        def wr():
            a(f"ds_write2_b32 v132, v{RR}, v{RR+1} offset0:{32*nt} offset1:{32*nt+4}"); lq.issue(("S", nt))
        ops.append(wr)
        return ops
    pend = []; bar_due = None; ne1 = 0
    for u in range(3*NT_):
        nt, n = u // NT_, TS[u % NT_]
        c, p = STEPS[n]
        a.c(f"column tile {nt}, step {n}")
        n0 = a.n
        lq.wait(lambda t: t == ("W", n, nt) or (t[0] == "F" and t[1] == c and t[2] <= p + 2))
        if u in o.tbars: bar()
        if bar_due is not None and bar_due[1] <= u:
            lq.wait(lambda t: t == ("S", bar_due[0])); a("s_barrier"); bar_due = None; ne1 += 1
        head = a.n - n0
        rd = []
        for _ in range(2 if (o.kc == 2 and u < 4) else 1):
            if tailF: rd += xread(*tailF.pop(0))
        rd += uread(u + D)
        if u % NT_ == 1 and nt > 0: pend = pend + stats_ops(nt - 1, False)
        w = ureg(u)
        for k in range(3):
            t = k if (u % 2 == 0 or not o.tsnake) else 2 - k
            acc = 12*t + 4*nt
            f = freg(c, p + t)
            a.mfma(f"v_mfma_f32_16x16x32_bf16 v[{acc}:{acc+3}], v[{w}:{w+3}], v[{f}:{f+3}], v[{acc}:{acc+3}]", range(acc, acc+4))
            n1 = a.n
            if rd: put(rd)
            if len(rd) > 2 - k: put(rd)
            room = o.srate - (1 if k == 2 else 0)
            while pend and a.n - n1 < room:
                pend.pop(0)()
                if lq.q[-1][0] == "S" and lq.q[-1][1] == ne1 and bar_due is None: bar_due = (ne1, u + 2)
        assert not rd
    while pend: pend.pop(0)()
    while ne1 < 2:
        assert ("S", ne1) in lq.q
        lq.wait(lambda t: t == ("S", ne1)); a("s_barrier"); ne1 += 1
    for op in stats_ops(2, True): op()
    lq.wait(lambda t: t == ("S", 2))
    a("s_barrier")
    if o.pubfirst: a("s_barrier")
    NB = nbar[0]
    Y, U, O = 72, 84, 96
    for nt in range(3):
        a.label(f"L_c_wait{nt}")
        a(f"ds_read_b32 v48, v134 offset:{4*nt}")
        a(f"ds_read_b128 v[40:43], v133 offset:{64*nt}")
        a(f"ds_read_b128 v[44:47], v133 offset:{192 + 64*nt}")
        a("s_waitcnt lgkmcnt(0)")
        a("v_cmp_eq_u32 vcc, 0, v48")
        H = [12*(i // 2) + 4*nt + 2*(i % 2) for i in range(6)]
        a(f"v_pk_fma_f32 {pr(Y)}, {pr(H[0])}, v[40:41], v[44:45]")
        a(f"s_cbranch_vccnz L_c_wait{nt}")
        if T and nt == 2: a("s_memtime s[88:89]")
        for i in range(1, 6): a(f"v_pk_fma_f32 {pr(Y+2*i)}, {pr(H[i])}, {pr(40+2*(i%2))}, {pr(44+2*(i%2))}")
        for i in range(6): a(f"v_pk_mul_f32 {pr(U+2*i)}, {pr(Y+2*i)}, {pr(Y+2*i)}")
        for i in range(6): a(f"v_pk_fma_f32 {pr(U+2*i)}, {pr(U+2*i)}, v[146:147], v[144:145]")
        for i in range(6): a(f"v_pk_mul_f32 {pr(U+2*i)}, {pr(U+2*i)}, {pr(Y+2*i)}")
        for i in range(12): a(f"v_exp_f32 v{U+i}, v{U+i}")
        for i in range(6): a(f"v_pk_add_f32 {pr(U+2*i)}, {pr(U+2*i)}, v[148:149]")
        Ot = O + 6*nt
        for t in range(3):
            for i in range(4*t, 4*t+4): a(f"v_rcp_f32 v{U+i}, v{U+i}")
            if t > 0: a(f"buffer_store_dwordx2 v[{Ot+2*t-2}:{Ot+2*t-1}], v135, s[32:35], 0 offen offset:{288*(t-1) + 32*nt}{o.stflag}")
            else: a("s_nop 0")
            for i in (2*t, 2*t+1): a(f"v_pk_mul_f32 {pr(Y+2*i)}, {pr(Y+2*i)}, {pr(U+2*i)}")
            for i in (2*t, 2*t+1): a(f"v_cvt_pk_bf16_f32 v{Ot+i}, v{Y+2*i}, v{Y+2*i+1}")
        a(f"buffer_store_dwordx2 v[{Ot+4}:{Ot+5}], v135, s[32:35], 0 offen offset:{576 + 32*nt}{o.stflag}")
    if T:
        a("s_memtime s[64:65]")
        a("s_waitcnt vmcnt(0)")
        a("s_memtime s[66:67]")
        a("s_memrealtime s[68:69]")
        a("s_cmp_lg_u32 s18, 0")
        a("s_cbranch_scc1 L_end")
        a("s_waitcnt lgkmcnt(0)")
        a("s_lshl_b32 s44, s2, 7")
        a("s_add_u32 s44, s44, 0x100040")
        a("v_mov_b32 v40, s60"); a("v_mov_b32 v41, s62"); a("v_mov_b32 v42, s64"); a("v_mov_b32 v43, s66")
        a("v_mov_b32 v44, s68"); a("v_mov_b32 v45, s88")
        a("v_mov_b32 v48, s44")
        a("s_mov_b64 exec, 1")
        a("global_store_dwordx4 v48, v[40:43], s[16:17]")
        a("global_store_dwordx2 v48, v[44:45], s[16:17] offset:16")
        a("v_mov_b32 v52, s80"); a("v_mov_b32 v53, s82"); a("v_mov_b32 v54, s84"); a("v_mov_b32 v55, s86")
        a("global_store_dwordx4 v48, v[52:55], s[16:17] offset:48")
    if o.light:
        a("s_cmp_lg_u32 s18, 0")
        a("s_cbranch_scc1 L_end")
        a("s_waitcnt vmcnt(0)")
        a("s_memrealtime s[68:69]")
        a("s_lshl_b32 s44, s2, 7")
        a("s_add_u32 s44, s44, 0x100040")
        a("v_mov_b32 v48, s44")
        a("s_waitcnt lgkmcnt(0)")
        a("v_mov_b32 v40, s62"); a("v_mov_b32 v41, s68")
        a("s_mov_b64 exec, 1")
        a("global_store_dwordx2 v48, v[40:41], s[16:17]")
    if o.probe == "done":
        a("s_waitcnt vmcnt(0)"); probe("done"); probe_end("L_probe_c", 4)
    a("s_endpgm")
    for nt in range(3):
        a.label(f"L_c_mask{nt}")
        for t in range(3):
            a(f"s_mov_b64 exec, s[{70+2*t}:{71+2*t}]")
            for h in (0, 2): a(f"v_mov_b64 {pr(12*t + 4*nt + h)}, 0")
        a("s_mov_b64 exec, -1")
        a(f"s_branch L_c_masked{nt}")

    a.label("L_wepi")
    if o.prio & 2: a("s_setprio 3")
    a("v_and_b32 v140, 7, v129")
    a("v_lshlrev_b32 v140, 4, v140")
    a("s_lshl_b32 s44, s49, 7")
    a("v_add_u32 v140, s44, v140")
    a(f"v_add_u32 v141, {PART}, v140")
    a("v_lshrrev_b32 v142, 3, v129")
    a("v_mul_u32_u24 v142, 384, v142")
    a("v_add_u32 v142, v142, v140")
    a("s_mul_i32 s50, s22, 384")
    a("v_lshlrev_b32 v143, 2, v135")
    a(f"v_add_u32 v143, {AB}, v143")
    a("s_lshl_b32 s44, s49, 2")
    a(f"s_add_u32 s44, s44, {FLAG}")
    a("v_mov_b32 v144, s44")
    a("v_mov_b32 v145, 1")
    a(f"s_mov_b32 s44, {f2u(1.0/L):#x}")
    a("s_mov_b32 s45, 0")
    a("s_movk_i32 s46, 3072"); a("s_movk_i32 s47, 9216"); a("s_movk_i32 s48, 15360")
    a("s_waitcnt vmcnt(0)")
    a("v_lshlrev_b32 v137, 16, v137")
    a("v_lshlrev_b32 v138, 16, v138")
    if o.gate:
        a("s_lshl_b32 s42, s23, 14")
        a("s_add_u32 s42, s42, 16256")
        a("v_mov_b32 v149, s42")
    a("s_mov_b64 exec, 0xff")
    a("s_mov_b32 s42, 0")
    a.label("L_w_e1")
    a("s_barrier")
    if o.trace:
        a("s_memtime s[88:89]"); a("s_waitcnt lgkmcnt(0)"); a("s_sub_u32 s88, s88, s60")
        a("s_add_u32 m0, s42, 61"); a("v_writelane_b32 v150, s88, m0")
    a("s_cmp_lg_u32 s42, s49")
    a("s_cbranch_scc1 L_w_nopub")
    if T: a("s_memtime s[86:87]")
    if T and o.rt2: a("s_memrealtime s[98:99]")
    probe("E1")
    for w in range(4): a(f"ds_read_b128 v[{40+4*w}:{43+4*w}], v141 offset:{384*w}")
    a("s_waitcnt lgkmcnt(2)" if not T else "s_waitcnt lgkmcnt(0)")
    a("v_pk_add_f32 v[40:41], v[40:41], v[44:45]")
    a("v_pk_add_f32 v[42:43], v[42:43], v[46:47]")
    a("s_waitcnt lgkmcnt(0)")
    a("v_pk_add_f32 v[48:49], v[48:49], v[52:53]")
    a("v_pk_add_f32 v[50:51], v[50:51], v[54:55]")
    a("v_pk_add_f32 v[40:41], v[40:41], v[48:49]")
    a("v_pk_add_f32 v[42:43], v[42:43], v[50:51]")
    for i in range(4): a(f"v_min_u32 v{40+i}, -2, v{40+i}")
    a("buffer_store_dwordx4 v[40:43], v140, s[36:39], s50 offen sc1")
    so = ["0", "s46", "s46", "s47", "s47", "s48"]; io = [0, 0, 3072, 0, 3072, 0]
    def polls():
        for k in range(6): a(f"buffer_load_dwordx4 v[{44+4*k}:{47+4*k}], v142, s[36:39], {so[k]} offen offset:{io[k]} sc1")
    if o.early:
        a(f"s_cmp_ge_u32 s49, {o.early}")
        a("s_cbranch_scc1 L_w_nopub")
        a("s_mov_b64 exec, -1")
        polls()
    a.label("L_w_nopub")
    if o.gate:
        a("s_cmp_lg_u32 s42, 1")
        a("s_cbranch_scc1 L_w_nogate")
        a("global_load_dword v148, v149, s[16:17] sc1")
        a.label("L_w_nogate")
    a("s_add_u32 s42, s42, 1")
    a("s_cmp_lt_u32 s42, 3")
    a("s_cbranch_scc1 L_w_e1")
    a("s_mov_b64 exec, -1")
    if o.pubfirst == 2: a("s_waitcnt vmcnt(0)")
    if o.pubfirst:
        a("s_barrier")
    if o.pdelay:
        a("s_cmp_lg_u32 s49, 0")
        a("s_cbranch_scc1 L_nodelay")
        for _ in range(o.pdelay):
            a("ds_read_b32 v147, v144"); a("s_waitcnt lgkmcnt(0)")
        a.label("L_nodelay")
    if o.early:
        a(f"s_cmp_lt_u32 s49, {o.early}")
        a("s_cbranch_scc1 L_pollwait")
    if o.chain:
        a("s_cmp_eq_u32 s49, 0")
        a("s_cbranch_scc1 L_gate" if o.gate else "s_cbranch_scc1 L_poll")
        a(f"v_mov_b32 v146, {FLAG}")
        if o.chain == 2:
            a("s_lshl_b32 s42, s49, 2"); a("s_sub_u32 s42, s42, 4"); a("v_add_u32 v146, s42, v146")
        if o.chain == 3:
            a("s_cmp_eq_u32 s49, 1"); a("s_cbranch_scc1 L_poll"); a("v_add_u32 v146, 4, v146")
        if o.chain == 4:
            a("s_cmp_eq_u32 s49, 1"); a("s_cbranch_scc1 L_poll")
        a.label("L_chain")
        a("ds_read_b32 v147, v146")
        a("s_waitcnt lgkmcnt(0)")
        a("v_cmp_eq_u32 vcc, 0, v147")
        a("s_nop 0")
        a("s_cbranch_vccnz L_chain")
    a.label("L_poll")
    polls()
    a.label("L_pollwait")
    a("s_waitcnt vmcnt(4)")
    a("v_pk_add_f32 v[68:69], v[44:45], v[48:49]")
    a("v_pk_add_f32 v[70:71], v[46:47], v[50:51]")
    a("s_waitcnt vmcnt(2)")
    a("v_pk_add_f32 v[72:73], v[52:53], v[56:57]")
    a("v_pk_add_f32 v[74:75], v[54:55], v[58:59]")
    a("v_pk_add_f32 v[68:69], v[68:69], v[72:73]")
    a("v_pk_add_f32 v[70:71], v[70:71], v[74:75]")
    a("s_waitcnt vmcnt(0)")
    a("v_pk_add_f32 v[72:73], v[60:61], v[64:65]")
    a("v_pk_add_f32 v[74:75], v[62:63], v[66:67]")
    a("v_pk_add_f32 v[68:69], v[68:69], v[72:73]")
    a("v_pk_add_f32 v[70:71], v[70:71], v[74:75]")
    a("v_cmp_u_f32 vcc, v68, v69")
    a("v_cmp_u_f32 s[90:91], v70, v71")
    a("s_nop 0")
    a("s_or_b64 vcc, vcc, s[90:91]")
    a("s_cbranch_vccnz L_recheck")
    a.label("L_polled")
    probe("gath")
    if T and o.rt2: a("s_memrealtime s[100:101]")
    if T: a("s_memtime s[88:89]")
    a("v_permlane32_swap_b32 v68, v70")
    a("v_permlane32_swap_b32 v69, v71")
    a("v_add_f32 v68, v68, v70")
    a("v_add_f32 v69, v69, v71")
    a("s_nop 1")
    a("v_permlane16_swap_b32 v68, v69")
    a("v_add_f32 v68, v68, v69")
    a("s_nop 1")
    a("v_add_f32_dpp v68, v68, v68 row_ror:8 row_mask:0xf bank_mask:0xf")
    a("v_mul_f32 v68, s44, v68")
    a("v_mov_b32 v69, v68")
    a("s_nop 1")
    a("v_permlane16_swap_b32 v68, v69")
    a("v_fma_f32 v69, -v68, v68, v69")
    a("v_max_f32 v69, 0, v69")
    a(f"v_add_f32 v69, {f2u(1e-5):#x}, v69")
    a("v_rsq_f32 v69, v69")
    a("s_mov_b32 exec_lo, 0xff")
    a("s_mov_b32 exec_hi, 0xff")
    a("v_mul_f32 v69, v137, v69")
    a("v_fma_f32 v68, -v68, v69, v138")
    a("ds_write2_b32 v143, v69, v68 offset0:0 offset1:48")
    a("ds_write_b32 v144, v145")
    if T:
        a(f"s_cmp_lg_u32 s18, {o.twave}")
        a("s_cbranch_scc1 L_end")
        a("s_waitcnt lgkmcnt(0)")
        a("s_memtime s[90:91]")
        a("s_waitcnt lgkmcnt(0)")
        a("s_lshl_b32 s44, s2, 7")
        a("s_add_u32 s44, s44, 0x100000")
        regs = [60, 64] + list(range(66, 86, 2)) + [86, 88, 90, 62]
        for i, r in enumerate(regs): a(f"v_mov_b32 v{40+i}, s{r}")
        a("v_mov_b32 v60, s44")
        a("v_mov_b32 v62, s98"); a("v_mov_b32 v63, s100")
        a("s_mov_b64 exec, 1")
        for k in range(4): a(f"global_store_dwordx4 v60, v[{40+4*k}:{43+4*k}], s[16:17] offset:{16*k}")
        a("global_store_dwordx2 v60, v[62:63], s[16:17] offset:96")
        a("global_store_dword v60, v149, s[16:17] offset:108")
        if o.trace:
            a("s_mov_b64 exec, -1")
            a("s_lshl_b32 s44, s2, 9"); a("s_add_u32 s44, s44, 0x200000")
            a("v_lshlrev_b32 v60, 2, v129"); a("v_add_u32 v60, s44, v60")
            a("global_store_dword v60, v150, s[16:17]")
            a("global_store_dword v60, v151, s[16:17] offset:256")
    if o.probe and o.probe != "done": probe_end("L_probe_w", 0 if o.probe == "fixed" else 4)
    a("s_endpgm")
    if o.gate:
        a.label("L_gate")
        a.c("line 0 is first read once every workgroup of the group is close to its end")
        a("s_waitcnt vmcnt(0)")
        a("v_readfirstlane_b32 s42, v148")
        a("s_add_u32 s45, s45, 1")
        a("s_cmp_ge_u32 s42, 42")
        a("s_cbranch_scc1 L_poll")
        a("s_cmp_ge_u32 s45, 0x100000")
        a("s_cbranch_scc1 L_poll")
        a("global_load_dword v148, v149, s[16:17] sc1")
        a("s_branch L_gate")
    a.label("L_recheck")
    a.c("a NaN sum: a word not yet written, or a genuine NaN")
    for k in range(8): a(f"v_max3_u32 v{72+k}, v{44+3*k}, v{45+3*k}, v{46+3*k}")
    a("v_max3_u32 v72, v72, v73, v74"); a("v_max3_u32 v75, v75, v76, v77")
    a("v_max3_u32 v72, v72, v78, v79"); a("v_max_u32 v72, v72, v75")
    a("v_cmp_eq_u32 vcc, -1, v72")
    a("s_add_u32 s45, s45, 1")
    a("s_cmp_ge_u32 s45, 0x100000")
    a("s_cbranch_scc1 L_polled")
    a("s_cbranch_vccnz L_poll")
    a("s_branch L_polled")
    a.label("L_epi_end")

    XT = NS - 1 - R
    assert NB - 1 >= XT
    qw0, nxt0, qx0 = qw, nxt, qx
    for sl in range(3):
        wops, xops = schedule(sl)
        qw = qw0.copy(); nxt = nxt0
        a.label(f"L_wmain{sl}")
        def run_wops(n):
            for op in wops.pop(n, []): xround(qw, *op)
        run_wops(-2)
        if T:
            a("s_waitcnt lgkmcnt(0)"); a("s_sub_u32 s90, s90, s60"); a("v_mov_b32 v149, s90")
        qw.wait(lambda t: t == ("W", 0))
        while nxt < o.winit0: wload(qw, nxt); nxt += 1
        qw.wait(lambda t: t == ("W", 1))
        while nxt < o.winitp: wload(qw, nxt); nxt += 1
        if T: a("s_memtime s[64:65]")
        probe("P0")
        a("s_barrier")
        probe("P")
        while nxt < o.winit2: wload(qw, nxt); nxt += 1
        run_wops(-1)
        qw.wait(lambda t: t == ("W", 2))
        stamp = 66
        for n in range(NB):
            a("s_barrier")
            if T and n in o.stamps:
                a(f"s_memtime s[{stamp}:{stamp+1}]"); stamp += 2
                if n == 0 and not o.rt2: a("s_memrealtime s[98:99]")
                if n == o.stamps[-1] and not o.rt2: a("s_memrealtime s[100:101]")
            probe(f"b{n}")
            if o.trace:
                a("s_memtime s[88:89]"); a("s_waitcnt lgkmcnt(0)"); a("s_sub_u32 s88, s88, s60")
                a(f"v_writelane_b32 v{150 + n // 64}, s88, {n % 64}")
            busy = len(wops.get(n, []))
            run_wops(n)
            k = 0
            while nxt < NS and nxt <= n + R and (k < o.wrate - (busy > 0) or nxt <= n + o.wmin):
                wload(qw, nxt); nxt += 1; k += 1
            if n == XT:
                a("buffer_load_ushort v137, v134, s[52:55], 0 offen"); qw.issue("gb")
                a("buffer_load_ushort v138, v134, s[56:59], 0 offen"); qw.issue("gb")
            if n < NB - 1:
                assert all(m < nxt for m in WNEED if WNEED[m] <= n + 1), (n, nxt)
                qw.wait(lambda t: (WNEED[t[1]] <= n + 1) if isinstance(t, tuple) else (t in NEED and NEED[t] <= n + 1))
        assert not wops, wops
        assert nxt == NS
        a("s_branch L_wepi")

        qx = qx0.copy()
        a.label(f"L_xmain{sl}")
        def run_xops(n):
            for op in xops.pop(n, []):
                if op[0] == "x": xround(qx, *op[1:])
                elif op[0] == "rot": xrot(qx, *op[1:])
                else: xhalf(qx, *op[1:])
        run_xops(-2)
        if T: a("s_memtime s[66:67]"); a("s_memtime s[68:69]")
        a("s_barrier")
        run_xops(-1)
        for n in range(XT + 1):
            qx.wait(lambda t: t in NEED and NEED[t] <= n)
            a("s_barrier")
            run_xops(n)
        assert not xops, xops
        if sl < 2: a("s_branch L_xtail")
    a.label("L_xtail")
    a("s_lshl_b32 s44, s23, 5")
    a("v_mov_b32 v140, s44")
    a("global_load_dword v142, v140, s[14:15] sc1")
    if o.codepf:
        a("s_getpc_b64 s[56:57]")
        a.label("L_pc")
        a(f"s_sub_u32 s56, s56, L_pc-L_epi")
        a("s_subb_u32 s57, s57, 0")
        a("s_and_b32 s56, s56, 0xffffff80")
        a(f"s_mov_b32 s58, L_epi_end-L_epi+128")
        a("s_mov_b32 s59, 0x20000")
        a("v_lshlrev_b32 v147, 7, v129")
        a("buffer_load_dword v148, v147, s[56:59], 0 offen")
    for n in range(XT + 1, NB - (1 if o.gate == 2 else 0)): a("s_barrier")
    a("s_mov_b32 s45, 0")
    a.label("L_cnt_wait")
    a("s_waitcnt vmcnt(0)")
    a("v_readfirstlane_b32 s44, v142")
    a("s_add_u32 s45, s45, 1")
    a("s_cmp_ge_u32 s44, 42")
    a("s_cbranch_scc1 L_cnt_ok")
    a("s_cmp_ge_u32 s45, 0x100000")
    a("s_cbranch_scc1 L_cnt_ok")
    a("global_load_dword v142, v140, s[14:15] sc1")
    a("s_branch L_cnt_wait")
    a.label("L_cnt_ok")
    if o.gate:
        a("s_lshl_b32 s44, s23, 14")
        a("s_add_u32 s44, s44, 16256")
        a("v_mov_b32 v140, s44")
        a("v_mov_b32 v141, 1")
        a("s_mov_b64 exec, 1")
        a("global_atomic_add v140, v141, s[16:17]")
    if o.gate == 2: a("s_barrier")
    a("s_barrier")
    if T:
        a("s_waitcnt lgkmcnt(0)")
        a("s_lshl_b32 s44, s2, 7")
        a("s_add_u32 s44, s44, 0x100000")
        a("s_sub_u32 s64, s64, s60"); a("s_sub_u32 s66, s66, s60"); a("s_sub_u32 s68, s68, s60")
        a("v_mov_b32 v40, s64"); a("v_mov_b32 v41, s66"); a("v_mov_b32 v42, s68"); a("v_mov_b32 v43, s44")
        a("s_mov_b64 exec, 1")
        a("global_store_dwordx2 v43, v[40:41], s[16:17] offset:88")
        a("global_store_dword v43, v42, s[16:17] offset:104")
    a.label("L_end")
    a("s_endpgm")

    hdr = f"""; Fused strided conv1d (im2col GEMM on MFMA) + per-channel norm over time + tanh-GELU.
; @launch grid=(256,1,1) block=(512,1,1) lds={LDS}
.amdgcn_target "amdgcn-amd-amdhsa--gfx950"
.text
.globl {NAME}_kernel
.p2align 8
.type {NAME}_kernel,@function
{NAME}_kernel:
"""
    ftr = f""".section .rodata,"a"
.p2align 6
.amdhsa_kernel {NAME}_kernel
  .amdhsa_next_free_vgpr 208
  .amdhsa_next_free_sgpr 102
  .amdhsa_accum_offset 208
  .amdhsa_group_segment_fixed_size 0
  .amdhsa_kernarg_size 56
  .amdhsa_float_denorm_mode_32 3
  .amdhsa_user_sgpr_count 2
  .amdhsa_user_sgpr_kernarg_segment_ptr 1
  .amdhsa_system_sgpr_workgroup_id_x 1
.end_amdhsa_kernel
"""
    return hdr + a.text() + ftr

def options(argv=None):
    ap = argparse.ArgumentParser()
    ap.add_argument("-o", default=f"cdna_kernels/{NAME}.s")
    ap.add_argument("--timing", action="store_true")
    ap.add_argument("--probe", default="")
    ap.add_argument("--stamps", default="[0, 4, 8, 16, 24, 32, 40, 46, 50, 53]")
    for k, d in dict(light=0, trace=0, ring=15, x_nt=0, wpreq=2, winit=2, winit0=4, winitp=0, winit2=7, wrate=2, wmin=6,
                     brate=2, orate=2, rotrate=4, codepf=1, pdelay=0, gate=0, prio=0, rt2=0, twave=6, chain=1, early=0, tsnake=1, kc=2, tdist=4, srate=3, wp0=1, atomstep=8, pubfirst=1).items():
        ap.add_argument("--" + k, type=int, default=d)
    ap.add_argument("--stflag", default="")
    ap.add_argument("--wflag", default="")
    ap.add_argument("--xflag", default="")
    ap.add_argument("--xcflag", default="")
    ap.add_argument("--tbars", default="[0,4,8]")
    ap.add_argument("--b1", default="[2,6,7]")
    ap.add_argument("--own", default="{1:(0,-1),3:(1,9),5:(2,17),8:(0,24),0:(1,32),4:(2,39)}")
    ap.add_argument("--oth", default="{7:-1,1:7,3:15,5:22,8:30,0:37,4:45}")
    o = ap.parse_args(argv)
    for k in ("b1", "own", "oth", "stamps", "tbars"): setattr(o, k, eval(getattr(o, k)))
    for k in ("stflag", "wflag", "xflag", "xcflag"):
        if getattr(o, k): setattr(o, k, " " + getattr(o, k))
    return o

if __name__ == "__main__":
    o = options()
    open(o.o, "w").write(gen(o))
```

```python
import sys, struct, argparse, re

NAME = "standalone__self_sup_conv_stem_wavlm__speech"
L = 7993
ARR = 12800
WB = 9 * ARR
import os
CLASS_ORDER = eval(os.environ.get('CORDER', '[4, 5, 3, 6, 2, 7, 1, 8, 0]'))
def nst(c): return 8 if c <= 4 else 7
STEPS = [(c, p) for c in CLASS_ORDER for p in range(8 if c <= 4 else 7)]
NS = len(STEPS)
def f2u(x): return struct.unpack('<I', struct.pack('<f', x))[0]
def lam_of(c): return (c >> 1, 4 + ((c + 1) >> 1))
NEED = {}
_n = 0
for _c in CLASS_ORDER:
    for _l in lam_of(_c): NEED.setdefault(_l, _n - 2)
    _n += 8 if _c <= 4 else 7
LAM_ORDER = sorted(NEED, key=lambda l: NEED[l])
class Asm:
    def __init__(s): s.lines = []; s.n = 0; s.wv = {}; s.wm = {}
    def __call__(s, t):
        s.lines.append("  " + t)
        m = re.match(r"s_nop (\d+)", t)
        s.n += int(m.group(1)) + 1 if m else 1
    def label(s, t): s.lines.append(t + ":")
    def c(s, t): s.lines.append("  ; " + t)
    def text(s): return "\n".join(s.lines) + "\n"
    def pad(s, since, need):
        d = s.n - since - 1
        if d < need: s(f"s_nop {need - d - 1}")
    def mfma(s, t, dst):
        s(t)
        for r in dst: s.wm[r] = s.n - 1
    def valu(s, t, rd=(), wr=(), dpp=()):
        for r in list(rd) + list(wr) + list(dpp):
            if r in s.wm: s.pad(s.wm[r] - 0, 8)
        for r in dpp:
            if r in s.wv: s.pad(s.wv[r], 2)
        s(t)
        for r in wr: s.wv[r] = s.n - 1

class Q:
    def __init__(s, a, name, cap): s.a = a; s.q = []; s.done = 0; s.name = name; s.cap = cap
    def copy(s):
        t = Q(s.a, s.name, s.cap); t.q = list(s.q); t.done = s.done; return t
    def issue(s, tag):
        s.q.append(tag)
        if s.name == "vmcnt": assert len(s.q) - s.done <= s.cap, "vmcnt overflow"
    def wait(s, pred):
        last = -1
        for i, t in enumerate(s.q):
            if pred(t): last = i
        if last < s.done: return
        s.a(f"s_waitcnt {s.name}({min(len(s.q) - 1 - last, s.cap)})")
        s.done = last + 1

def gen(o):
    R = o.ring
    NM = NS - (o.tn or sum(nst(c) for c in CLASS_ORDER[-o.kc:]))
    TS = list(range(NM, NS)); NT_ = len(TS); D = o.tdist
    assert R >= NT_
    WNEED = {}
    XS = {NS - 12 + 4*i + k: (lam, lam*ARR + 3072*k) for i, lam in enumerate(o.xslots) for k in range(4)} if o.xslots else {}
    def slot(n): return XS[n][1] if n in XS else WB + (n % R)*3072
    PART = WB + R * 3072
    AB = PART + 1536
    FLAG = AB + 384
    LDS = FLAG + 16
    assert LDS <= 163840
    a = Asm()
    xnt = " nt" if o.x_nt else o.xcflag
    T = o.timing
    def probe(tag):
        if o.probe == tag: a("s_memrealtime s[98:99]"); a("s_waitcnt lgkmcnt(0)")
    def probe_end(lbl, mult):
        a("s_waitcnt lgkmcnt(0)")
        if mult:
            a("s_sub_u32 s44, s98, s62"); a(f"s_mul_i32 s44, s44, {mult}")
        else: a("s_mov_b32 s44, 0")
        a("s_add_u32 s44, s44, 3000")
        a.label(lbl)
        a("s_memrealtime s[46:47]"); a("s_waitcnt lgkmcnt(0)"); a("s_sub_u32 s46, s46, s62")
        a("s_cmp_lt_u32 s46, s44"); a(f"s_cbranch_scc1 {lbl}")
    a("s_load_dwordx8 s[4:11], s[0:1], 0")
    a("s_load_dwordx4 s[12:15], s[0:1], 32")
    a("s_load_dwordx2 s[16:17], s[0:1], 48")
    if T: a("s_memtime s[60:61]")
    if T or o.probe or o.light: a("s_memrealtime s[62:63]")
    a("s_cmp_ge_u32 s2, 256")
    a("s_cbranch_scc1 L_end")
    a("v_lshrrev_b32 v130, 6, v0")
    a("v_and_b32 v129, 63, v0")
    a("v_readfirstlane_b32 s18, v130")
    a("s_and_b32 s3, s2, 7")
    a("s_lshr_b32 s49, s2, 3")
    a("s_lshl_b32 s46, s3, 1")
    a("s_add_u32 s46, s46, s49")
    a("s_sub_u32 s46, s46, 30")
    a("s_mul_i32 s47, s3, 10")
    a("s_cmp_lt_u32 s49, 30")
    a("s_cselect_b32 s46, s49, s46")
    a("s_cselect_b32 s47, s47, 80")
    a("s_cselect_b32 s48, 0, s46")
    a("s_cmp_ge_u32 s48, 12")
    a("s_cbranch_scc1 L_end")
    a("s_mul_i32 s48, s46, 43")
    a("s_lshr_b32 s48, s48, 7")
    a("s_add_u32 s19, s47, s48")
    a("s_mul_i32 s48, s48, 3")
    a("s_sub_u32 s20, s46, s48")
    a("s_cmp_ge_u32 s19, 42")
    a("s_cselect_b32 s21, 1, 0")
    a("s_cselect_b32 s48, 42, 0")
    a("s_cselect_b32 s23, 3, 0")
    a("s_cselect_b32 s44, 4608000, 0")
    a("s_sub_u32 s22, s19, s48")
    a("s_add_u32 s23, s23, s20")
    a("s_mul_i32 s45, s22, 110592")
    a("s_add_u32 s44, s44, s45")
    a("s_sub_u32 s26, 4607712, s45")
    a("s_mov_b32 s27, 0x20000")
    a("v_lshrrev_b32 v136, 4, v129")
    a("v_lshrrev_b32 v132, 3, v129")
    a("v_and_b32 v133, 2, v132")
    a("v_and_b32 v134, 7, v129")
    a("v_xor_b32 v133, v133, v134")
    a("v_lshlrev_b32 v133, 4, v133")
    a("v_mul_u32_u24 v131, 1152, v132")
    a("v_add_u32 v131, v131, v133")
    a("s_mul_i32 s43, s20, 96")
    a("s_cmp_ge_u32 s18, 7")
    a("s_cselect_b32 s48, 0, s18")
    a("s_cmp_ge_u32 s48, 4")
    a("s_cbranch_scc1 L_wpro")
    a("s_add_u32 s46, s20, 1")
    a("s_cmp_eq_u32 s46, 3")
    a("s_cselect_b32 s46, 0, s46")
    a("s_add_u32 s47, s20, s46")
    a("s_sub_u32 s47, 3, s47")
    a("s_lshl_b32 s92, s20, 10"); a("s_lshl_b32 s93, s46, 10"); a("s_lshl_b32 s94, s47, 10")
    a("s_mul_i32 s95, s20, 9216"); a("s_mul_i32 s96, s46, 9216"); a("s_mul_i32 s97, s47, 9216")
    a("s_cmp_eq_u32 s18, 7")
    a("s_cbranch_scc1 L_xpro")

    def x_srd():
        a("s_add_u32 s24, s4, s44")
        a("s_addc_u32 s25, s5, 0")
    def pub_srd():
        a("s_lshl_b32 s44, s23, 14")
        a("s_add_u32 s36, s16, s44")
        a("s_addc_u32 s37, s17, 0")
        a("s_mov_b32 s38, 16128")
        a("s_mov_b32 s39, 0x20000")

    a.c("consumer prologue: wave w loads piece m = w of the first arrays")
    a("s_mul_i32 s46, s18, 3072")
    a("s_mul_i32 s47, s18, 27648")
    for d in range(3):
        a(f"s_add_u32 s{92+d}, s{92+d}, s46")
        a(f"s_add_u32 s{95+d}, s{95+d}, s47")
    for k, lam in enumerate(o.b1[:4]):
        a(f"s_cmp_eq_u32 s18, {3-k}")
        a(f"s_cselect_b32 s46, {lam*ARR + 12*1024}, s46")
        a(f"s_cselect_b32 s47, {12*9216 + lam*128}, s47")
    a("s_waitcnt lgkmcnt(0)")
    if T: a("s_memtime s[80:81]")
    x_srd()
    def cload(lam, d):
        a(f"s_add_u32 m0, s{92+d}, {lam*ARR}")
        a(f"s_add_u32 s50, s{95+d}, {lam*128}")
        a(f"buffer_load_dwordx4 v131, s[24:27], s50 offen{xnt if d == 0 else o.xflag} lds")
    for lam in o.b1[:2]: cload(lam, 0)
    a(f"s_cmp_lt_u32 s18, {4 - len(o.b1[:4])}")
    a("s_cbranch_scc1 L_c_nohalf")
    a("s_mov_b32 m0, s46")
    a("s_mov_b32 exec_hi, 0")
    a(f"buffer_load_dwordx4 v131, s[24:27], s47 offen{xnt} lds")
    a("s_mov_b32 exec_hi, -1")
    a.label("L_c_nohalf")
    for lam in o.b1[2:]: cload(lam, 0)
    if T: a("s_memtime s[82:83]")
    for d in (1, 2):
        for lam in LAM_ORDER[:2]: cload(lam, d)
    a("s_branch L_cons")

    a.label("L_wpro")
    qw = Q(a, "vmcnt", 63)
    a("v_subrev_u32 v140, 256, v0")
    a("v_mul_u32_u24 v141, 171, v140")
    a("v_lshrrev_b32 v141, 10, v141")
    a("v_mul_u32_u24 v142, 6, v141")
    a("v_sub_u32 v142, v140, v142")
    a("v_and_b32 v143, 0x13, v141")
    a("v_and_b32 v144, 4, v141")
    a("v_lshl_add_u32 v143, v144, 1, v143")
    a("v_and_b32 v144, 8, v141")
    a("v_lshrrev_b32 v144, 1, v144")
    a("v_add_u32 v143, v143, v144")
    a("v_mul_u32_u24 v143, 288, v143")
    a("v_lshl_add_u32 v139, v142, 4, v143")
    a("s_sub_u32 s49, s18, 4")
    a("s_lshl_b32 s51, s49, 10")
    a("s_sub_u32 s30, 622080, s43")
    a("s_mov_b32 s31, 0x20000")
    a("s_waitcnt lgkmcnt(0)")
    a("s_add_u32 s28, s6, s43")
    a("s_addc_u32 s29, s7, 0")
    probe("K")
    if o.prio & 4: a("s_setprio 3")
    def wload(q, n):
        c, p = STEPS[n]
        a(f"s_add_u32 m0, s51, {slot(n)}")
        a(f"s_mov_b32 s50, {(288*p + 32*c)*288}")
        a(f"buffer_load_dwordx4 v139, s[28:31], s50 offen{o.wflag} lds")
        q.issue(("W", n))
    nxt = 0
    while nxt < o.wpreq: wload(qw, nxt); nxt += 1
    a("s_mov_b32 s92, s51")
    a("s_mul_i32 s95, s49, 9216")
    x_srd()
    a("v_and_b32 v135, 7, v129")
    a("v_lshlrev_b32 v135, 1, v135")
    a("v_lshrrev_b32 v134, 5, v129")
    a("v_add_u32 v135, v135, v134")
    a("s_lshl_b32 s44, s49, 4")
    a("v_add_u32 v135, s44, v135")
    a("v_lshlrev_b32 v134, 1, v135")
    a("v_add_u32 v134, s43, v134")
    a("s_mov_b32 s52, s8"); a("s_mov_b32 s53, s9"); a("s_mov_b32 s54, 288"); a("s_mov_b32 s55, 0x20000")
    a("s_mov_b32 s56, s10"); a("s_mov_b32 s57, s11"); a("s_mov_b32 s58, 288"); a("s_mov_b32 s59, 0x20000")
    pub_srd()
    while nxt < o.winit: wload(qw, nxt); nxt += 1
    if T: a("s_memtime s[90:91]")
    a("s_cmp_eq_u32 s20, 1")
    a("s_cbranch_scc1 L_wmain1")
    a("s_cmp_eq_u32 s20, 2")
    a("s_cbranch_scc1 L_wmain2")
    a("s_branch L_wmain0")

    a.label("L_xpro")
    qx = Q(a, "vmcnt", 63)
    a("s_mov_b32 s30, 622080")
    a("s_mov_b32 s31, 0x20000")
    a("v_lshlrev_b32 v100, 8, v129")
    a("v_add_u32 v100, s2, v100")
    a("v_lshlrev_b32 v100, 7, v100")
    if o.wp0:
        a("v_lshl_add_u32 v141, v129, 5, s49")
        a("v_mul_u32_u24 v142, 911, v141")
        a("v_lshrrev_b32 v142, 16, v142")
        a("v_mul_u32_u24 v143, 73728, v142")
        a("v_lshl_add_u32 v143, v141, 7, v143")
        a(f"v_add_u32 v101, {CLASS_ORDER[0]*9216}, v143")
    def xround(q, lam, r, cold):
        a(f"s_add_u32 m0, s92, {lam*ARR + r*4096}")
        a(f"s_add_u32 s50, s95, {lam*128 + r*36864}")
        a(f"buffer_load_dwordx4 v131, s[24:27], s50 offen{xnt if cold else o.xflag} lds")
        q.issue(lam)
    def xrot(q, lam, d, m):
        a(f"s_add_u32 m0, s{80+d}, {lam*ARR + m*3072}")
        a(f"s_add_u32 s50, s{83+d}, {lam*128 + m*27648}")
        a(f"buffer_load_dwordx4 v131, s[24:27], s50 offen{o.xflag} lds")
        q.issue(lam)
    def xhalf(q, lam, cold=True):
        a(f"s_mov_b32 m0, {lam*ARR + 12*1024}")
        a(f"s_mov_b32 s50, {12*9216 + lam*128}")
        a("s_mov_b32 exec_hi, 0")
        a(f"buffer_load_dwordx4 v131, s[24:27], s50 offen{xnt if cold else o.xflag} lds")
        a("s_mov_b32 exec_hi, -1")
        q.issue(lam)
    a("s_waitcnt lgkmcnt(0)")
    a("s_mov_b32 s28, s6")
    a("s_mov_b32 s29, s7")
    if o.wp0:
        a("s_mov_b64 exec, 0x3ffff")
        a("buffer_load_dword v146, v101, s[28:31], 0 offen"); qx.issue("wp")
    a("s_mov_b64 exec, 0x7ffff")
    a("buffer_load_dword v146, v100, s[28:31], 0 offen"); qx.issue("wm")
    a("s_mov_b64 exec, -1")
    x_srd()
    for d in range(3):
        a(f"s_mov_b32 s{80+d}, s{92+d}"); a(f"s_mov_b32 s{83+d}, s{95+d}")
    a("s_movk_i32 s92, 3072")
    a("s_movk_i32 s95, 27648")
    a(f"v_mov_b32 v140, {FLAG}")
    for i in range(4): a(f"v_mov_b32 v{40+i}, 0")
    a("ds_write_b128 v140, v[40:43]")
    a("s_waitcnt lgkmcnt(0)")
    if T: a("s_memtime s[64:65]")
    a("s_cmp_eq_u32 s20, 1")
    a("s_cbranch_scc1 L_xmain1")
    a("s_cmp_eq_u32 s20, 2")
    a("s_cbranch_scc1 L_xmain2")
    a("s_branch L_xmain0")

    def schedule(sl):
        wops = {}; xops = {}
        for lam in LAM_ORDER[2:]:
            if lam in o.b1:
                k = 0
                for d in (1, 2):
                    for m in range(4):
                        xops.setdefault(o.oth[lam] + k // o.rotrate, []).append(("rot", lam, d, m)); k += 1
                continue
            for r in range(3):
                owner, at = o.own[lam][r] if isinstance(o.own[lam], list) else o.own[lam]
                cold = owner == sl
                st = at + r // o.brate if cold else o.oth[lam] + r // o.orate
                wops.setdefault(st, []).append((lam, r, cold))
                xops.setdefault(st, []).append(("x", lam, r, cold))
            xops.setdefault(st, []).append(("h", lam, cold))
        if not o.barb:
            def mp(d):
                r = {}
                for k in sorted(d): r.setdefault(k if k <= 0 else (k + 1) // 2, []).extend(d[k])
                return r
            wops, xops = mp(wops), mp(xops)
        return wops, xops

    a.label("L_cons")
    pub_srd()
    a("s_cmp_lg_u32 s18, 0")
    a("s_cbranch_scc1 L_c_noclr")
    a.c("wave 0 clears this workgroup's hand-off words")
    a("v_lshlrev_b32 v142, 4, v129")
    a("s_mul_i32 s50, s22, 384")
    for i in range(4): a(f"v_mov_b32 v{40+i}, -1")
    if o.gate:
        a("s_mov_b64 exec, 0x1000000")
        a("v_mov_b32 v142, 16256")
        for i in range(4): a(f"v_mov_b32 v{40+i}, 0")
        a("s_cmp_eq_u32 s22, 0")
        a("s_mov_b32 s46, 0xffffff")
        a("s_cselect_b32 exec_lo, 0x1ffffff, s46")
        a("s_mov_b32 s38, 16384")
    else:
        a("s_mov_b64 exec, 0xffffff")
    a("buffer_store_dwordx4 v[40:43], v142, s[36:39], s50 offen sc1")
    a("s_mov_b64 exec, -1")
    a.label("L_c_noclr")
    a("v_and_b32 v139, 15, v129")
    a("v_mul_u32_u24 v140, 3, v139")
    a("v_mul_u32_u24 v141, 48, v130")
    a("v_add_u32 v140, v140, v141")
    a("v_and_b32 v141, 1, v140")
    a("v_lshrrev_b32 v142, 1, v140")
    a("v_cmp_eq_u32 vcc, 1, v141")
    for k in range(5):
        if k: a("v_add_u32 v142, 1, v142")
        a("v_and_b32 v143, 2, v142")
        a("v_xor_b32 v143, v143, v136")
        a("v_lshlrev_b32 v143, 4, v143")
        a(f"v_lshl_add_u32 v{100+k}, v142, 7, v143")
    a(f"v_mul_u32_u24 v105, {4*ARR+64}, v141")
    a(f"v_sub_u32 v106, {4*ARR+64}, v105")
    a(f"v_mul_u32_u24 v107, {5*ARR-64}, v141")
    a(f"v_sub_u32 v108, {5*ARR}, v107")
    a("v_add_u32 v107, 64, v107")
    for s in range(8):
        if s % 2 == 0:
            a(f"v_add_u32 v{112+s}, v{100+s//2}, v105")
            a(f"v_add_u32 v{120+s}, v{100+s//2}, v107")
        else:
            a(f"v_cndmask_b32 v143, v{100+s//2}, v{101+s//2}, vcc")
            a(f"v_add_u32 v{112+s}, v143, v106")
            a(f"v_add_u32 v{120+s}, v143, v108")
    a("v_lshrrev_b32 v141, 1, v136")
    a("v_lshlrev_b32 v141, 4, v141")
    a("v_and_b32 v142, 1, v136")
    a("v_lshl_add_u32 v141, v142, 2, v141")
    a("v_bfe_u32 v142, v129, 2, 2")
    a("v_add_u32 v141, v141, v142")
    a("v_mul_u32_u24 v141, 96, v141")
    a("v_and_b32 v142, 3, v129")
    a("v_lshl_add_u32 v141, v142, 3, v141")
    a(f"v_add_u32 v128, {WB}, v141")
    a(f"v_add_u32 v137, {ARR}, v141")
    a("v_mul_u32_u24 v141, 384, v130")
    a("v_and_b32 v143, 12, v139")
    a("v_lshl_add_u32 v142, v136, 5, v143")
    a("v_add_u32 v132, v141, v142")
    a(f"v_add_u32 v132, {PART}, v132")
    a("v_lshlrev_b32 v133, 4, v136")
    a(f"v_add_u32 v133, {AB}, v133")
    a(f"v_mov_b32 v134, {FLAG}")
    a("v_mul_u32_u24 v135, 288, v140")
    a("v_lshl_add_u32 v135, v136, 3, v135")
    C0 = -2.0 * 0.7978845608028654 * 1.4426950408889634
    C1 = C0 * 0.044715
    a(f"v_mov_b32 v144, {f2u(C0):#x}"); a(f"v_mov_b32 v145, {f2u(C0):#x}")
    a(f"v_mov_b32 v146, {f2u(C1):#x}"); a(f"v_mov_b32 v147, {f2u(C1):#x}")
    a("v_mov_b32 v148, 1.0"); a("v_mov_b32 v149, 1.0")
    a(f"s_mul_i32 s44, s21, {L}")
    a("s_mul_i32 s45, s22, 192")
    a("s_add_u32 s44, s44, s45")
    a("s_mul_i32 s44, s44, 288")
    a("s_add_u32 s44, s44, s43")
    a("s_add_u32 s32, s12, s44")
    a("s_addc_u32 s33, s13, 0")
    a(f"s_sub_u32 s34, {L}, s45")
    a("s_mul_i32 s34, s34, 288")
    a("s_sub_u32 s34, s34, s43")
    a("s_mov_b32 s35, 0x20000")
    for t in range(3):
        a(f"s_movk_i32 s46, {L - 41*192 - t}")
        a(f"v_cmp_le_u32 s[{70+2*t}:{71+2*t}], s46, v140")
    a("s_lshl_b32 s44, s23, 5")
    a("v_mov_b32 v141, s44")
    a("v_mov_b32 v142, 1")
    a("s_waitcnt vmcnt(1)")
    a("s_cmp_eq_u32 s18, 0")
    a("s_cbranch_scc1 L_c_p")
    a("s_waitcnt vmcnt(0)")
    a.label("L_c_p")
    if T: a("s_memtime s[84:85]")
    if o.prio & 1: a("s_setprio 3")
    a("s_barrier")
    if T: a("s_memtime s[86:87]"); a("s_waitcnt lgkmcnt(0)")

    lq = Q(a, "lgkmcnt", 15)
    nbar = [0]
    FREEB = {}
    XNEED = {}
    DEADB = {}
    def bar():
        for n in set(t[1] for t in lq.q[:lq.done] if t[0] == "W"):
            if n not in FREEB and n < NM and sum(1 for t in lq.q[:lq.done] if t[0] == "W" and t[1] == n) == 6: FREEB[n] = nbar[0]
        for lam in range(9):
            users = [c for c in CLASS_ORDER if lam in lam_of(c)]
            if lam not in DEADB and all(("F", c, nst(c) + 1) in lq.q[:lq.done] for c in users): DEADB[lam] = nbar[0]
        a("s_barrier"); nbar[0] += 1
    cl = CLASS_ORDER[-1]
    BB = 208
    two = STEPS[NM][0] != cl
    def freg(c, s): return (160 if (two and c == cl) else 36) + 4*s
    def wread(n, nt, d):
        b, off = ("v137", slot(n) - ARR) if n in XS else ("v128", slot(n) - WB)
        assert 0 <= off and off + 768 + 64 < 65536
        return [(f"ds_read_b64_tr_b16 v[{d+2*kh}:{d+2*kh+1}], {b} offset:{off + kh*768 + 32*nt}", ("W", n, nt)) for kh in range(2)]
    def xread(c, s):
        d = freg(c, s)
        return [(f"ds_read_b128 v[{d}:{d+3}], v{112 + 8*(c & 1) + (s & 7)} offset:{(c >> 1)*ARR + (512 if s >= 8 else 0)}", ("F", c, s))]
    first = NM % 2
    groups = ([[0]] if first else []) + [[n, n + 1] for n in range(first, NM, 2)]
    def wreg(g, k, nt): return BB + 24*(g % 2) + 12*k + 4*nt
    def ureg(u): return BB + 4*((u + 6*(len(groups) % 2)) % 12)
    def uread(u): return wread(TS[u % NT_], u // NT_, ureg(u)) if u < 3*NT_ else []
    tailF = []
    haveF = set()
    def reads_for(g):
        if g == len(groups):
            for n in TS:
                c, p = STEPS[n]
                for s in range(p, p + 3):
                    if (c, s) not in haveF: haveF.add((c, s)); tailF.append((c, s))
            busy = {freg(STEPS[n][0], STEPS[n][1] + t) for n in groups[-1] for t in range(3)}
            r = []
            while tailF and len(r) < 5 and freg(*tailF[0]) not in busy: r += xread(*tailF.pop(0))
            return r + sum([uread(u) for u in range(D)], [])
        r = []
        for n in groups[g]:
            c, p = STEPS[n]
            for s in range(p, p + 3):
                if (c, s) not in haveF: haveF.add((c, s)); r += xread(c, s)
        for nt in range(3):
            ks = list(range(len(groups[g])))
            for k in (ks if nt % 2 == 0 else ks[::-1]): r += wread(groups[g][k], nt, wreg(g, k, nt))
        return r
    def put(rd):
        t, tag = rd.pop(0); a(t); lq.issue(tag)
        if tag[0] == "W": WNEED.setdefault(tag[1], nbar[0] - 1)
        else:
            for lam in lam_of(tag[1]): XNEED.setdefault(lam, nbar[0] - 1)
    rd = reads_for(0)
    while rd:
        put(rd)
        if len(lq.q) == 12: lq.wait(lambda t: t == lq.q[3])
    for g, grp in enumerate(groups):
        a.c(f"steps {grp}: (class, tap pair) {[STEPS[n] for n in grp]}")
        rd = reads_for(g + 1)
        K_ = len(grp)
        for nt in range(3):
            lq.wait(lambda t: (t[0] == "W" and t[1] in grp and t[2] == nt) or (t[0] == "F" and any(t[1] == STEPS[n][0] and t[2] <= STEPS[n][1] + 2 for n in grp)))
            if nt == 0 or (nt == 2 and K_ == 2 and (o.barb or g >= len(groups) - o.blast)): bar()
            l = [(t, (k if t % 2 == 0 else K_ - 1 - k)) for t in range(3) for k in range(K_)]
            if nt % 2: l = l[::-1]
            seen = set()
            for (t, k) in l:
                c, p = STEPS[grp[k]]
                acc = 12*t + 4*nt
                f = freg(c, p + t); w = wreg(g, k, nt)
                cin = "0" if (g == 0 and t not in seen) else f"v[{acc}:{acc+3}]"
                seen.add(t)
                a.mfma(f"v_mfma_f32_16x16x32_bf16 v[{acc}:{acc+3}], v[{w}:{w+3}], v[{f}:{f+3}], {cin}", range(acc, acc+4))
                if rd: put(rd)
                if K_ == 1 and rd: put(rd)
        assert not rd
        if o.atomstep in grp:
            a("s_cmp_lg_u32 s18, 0")
            a("s_cbranch_scc1 L_c_noatom")
            a("s_waitcnt vmcnt(0)")
            a("s_mov_b64 exec, 1")
            a("global_atomic_add v141, v142, s[14:15]")
            a("s_mov_b64 exec, -1")
            a.label("L_c_noatom")
    a.label("L_epi")
    S1, S2, PQ, RR = 200, 204, 152, 156
    def pr(x): return f"v[{x}:{x+1}]"
    def stats_ops(nt, packed):
        ops = []
        A = [12*t + 4*nt for t in range(3)]
        def V(t, rd=(), wr=(), dpp=()): ops.append(lambda: a.valu(t, rd, wr, dpp))
        def mask():
            for k in range(3):
                for r in range(A[k], A[k]+4): a.pad(a.wm[r], 6)
            a("s_cmp_eq_u32 s22, 41")
            a(f"s_cbranch_scc1 L_c_mask{nt}")
            a.label(f"L_c_masked{nt}")
        ops.append(mask)
        if packed:
            for h in (0, 2): V(f"v_pk_mul_f32 {pr(S2+h)}, {pr(A[0]+h)}, {pr(A[0]+h)}", [A[0]+h, A[0]+h+1], [S2+h, S2+h+1])
            for h in (0, 2): V(f"v_pk_add_f32 {pr(S1+h)}, {pr(A[0]+h)}, {pr(A[1]+h)}", [A[1]+h, A[1]+h+1], [S1+h, S1+h+1])
            for h in (0, 2): V(f"v_pk_fma_f32 {pr(S2+h)}, {pr(A[1]+h)}, {pr(A[1]+h)}, {pr(S2+h)}", [], [S2+h, S2+h+1])
            for h in (0, 2): V(f"v_pk_add_f32 {pr(S1+h)}, {pr(S1+h)}, {pr(A[2]+h)}", [A[2]+h, A[2]+h+1], [S1+h, S1+h+1])
            for h in (0, 2): V(f"v_pk_fma_f32 {pr(S2+h)}, {pr(A[2]+h)}, {pr(A[2]+h)}, {pr(S2+h)}", [], [S2+h, S2+h+1])
        else:
            for h in range(4): V(f"v_mul_f32 v{S2+h}, v{A[0]+h}, v{A[0]+h}", [A[0]+h], [S2+h])
            for h in range(4): V(f"v_add_f32 v{S1+h}, v{A[0]+h}, v{A[1]+h}", [A[1]+h], [S1+h])
            for h in range(4): V(f"v_fmac_f32 v{S2+h}, v{A[1]+h}, v{A[1]+h}", [], [S2+h])
            for h in range(4): V(f"v_add_f32 v{S1+h}, v{S1+h}, v{A[2]+h}", [A[2]+h], [S1+h])
            for h in range(4): V(f"v_fmac_f32 v{S2+h}, v{A[2]+h}, v{A[2]+h}", [], [S2+h])
        for k, S in enumerate((S1, S2)):
            for m in range(2):
                d = PQ + 2*k + m
                V(f"v_add_f32_dpp v{d}, v{S+2*m}, v{S+2*m} row_shl:8 row_mask:0xf bank_mask:0x3", [], [d], [S+2*m])
                V(f"v_add_f32_dpp v{d}, v{S+2*m+1}, v{S+2*m+1} row_shr:8 row_mask:0xf bank_mask:0xc", [], [d], [S+2*m+1])
        for m in range(2): V(f"v_add_f32_dpp v{RR+m}, v{PQ+m}, v{PQ+m} row_shl:4 row_mask:0xf bank_mask:0x5", [], [RR+m], [PQ+m])
        for m in range(2): V(f"v_add_f32_dpp v{RR+m}, v{PQ+2+m}, v{PQ+2+m} row_shr:4 row_mask:0xf bank_mask:0xa", [], [RR+m], [PQ+2+m])
        for qp in ("[2,3,0,1]", "[1,0,3,2]"):
            for m in range(2): V(f"v_add_f32_dpp v{RR+m}, v{RR+m}, v{RR+m} quad_perm:{qp} row_mask:0xf bank_mask:0xf", [], [RR+m], [RR+m])
        def wr():
            a(f"ds_write2_b32 v132, v{RR}, v{RR+1} offset0:{32*nt} offset1:{32*nt+4}"); lq.issue(("S", nt))
        ops.append(wr)
        return ops
    pend = []; bar_due = None; ne1 = 0
    for u in range(3*NT_):
        nt, n = u // NT_, TS[u % NT_]
        c, p = STEPS[n]
        a.c(f"column tile {nt}, step {n}")
        n0 = a.n
        lq.wait(lambda t: t == ("W", n, nt) or (t[0] == "F" and t[1] == c and t[2] <= p + 2))
        if u in o.tbars: bar()
        if bar_due is not None and bar_due[1] <= u:
            lq.wait(lambda t: t == ("S", bar_due[0])); a("s_barrier"); bar_due = None; ne1 += 1
        head = a.n - n0
        rd = []
        for _ in range(2 if (two and u < 4) else 1):
            if tailF: rd += xread(*tailF.pop(0))
        rd += uread(u + D)
        if u % NT_ == 1 and nt > 0: pend = pend + stats_ops(nt - 1, False)
        w = ureg(u)
        for k in range(3):
            t = k if (u % 2 == 0 or not o.tsnake) else 2 - k
            acc = 12*t + 4*nt
            f = freg(c, p + t)
            a.mfma(f"v_mfma_f32_16x16x32_bf16 v[{acc}:{acc+3}], v[{w}:{w+3}], v[{f}:{f+3}], v[{acc}:{acc+3}]", range(acc, acc+4))
            n1 = a.n
            if rd: put(rd)
            if len(rd) > 2 - k: put(rd)
            room = o.srate - (1 if k == 2 else 0)
            while pend and a.n - n1 < room:
                pend.pop(0)()
                if lq.q[-1][0] == "S" and lq.q[-1][1] == ne1 and bar_due is None: bar_due = (ne1, u + 2)
        assert not rd
    while pend: pend.pop(0)()
    while ne1 < 2:
        assert ("S", ne1) in lq.q
        lq.wait(lambda t: t == ("S", ne1)); a("s_barrier"); ne1 += 1
    for op in stats_ops(2, True): op()
    lq.wait(lambda t: t == ("S", 2))
    a("s_barrier")
    if o.pubfirst: a("s_barrier")
    NB = nbar[0]
    Y, U, O = 72, 84, 96
    for nt in range(3):
        a.label(f"L_c_wait{nt}")
        a(f"ds_read_b32 v48, v134 offset:{4*nt}")
        a(f"ds_read_b128 v[40:43], v133 offset:{64*nt}")
        a(f"ds_read_b128 v[44:47], v133 offset:{192 + 64*nt}")
        a("s_waitcnt lgkmcnt(0)")
        a("v_cmp_eq_u32 vcc, 0, v48")
        H = [12*(i // 2) + 4*nt + 2*(i % 2) for i in range(6)]
        a(f"v_pk_fma_f32 {pr(Y)}, {pr(H[0])}, v[40:41], v[44:45]")
        a(f"s_cbranch_vccnz L_c_wait{nt}")
        if T and nt == 2: a("s_memtime s[88:89]")
        for i in range(1, 6): a(f"v_pk_fma_f32 {pr(Y+2*i)}, {pr(H[i])}, {pr(40+2*(i%2))}, {pr(44+2*(i%2))}")
        for i in range(6): a(f"v_pk_mul_f32 {pr(U+2*i)}, {pr(Y+2*i)}, {pr(Y+2*i)}")
        for i in range(6): a(f"v_pk_fma_f32 {pr(U+2*i)}, {pr(U+2*i)}, v[146:147], v[144:145]")
        for i in range(6): a(f"v_pk_mul_f32 {pr(U+2*i)}, {pr(U+2*i)}, {pr(Y+2*i)}")
        for i in range(12): a(f"v_exp_f32 v{U+i}, v{U+i}")
        for i in range(6): a(f"v_pk_add_f32 {pr(U+2*i)}, {pr(U+2*i)}, v[148:149]")
        Ot = O + 6*nt
        for t in range(3):
            for i in range(4*t, 4*t+4): a(f"v_rcp_f32 v{U+i}, v{U+i}")
            if t > 0: a(f"buffer_store_dwordx2 v[{Ot+2*t-2}:{Ot+2*t-1}], v135, s[32:35], 0 offen offset:{288*(t-1) + 32*nt}{o.stflag}")
            else: a("s_nop 0")
            for i in (2*t, 2*t+1): a(f"v_pk_mul_f32 {pr(Y+2*i)}, {pr(Y+2*i)}, {pr(U+2*i)}")
            for i in (2*t, 2*t+1): a(f"v_cvt_pk_bf16_f32 v{Ot+i}, v{Y+2*i}, v{Y+2*i+1}")
        a(f"buffer_store_dwordx2 v[{Ot+4}:{Ot+5}], v135, s[32:35], 0 offen offset:{576 + 32*nt}{o.stflag}")
    if T:
        a("s_memtime s[64:65]")
        a("s_waitcnt vmcnt(0)")
        a("s_memtime s[66:67]")
        a("s_memrealtime s[68:69]")
        a("s_cmp_lg_u32 s18, 0")
        a("s_cbranch_scc1 L_end")
        a("s_waitcnt lgkmcnt(0)")
        a("s_lshl_b32 s44, s2, 7")
        a("s_add_u32 s44, s44, 0x100040")
        a("v_mov_b32 v40, s60"); a("v_mov_b32 v41, s62"); a("v_mov_b32 v42, s64"); a("v_mov_b32 v43, s66")
        a("v_mov_b32 v44, s68"); a("v_mov_b32 v45, s88")
        a("v_mov_b32 v48, s44")
        a("s_mov_b64 exec, 1")
        a("global_store_dwordx4 v48, v[40:43], s[16:17]")
        a("global_store_dwordx2 v48, v[44:45], s[16:17] offset:16")
        a("v_mov_b32 v52, s80"); a("v_mov_b32 v53, s82"); a("v_mov_b32 v54, s84"); a("v_mov_b32 v55, s86")
        a("global_store_dwordx4 v48, v[52:55], s[16:17] offset:48")
    if o.light:
        a("s_cmp_lg_u32 s18, 0")
        a("s_cbranch_scc1 L_end")
        a("s_waitcnt vmcnt(0)")
        a("s_memrealtime s[68:69]")
        a("s_lshl_b32 s44, s2, 7")
        a("s_add_u32 s44, s44, 0x100040")
        a("v_mov_b32 v48, s44")
        a("s_waitcnt lgkmcnt(0)")
        a("v_mov_b32 v40, s62"); a("v_mov_b32 v41, s68")
        a("s_mov_b64 exec, 1")
        a("global_store_dwordx2 v48, v[40:41], s[16:17]")
    if o.probe == "done":
        a("s_waitcnt vmcnt(0)"); probe("done"); probe_end("L_probe_c", 4)
    a("s_endpgm")
    for nt in range(3):
        a.label(f"L_c_mask{nt}")
        for t in range(3):
            a(f"s_mov_b64 exec, s[{70+2*t}:{71+2*t}]")
            for h in (0, 2): a(f"v_mov_b64 {pr(12*t + 4*nt + h)}, 0")
        a("s_mov_b64 exec, -1")
        a(f"s_branch L_c_masked{nt}")

    a.label("L_wepi")
    if o.prio & 2: a("s_setprio 3")
    a("v_and_b32 v140, 7, v129")
    a("v_lshlrev_b32 v140, 4, v140")
    a("s_lshl_b32 s44, s49, 7")
    a("v_add_u32 v140, s44, v140")
    a(f"v_add_u32 v141, {PART}, v140")
    a("v_lshrrev_b32 v142, 3, v129")
    a("v_mul_u32_u24 v142, 384, v142")
    a("v_add_u32 v142, v142, v140")
    a("s_mul_i32 s50, s22, 384")
    a("v_lshlrev_b32 v143, 2, v135")
    a(f"v_add_u32 v143, {AB}, v143")
    a("s_lshl_b32 s44, s49, 2")
    a(f"s_add_u32 s44, s44, {FLAG}")
    a("v_mov_b32 v144, s44")
    a("v_mov_b32 v145, 1")
    a(f"s_mov_b32 s44, {f2u(1.0/L):#x}")
    a("s_mov_b32 s45, 0")
    a("s_movk_i32 s46, 3072"); a("s_movk_i32 s47, 9216"); a("s_movk_i32 s48, 15360")
    a("s_waitcnt vmcnt(0)")
    a("v_lshlrev_b32 v137, 16, v137")
    a("v_lshlrev_b32 v138, 16, v138")
    if o.gate:
        a("s_lshl_b32 s42, s23, 14")
        a("s_add_u32 s42, s42, 16256")
        a("v_mov_b32 v149, s42")
    a("s_mov_b64 exec, 0xff")
    a("s_mov_b32 s42, 0")
    a.label("L_w_e1")
    a("s_barrier")
    if o.trace:
        a("s_memtime s[88:89]"); a("s_waitcnt lgkmcnt(0)"); a("s_sub_u32 s88, s88, s60")
        a("s_add_u32 m0, s42, 61"); a("v_writelane_b32 v150, s88, m0")
    a("s_cmp_lg_u32 s42, s49")
    a("s_cbranch_scc1 L_w_nopub")
    if T: a("s_memtime s[86:87]")
    if T and o.rt2: a("s_memrealtime s[98:99]")
    probe("E1")
    for w in range(4): a(f"ds_read_b128 v[{40+4*w}:{43+4*w}], v141 offset:{384*w}")
    a("s_waitcnt lgkmcnt(2)" if not T else "s_waitcnt lgkmcnt(0)")
    a("v_pk_add_f32 v[40:41], v[40:41], v[44:45]")
    a("v_pk_add_f32 v[42:43], v[42:43], v[46:47]")
    a("s_waitcnt lgkmcnt(0)")
    a("v_pk_add_f32 v[48:49], v[48:49], v[52:53]")
    a("v_pk_add_f32 v[50:51], v[50:51], v[54:55]")
    a("v_pk_add_f32 v[40:41], v[40:41], v[48:49]")
    a("v_pk_add_f32 v[42:43], v[42:43], v[50:51]")
    for i in range(4): a(f"v_min_u32 v{40+i}, -2, v{40+i}")
    a("buffer_store_dwordx4 v[40:43], v140, s[36:39], s50 offen sc1")
    so = ["0", "s46", "s46", "s47", "s47", "s48"]; io = [0, 0, 3072, 0, 3072, 0]
    def polls():
        for k in range(6): a(f"buffer_load_dwordx4 v[{44+4*k}:{47+4*k}], v142, s[36:39], {so[k]} offen offset:{io[k]} sc1")
    if o.early:
        a(f"s_cmp_ge_u32 s49, {o.early}")
        a("s_cbranch_scc1 L_w_nopub")
        a("s_mov_b64 exec, -1")
        polls()
    a.label("L_w_nopub")
    if o.gate:
        a("s_cmp_lg_u32 s42, 1")
        a("s_cbranch_scc1 L_w_nogate")
        a("global_load_dword v148, v149, s[16:17] sc1")
        a.label("L_w_nogate")
    a("s_add_u32 s42, s42, 1")
    a("s_cmp_lt_u32 s42, 3")
    a("s_cbranch_scc1 L_w_e1")
    a("s_mov_b64 exec, -1")
    if o.pubfirst == 2: a("s_waitcnt vmcnt(0)")
    if o.pubfirst:
        a("s_barrier")
    if o.pdelay:
        a("s_cmp_lg_u32 s49, 0")
        a("s_cbranch_scc1 L_nodelay")
        for _ in range(o.pdelay):
            a("ds_read_b32 v147, v144"); a("s_waitcnt lgkmcnt(0)")
        a.label("L_nodelay")
    if o.early:
        a(f"s_cmp_lt_u32 s49, {o.early}")
        a("s_cbranch_scc1 L_pollwait")
    if o.chain:
        a("s_cmp_eq_u32 s49, 0")
        a("s_cbranch_scc1 L_gate" if o.gate else "s_cbranch_scc1 L_poll")
        a(f"v_mov_b32 v146, {FLAG}")
        if o.chain == 2:
            a("s_lshl_b32 s42, s49, 2"); a("s_sub_u32 s42, s42, 4"); a("v_add_u32 v146, s42, v146")
        if o.chain == 3:
            a("s_cmp_eq_u32 s49, 1"); a("s_cbranch_scc1 L_poll"); a("v_add_u32 v146, 4, v146")
        if o.chain == 4:
            a("s_cmp_eq_u32 s49, 1"); a("s_cbranch_scc1 L_poll")
        a.label("L_chain")
        a("ds_read_b32 v147, v146")
        a("s_waitcnt lgkmcnt(0)")
        a("v_cmp_eq_u32 vcc, 0, v147")
        a("s_nop 0")
        a("s_cbranch_vccnz L_chain")
    a.label("L_poll")
    polls()
    a.label("L_pollwait")
    a("s_waitcnt vmcnt(4)")
    a("v_pk_add_f32 v[68:69], v[44:45], v[48:49]")
    a("v_pk_add_f32 v[70:71], v[46:47], v[50:51]")
    a("s_waitcnt vmcnt(2)")
    a("v_pk_add_f32 v[72:73], v[52:53], v[56:57]")
    a("v_pk_add_f32 v[74:75], v[54:55], v[58:59]")
    a("v_pk_add_f32 v[68:69], v[68:69], v[72:73]")
    a("v_pk_add_f32 v[70:71], v[70:71], v[74:75]")
    a("s_waitcnt vmcnt(0)")
    a("v_pk_add_f32 v[72:73], v[60:61], v[64:65]")
    a("v_pk_add_f32 v[74:75], v[62:63], v[66:67]")
    a("v_pk_add_f32 v[68:69], v[68:69], v[72:73]")
    a("v_pk_add_f32 v[70:71], v[70:71], v[74:75]")
    a("v_cmp_u_f32 vcc, v68, v69")
    a("v_cmp_u_f32 s[90:91], v70, v71")
    a("s_nop 0")
    a("s_or_b64 vcc, vcc, s[90:91]")
    a("s_cbranch_vccnz L_recheck")
    a.label("L_polled")
    probe("gath")
    if T and o.rt2: a("s_memrealtime s[100:101]")
    if T: a("s_memtime s[88:89]")
    a("v_permlane32_swap_b32 v68, v70")
    a("v_permlane32_swap_b32 v69, v71")
    a("v_add_f32 v68, v68, v70")
    a("v_add_f32 v69, v69, v71")
    a("s_nop 1")
    a("v_permlane16_swap_b32 v68, v69")
    a("v_add_f32 v68, v68, v69")
    a("s_nop 1")
    a("v_add_f32_dpp v68, v68, v68 row_ror:8 row_mask:0xf bank_mask:0xf")
    a("v_mul_f32 v68, s44, v68")
    a("v_mov_b32 v69, v68")
    a("s_nop 1")
    a("v_permlane16_swap_b32 v68, v69")
    a("v_fma_f32 v69, -v68, v68, v69")
    a("v_max_f32 v69, 0, v69")
    a(f"v_add_f32 v69, {f2u(1e-5):#x}, v69")
    a("v_rsq_f32 v69, v69")
    a("s_mov_b32 exec_lo, 0xff")
    a("s_mov_b32 exec_hi, 0xff")
    a("v_mul_f32 v69, v137, v69")
    a("v_fma_f32 v68, -v68, v69, v138")
    a("ds_write2_b32 v143, v69, v68 offset0:0 offset1:48")
    a("ds_write_b32 v144, v145")
    if T:
        a(f"s_cmp_lg_u32 s18, {o.twave}")
        a("s_cbranch_scc1 L_end")
        a("s_waitcnt lgkmcnt(0)")
        a("s_memtime s[90:91]")
        a("s_waitcnt lgkmcnt(0)")
        a("s_lshl_b32 s44, s2, 7")
        a("s_add_u32 s44, s44, 0x100000")
        regs = [60, 64] + list(range(66, 86, 2)) + [86, 88, 90, 62]
        for i, r in enumerate(regs): a(f"v_mov_b32 v{40+i}, s{r}")
        a("v_mov_b32 v60, s44")
        a("v_mov_b32 v62, s98"); a("v_mov_b32 v63, s100")
        a("s_mov_b64 exec, 1")
        for k in range(4): a(f"global_store_dwordx4 v60, v[{40+4*k}:{43+4*k}], s[16:17] offset:{16*k}")
        a("global_store_dwordx2 v60, v[62:63], s[16:17] offset:96")
        a("global_store_dword v60, v149, s[16:17] offset:108")
        if o.trace:
            a("s_mov_b64 exec, -1")
            a("s_lshl_b32 s44, s2, 9"); a("s_add_u32 s44, s44, 0x200000")
            a("v_lshlrev_b32 v60, 2, v129"); a("v_add_u32 v60, s44, v60")
            a("global_store_dword v60, v150, s[16:17]")
            a("global_store_dword v60, v151, s[16:17] offset:256")
    if o.probe and o.probe != "done": probe_end("L_probe_w", 0 if o.probe == "fixed" else 4)
    a("s_endpgm")
    if o.gate:
        a.label("L_gate")
        a.c("line 0 is first read once every workgroup of the group is close to its end")
        a("s_waitcnt vmcnt(0)")
        a("v_readfirstlane_b32 s42, v148")
        a("s_add_u32 s45, s45, 1")
        a("s_cmp_ge_u32 s42, 42")
        a("s_cbranch_scc1 L_poll")
        a("s_cmp_ge_u32 s45, 0x100000")
        a("s_cbranch_scc1 L_poll")
        a("global_load_dword v148, v149, s[16:17] sc1")
        a("s_branch L_gate")
    a.label("L_recheck")
    a.c("a NaN sum: a word not yet written, or a genuine NaN")
    for k in range(8): a(f"v_max3_u32 v{72+k}, v{44+3*k}, v{45+3*k}, v{46+3*k}")
    a("v_max3_u32 v72, v72, v73, v74"); a("v_max3_u32 v75, v75, v76, v77")
    a("v_max3_u32 v72, v72, v78, v79"); a("v_max_u32 v72, v72, v75")
    a("v_cmp_eq_u32 vcc, -1, v72")
    a("s_add_u32 s45, s45, 1")
    a("s_cmp_ge_u32 s45, 0x100000")
    a("s_cbranch_scc1 L_polled")
    a("s_cbranch_vccnz L_poll")
    a("s_branch L_polled")
    a.label("L_epi_end")

    def canissue(m, n): return DEADB[XS[m][0]] <= n if m in XS else (m < R or FREEB[m - R] <= n)
    XT = o.xt if o.xslots else FREEB[NS - 1 - R]
    assert NB - 1 >= XT and XT >= max(XNEED.values())
    if o.verbose: print('WNEED', WNEED, 'FREEB', FREEB, 'XNEED', XNEED, 'DEADB', DEADB, 'NB', NB, 'XT', XT)
    qw0, nxt0, qx0 = qw, nxt, qx
    for sl in range(3):
        wops, xops = schedule(sl)
        qw = qw0.copy(); nxt = nxt0
        a.label(f"L_wmain{sl}")
        def run_wops(n):
            for op in wops.pop(n, []): xround(qw, *op)
        run_wops(-2)
        if T:
            a("s_waitcnt lgkmcnt(0)"); a("s_sub_u32 s90, s90, s60"); a("v_mov_b32 v149, s90")
        qw.wait(lambda t: t == ("W", 0))
        while nxt < o.winit0: wload(qw, nxt); nxt += 1
        qw.wait(lambda t: isinstance(t, tuple) and WNEED[t[1]] < 0)
        while nxt < o.winitp: wload(qw, nxt); nxt += 1
        if T: a("s_memtime s[64:65]")
        probe("P0")
        a("s_barrier")
        probe("P")
        while nxt < o.winit2: wload(qw, nxt); nxt += 1
        run_wops(-1)
        assert all(m < nxt for m in WNEED if WNEED[m] <= 0)
        qw.wait(lambda t: isinstance(t, tuple) and WNEED[t[1]] <= 0)
        stamp = 66
        for n in range(NB):
            a("s_barrier")
            if T and n in o.stamps:
                a(f"s_memtime s[{stamp}:{stamp+1}]"); stamp += 2
                if n == 0 and not o.rt2: a("s_memrealtime s[98:99]")
                if n == o.stamps[-1] and not o.rt2: a("s_memrealtime s[100:101]")
            probe(f"b{n}")
            if o.trace and n >= NB - o.trace:
                a("s_memtime s[88:89]"); a("s_waitcnt lgkmcnt(0)"); a("s_sub_u32 s88, s88, s60")
                a(f"v_writelane_b32 v150, s88, {61 - (NB - n)}")
            busy = len(wops.get(n, []))
            run_wops(n)
            k = 0
            while nxt < NS and canissue(nxt, n) and (k < o.wrate - busy * o.bw or nxt <= (n if o.barb else 2*n) + o.wmin):
                wload(qw, nxt); nxt += 1; k += 1
            if n == XT:
                assert nxt == NS, (n, nxt)
                a("buffer_load_ushort v137, v134, s[52:55], 0 offen"); qw.issue("gb")
                a("buffer_load_ushort v138, v134, s[56:59], 0 offen"); qw.issue("gb")
            if n < NB - 1:
                assert all(m < nxt for m in WNEED if WNEED[m] <= n + 1), (n, nxt)
                qw.wait(lambda t: (WNEED[t[1]] <= n + 1) if isinstance(t, tuple) else (t in XNEED and XNEED[t] <= n + 1))
        assert not wops, wops
        assert nxt == NS
        a("s_branch L_wepi")

        qx = qx0.copy()
        a.label(f"L_xmain{sl}")
        def run_xops(n):
            for op in xops.pop(n, []):
                if op[0] == "x": xround(qx, *op[1:])
                elif op[0] == "rot": xrot(qx, *op[1:])
                else: xhalf(qx, *op[1:])
        run_xops(-2)
        if T: a("s_memtime s[66:67]"); a("s_memtime s[68:69]")
        a("s_barrier")
        run_xops(-1)
        for n in range(XT + 1):
            qx.wait(lambda t: t in XNEED and XNEED[t] <= n)
            a("s_barrier")
            run_xops(n)
        assert not xops, xops
        if sl < 2: a("s_branch L_xtail")
    a.label("L_xtail")
    a("s_lshl_b32 s44, s23, 5")
    a("v_mov_b32 v140, s44")
    a("global_load_dword v142, v140, s[14:15] sc1")
    if o.codepf:
        a("s_getpc_b64 s[56:57]")
        a.label("L_pc")
        a(f"s_sub_u32 s56, s56, L_pc-L_epi")
        a("s_subb_u32 s57, s57, 0")
        a("s_and_b32 s56, s56, 0xffffff80")
        a(f"s_mov_b32 s58, L_epi_end-L_epi+128")
        a("s_mov_b32 s59, 0x20000")
        a("v_lshlrev_b32 v147, 7, v129")
        a("buffer_load_dword v148, v147, s[56:59], 0 offen")
    for n in range(XT + 1, NB - (1 if o.gate == 2 else 0)): a("s_barrier")
    a("s_mov_b32 s45, 0")
    a.label("L_cnt_wait")
    a("s_waitcnt vmcnt(0)")
    a("v_readfirstlane_b32 s44, v142")
    a("s_add_u32 s45, s45, 1")
    a("s_cmp_ge_u32 s44, 42")
    a("s_cbranch_scc1 L_cnt_ok")
    a("s_cmp_ge_u32 s45, 0x100000")
    a("s_cbranch_scc1 L_cnt_ok")
    a("global_load_dword v142, v140, s[14:15] sc1")
    a("s_branch L_cnt_wait")
    a.label("L_cnt_ok")
    if o.gate:
        a("s_lshl_b32 s44, s23, 14")
        a("s_add_u32 s44, s44, 16256")
        a("v_mov_b32 v140, s44")
        a("v_mov_b32 v141, 1")
        a("s_mov_b64 exec, 1")
        a("global_atomic_add v140, v141, s[16:17]")
    if o.gate == 2: a("s_barrier")
    a("s_barrier")
    if T:
        a("s_waitcnt lgkmcnt(0)")
        a("s_lshl_b32 s44, s2, 7")
        a("s_add_u32 s44, s44, 0x100000")
        a("s_sub_u32 s64, s64, s60"); a("s_sub_u32 s66, s66, s60"); a("s_sub_u32 s68, s68, s60")
        a("v_mov_b32 v40, s64"); a("v_mov_b32 v41, s66"); a("v_mov_b32 v42, s68"); a("v_mov_b32 v43, s44")
        a("s_mov_b64 exec, 1")
        a("global_store_dwordx2 v43, v[40:41], s[16:17] offset:88")
        a("global_store_dword v43, v42, s[16:17] offset:104")
    a.label("L_end")
    a("s_endpgm")

    hdr = f"""; Fused strided conv1d (im2col GEMM on MFMA) + per-channel norm over time + tanh-GELU, one launch.
; @launch grid=(256,1,1) block=(512,1,1) lds={LDS}
.amdgcn_target "amdgcn-amd-amdhsa--gfx950"
.text
.globl {NAME}_kernel
.p2align 8
.type {NAME}_kernel,@function
{NAME}_kernel:
"""
    ftr = f""".section .rodata,"a"
.p2align 6
.amdhsa_kernel {NAME}_kernel
  .amdhsa_next_free_vgpr 256
  .amdhsa_next_free_sgpr 102
  .amdhsa_accum_offset 256
  .amdhsa_group_segment_fixed_size 0
  .amdhsa_kernarg_size 56
  .amdhsa_float_denorm_mode_32 3
  .amdhsa_user_sgpr_count 2
  .amdhsa_user_sgpr_kernarg_segment_ptr 1
  .amdhsa_system_sgpr_workgroup_id_x 1
.end_amdhsa_kernel
"""
    return hdr + a.text() + ftr

def options(argv=None):
    ap = argparse.ArgumentParser()
    ap.add_argument("-o", default=f"cdna_kernels/{NAME}.s")
    ap.add_argument("--timing", action="store_true")
    ap.add_argument("--probe", default="")
    ap.add_argument("--stamps", default="[0, 4, 8, 16, 24, 32, 40, 46, 50, 53]")
    for k, d in dict(light=0, trace=0, ring=15, x_nt=0, wpreq=2, winit=2, winit0=4, winitp=0, winit2=7, wrate=4, wmin=7,
                     brate=2, orate=2, rotrate=4, codepf=1, tn=0, xt=26, blast=1, barb=0, bw=1, verbose=0, pdelay=0, gate=0, prio=0, rt2=0, twave=6, chain=1, early=0, tsnake=1, kc=2, tdist=4, srate=3, wp0=1, atomstep=8, pubfirst=1).items():
        ap.add_argument("--" + k, type=int, default=d)
    ap.add_argument("--stflag", default="")
    ap.add_argument("--wflag", default="")
    ap.add_argument("--xflag", default="")
    ap.add_argument("--xcflag", default="")
    ap.add_argument("--tbars", default="[0,4,8]")
    ap.add_argument("--xslots", default="[]")
    ap.add_argument("--b1", default="[2,6,7]")
    ap.add_argument("--own", default="{1:(0,-1),3:(1,9),5:(2,17),8:(0,24),0:(1,32),4:(2,39)}")
    ap.add_argument("--oth", default="{7:-1,1:7,3:15,5:22,8:30,0:37,4:45}")
    o = ap.parse_args(argv)
    for k in ("b1", "own", "oth", "stamps", "tbars", "xslots"): setattr(o, k, eval(getattr(o, k)))
    for k in ("stflag", "wflag", "xflag", "xcflag"):
        if getattr(o, k): setattr(o, k, " " + getattr(o, k))
    return o

if __name__ == "__main__":
    o = options()
    open(o.o, "w").write(gen(o))
```

```python
import sys, struct, argparse, re

NAME = "standalone__self_sup_conv_stem_wavlm__speech"
L = 7993
ARR = 12800
WB = 9 * ARR
import os
CLASS_ORDER = eval(os.environ.get('CORDER', '[4, 5, 3, 6, 2, 7, 1, 8, 0]'))
def nst(c): return 8 if c <= 4 else 7
STEPS = [(c, p) for c in CLASS_ORDER for p in range(8 if c <= 4 else 7)]
NS = len(STEPS)
def f2u(x): return struct.unpack('<I', struct.pack('<f', x))[0]
def lam_of(c): return (c >> 1, 4 + ((c + 1) >> 1))
NEED = {}
_n = 0
for _c in CLASS_ORDER:
    for _l in lam_of(_c): NEED.setdefault(_l, _n - 2)
    _n += 8 if _c <= 4 else 7
LAM_ORDER = sorted(NEED, key=lambda l: NEED[l])
class Asm:
    def __init__(s): s.lines = []; s.n = 0; s.wv = {}; s.wm = {}
    def __call__(s, t):
        s.lines.append("  " + t)
        m = re.match(r"s_nop (\d+)", t)
        s.n += int(m.group(1)) + 1 if m else 1
    def label(s, t): s.lines.append(t + ":")
    def c(s, t): s.lines.append("  ; " + t)
    def text(s): return "\n".join(s.lines) + "\n"
    def pad(s, since, need):
        d = s.n - since - 1
        if d < need: s(f"s_nop {need - d - 1}")
    def mfma(s, t, dst):
        s(t)
        for r in dst: s.wm[r] = s.n - 1
    def valu(s, t, rd=(), wr=(), dpp=()):
        for r in list(rd) + list(wr) + list(dpp):
            if r in s.wm: s.pad(s.wm[r] - 0, 8)
        for r in dpp:
            if r in s.wv: s.pad(s.wv[r], 2)
        s(t)
        for r in wr: s.wv[r] = s.n - 1

class Q:
    def __init__(s, a, name, cap): s.a = a; s.q = []; s.done = 0; s.name = name; s.cap = cap
    def copy(s):
        t = Q(s.a, s.name, s.cap); t.q = list(s.q); t.done = s.done; return t
    def issue(s, tag):
        s.q.append(tag)
        if s.name == "vmcnt": assert len(s.q) - s.done <= s.cap, "vmcnt overflow"
    def wait(s, pred):
        last = -1
        for i, t in enumerate(s.q):
            if pred(t): last = i
        if last < s.done: return
        s.a(f"s_waitcnt {s.name}({min(len(s.q) - 1 - last, s.cap)})")
        s.done = last + 1

def gen(o):
    R = o.ring
    NM = NS - (o.tn or sum(nst(c) for c in CLASS_ORDER[-o.kc:]))
    TS = list(range(NM, NS)); NT_ = len(TS); D = o.tdist
    assert R >= NT_
    WNEED = {}
    XS = {NS - 12 + 4*i + k: (lam, lam*ARR + 3072*k) for i, lam in enumerate(o.xslots) for k in range(4)} if o.xslots else {}
    def slot(n): return XS[n][1] if n in XS else WB + (n % R)*3072
    PART = WB + R * 3072
    AB = PART + 1536
    FLAG = AB + 384
    LDS = FLAG + 16
    assert LDS <= 163840
    a = Asm()
    xnt = " nt" if o.x_nt else o.xcflag
    T = o.timing
    def probe(tag):
        if o.probe == tag: a("s_memrealtime s[98:99]"); a("s_waitcnt lgkmcnt(0)")
    def probe_end(lbl, mult):
        a("s_waitcnt lgkmcnt(0)")
        if mult:
            a("s_sub_u32 s44, s98, s62"); a(f"s_mul_i32 s44, s44, {mult}")
        else: a("s_mov_b32 s44, 0")
        a("s_add_u32 s44, s44, 3000")
        a.label(lbl)
        a("s_memrealtime s[46:47]"); a("s_waitcnt lgkmcnt(0)"); a("s_sub_u32 s46, s46, s62")
        a("s_cmp_lt_u32 s46, s44"); a(f"s_cbranch_scc1 {lbl}")
    a("s_load_dwordx8 s[4:11], s[0:1], 0")
    a("s_load_dwordx4 s[12:15], s[0:1], 32")
    a("s_load_dwordx2 s[16:17], s[0:1], 48")
    if T: a("s_memtime s[60:61]")
    if T or o.probe or o.light: a("s_memrealtime s[62:63]")
    a("s_cmp_ge_u32 s2, 256")
    a("s_cbranch_scc1 L_end")
    a("v_lshrrev_b32 v130, 6, v0")
    a("v_and_b32 v129, 63, v0")
    a("v_readfirstlane_b32 s18, v130")
    a("s_and_b32 s3, s2, 7")
    a("s_lshr_b32 s49, s2, 3")
    a("s_lshl_b32 s46, s3, 1")
    a("s_add_u32 s46, s46, s49")
    a("s_sub_u32 s46, s46, 30")
    a("s_mul_i32 s47, s3, 10")
    a("s_cmp_lt_u32 s49, 30")
    a("s_cselect_b32 s46, s49, s46")
    a("s_cselect_b32 s47, s47, 80")
    a("s_cselect_b32 s48, 0, s46")
    a("s_cmp_ge_u32 s48, 12")
    a("s_cbranch_scc1 L_end")
    a("s_mul_i32 s48, s46, 43")
    a("s_lshr_b32 s48, s48, 7")
    a("s_add_u32 s19, s47, s48")
    a("s_mul_i32 s48, s48, 3")
    a("s_sub_u32 s20, s46, s48")
    a("s_cmp_ge_u32 s19, 42")
    a("s_cselect_b32 s21, 1, 0")
    a("s_cselect_b32 s48, 42, 0")
    a("s_cselect_b32 s23, 3, 0")
    a("s_cselect_b32 s44, 4608000, 0")
    a("s_sub_u32 s22, s19, s48")
    a("s_add_u32 s23, s23, s20")
    a("s_mul_i32 s45, s22, 110592")
    a("s_add_u32 s44, s44, s45")
    a("s_sub_u32 s26, 4607712, s45")
    a("s_mov_b32 s27, 0x20000")
    a("v_lshrrev_b32 v136, 4, v129")
    a("v_lshrrev_b32 v132, 3, v129")
    a("v_and_b32 v133, 2, v132")
    a("v_and_b32 v134, 7, v129")
    a("v_xor_b32 v133, v133, v134")
    a("v_lshlrev_b32 v133, 4, v133")
    a("v_mul_u32_u24 v131, 1152, v132")
    a("v_add_u32 v131, v131, v133")
    a("s_mul_i32 s43, s20, 96")
    a("s_cmp_ge_u32 s18, 7")
    a("s_cselect_b32 s48, 0, s18")
    a("s_cmp_ge_u32 s48, 4")
    a("s_cbranch_scc1 L_wpro")
    a("s_add_u32 s46, s20, 1")
    a("s_cmp_eq_u32 s46, 3")
    a("s_cselect_b32 s46, 0, s46")
    a("s_add_u32 s47, s20, s46")
    a("s_sub_u32 s47, 3, s47")
    a("s_lshl_b32 s92, s20, 10"); a("s_lshl_b32 s93, s46, 10"); a("s_lshl_b32 s94, s47, 10")
    a("s_mul_i32 s95, s20, 9216"); a("s_mul_i32 s96, s46, 9216"); a("s_mul_i32 s97, s47, 9216")
    a("s_cmp_eq_u32 s18, 7")
    a("s_cbranch_scc1 L_xpro")

    def x_srd():
        a("s_add_u32 s24, s4, s44")
        a("s_addc_u32 s25, s5, 0")
    def pub_srd():
        a("s_lshl_b32 s44, s23, 14")
        a("s_add_u32 s36, s16, s44")
        a("s_addc_u32 s37, s17, 0")
        a("s_mov_b32 s38, 16128")
        a("s_mov_b32 s39, 0x20000")

    a.c("consumer prologue: wave w loads piece m = w of the first arrays")
    a("s_mul_i32 s46, s18, 3072")
    a("s_mul_i32 s47, s18, 27648")
    for d in range(3):
        a(f"s_add_u32 s{92+d}, s{92+d}, s46")
        a(f"s_add_u32 s{95+d}, s{95+d}, s47")
    for k, lam in enumerate(o.b1[:4]):
        a(f"s_cmp_eq_u32 s18, {3-k}")
        a(f"s_cselect_b32 s46, {lam*ARR + 12*1024}, s46")
        a(f"s_cselect_b32 s47, {12*9216 + lam*128}, s47")
    a("s_waitcnt lgkmcnt(0)")
    if T: a("s_memtime s[80:81]")
    x_srd()
    def cload(lam, d):
        a(f"s_add_u32 m0, s{92+d}, {lam*ARR}")
        a(f"s_add_u32 s50, s{95+d}, {lam*128}")
        a(f"buffer_load_dwordx4 v131, s[24:27], s50 offen{xnt if d == 0 else o.xflag} lds")
    for lam in o.b1[:2]: cload(lam, 0)
    a(f"s_cmp_lt_u32 s18, {4 - len(o.b1[:4])}")
    a("s_cbranch_scc1 L_c_nohalf")
    a("s_mov_b32 m0, s46")
    a("s_mov_b32 exec_hi, 0")
    a(f"buffer_load_dwordx4 v131, s[24:27], s47 offen{xnt} lds")
    a("s_mov_b32 exec_hi, -1")
    a.label("L_c_nohalf")
    for lam in o.b1[2:]: cload(lam, 0)
    if T: a("s_memtime s[82:83]")
    for d in (1, 2):
        for lam in LAM_ORDER[:2]: cload(lam, d)
    a("s_branch L_cons")

    a.label("L_wpro")
    qw = Q(a, "vmcnt", 63)
    a("v_subrev_u32 v140, 256, v0")
    a("v_mul_u32_u24 v141, 171, v140")
    a("v_lshrrev_b32 v141, 10, v141")
    a("v_mul_u32_u24 v142, 6, v141")
    a("v_sub_u32 v142, v140, v142")
    a("v_and_b32 v143, 0x13, v141")
    a("v_and_b32 v144, 4, v141")
    a("v_lshl_add_u32 v143, v144, 1, v143")
    a("v_and_b32 v144, 8, v141")
    a("v_lshrrev_b32 v144, 1, v144")
    a("v_add_u32 v143, v143, v144")
    a("v_mul_u32_u24 v143, 288, v143")
    a("v_lshl_add_u32 v139, v142, 4, v143")
    a("s_sub_u32 s49, s18, 4")
    a("s_lshl_b32 s51, s49, 10")
    a("s_sub_u32 s30, 622080, s43")
    a("s_mov_b32 s31, 0x20000")
    a("s_waitcnt lgkmcnt(0)")
    a("s_add_u32 s28, s6, s43")
    a("s_addc_u32 s29, s7, 0")
    probe("K")
    if o.prio & 4: a("s_setprio 3")
    def wload(q, n):
        c, p = STEPS[n]
        a(f"s_add_u32 m0, s51, {slot(n)}")
        a(f"s_mov_b32 s50, {(288*p + 32*c)*288}")
        a(f"buffer_load_dwordx4 v139, s[28:31], s50 offen{o.wflag} lds")
        q.issue(("W", n))
    nxt = 0
    while nxt < o.wpreq: wload(qw, nxt); nxt += 1
    a("s_mov_b32 s92, s51")
    a("s_mul_i32 s95, s49, 9216")
    x_srd()
    a("v_and_b32 v135, 7, v129")
    a("v_lshlrev_b32 v135, 1, v135")
    a("v_lshrrev_b32 v134, 5, v129")
    a("v_add_u32 v135, v135, v134")
    a("s_lshl_b32 s44, s49, 4")
    a("v_add_u32 v135, s44, v135")
    a("v_lshlrev_b32 v134, 1, v135")
    a("v_add_u32 v134, s43, v134")
    a("s_mov_b32 s52, s8"); a("s_mov_b32 s53, s9"); a("s_mov_b32 s54, 288"); a("s_mov_b32 s55, 0x20000")
    a("s_mov_b32 s56, s10"); a("s_mov_b32 s57, s11"); a("s_mov_b32 s58, 288"); a("s_mov_b32 s59, 0x20000")
    pub_srd()
    while nxt < o.winit: wload(qw, nxt); nxt += 1
    if T: a("s_memtime s[90:91]")
    a("s_cmp_eq_u32 s20, 1")
    a("s_cbranch_scc1 L_wmain1")
    a("s_cmp_eq_u32 s20, 2")
    a("s_cbranch_scc1 L_wmain2")
    a("s_branch L_wmain0")

    a.label("L_xpro")
    qx = Q(a, "vmcnt", 63)
    a("s_mov_b32 s30, 622080")
    a("s_mov_b32 s31, 0x20000")
    a("v_lshlrev_b32 v100, 8, v129")
    a("v_add_u32 v100, s2, v100")
    a("v_lshlrev_b32 v100, 7, v100")
    if o.wp0:
        a("v_lshl_add_u32 v141, v129, 5, s49")
        a("v_mul_u32_u24 v142, 911, v141")
        a("v_lshrrev_b32 v142, 16, v142")
        a("v_mul_u32_u24 v143, 73728, v142")
        a("v_lshl_add_u32 v143, v141, 7, v143")
        a(f"v_add_u32 v101, {CLASS_ORDER[0]*9216}, v143")
    def xround(q, lam, r, cold):
        a(f"s_add_u32 m0, s92, {lam*ARR + r*4096}")
        a(f"s_add_u32 s50, s95, {lam*128 + r*36864}")
        a(f"buffer_load_dwordx4 v131, s[24:27], s50 offen{xnt if cold else o.xflag} lds")
        q.issue(lam)
    def xrot(q, lam, d, m):
        a(f"s_add_u32 m0, s{80+d}, {lam*ARR + m*3072}")
        a(f"s_add_u32 s50, s{83+d}, {lam*128 + m*27648}")
        a(f"buffer_load_dwordx4 v131, s[24:27], s50 offen{o.xflag} lds")
        q.issue(lam)
    def xhalf(q, lam, cold=True):
        a(f"s_mov_b32 m0, {lam*ARR + 12*1024}")
        a(f"s_mov_b32 s50, {12*9216 + lam*128}")
        a("s_mov_b32 exec_hi, 0")
        a(f"buffer_load_dwordx4 v131, s[24:27], s50 offen{xnt if cold else o.xflag} lds")
        a("s_mov_b32 exec_hi, -1")
        q.issue(lam)
    a("s_waitcnt lgkmcnt(0)")
    a("s_mov_b32 s28, s6")
    a("s_mov_b32 s29, s7")
    if o.wp0:
        a("s_mov_b64 exec, 0x3ffff")
        a("buffer_load_dword v146, v101, s[28:31], 0 offen"); qx.issue("wp")
    a("s_mov_b64 exec, 0x7ffff")
    a("buffer_load_dword v146, v100, s[28:31], 0 offen"); qx.issue("wm")
    a("s_mov_b64 exec, -1")
    x_srd()
    for d in range(3):
        a(f"s_mov_b32 s{80+d}, s{92+d}"); a(f"s_mov_b32 s{83+d}, s{95+d}")
    a("s_movk_i32 s92, 3072")
    a("s_movk_i32 s95, 27648")
    a(f"v_mov_b32 v140, {FLAG}")
    for i in range(4): a(f"v_mov_b32 v{40+i}, 0")
    a("ds_write_b128 v140, v[40:43]")
    a("s_waitcnt lgkmcnt(0)")
    if T: a("s_memtime s[64:65]")
    a("s_cmp_eq_u32 s20, 1")
    a("s_cbranch_scc1 L_xmain1")
    a("s_cmp_eq_u32 s20, 2")
    a("s_cbranch_scc1 L_xmain2")
    a("s_branch L_xmain0")

    def schedule(sl):
        wops = {}; xops = {}
        for lam in LAM_ORDER[2:]:
            if lam in o.b1:
                k = 0
                for d in (1, 2):
                    for m in range(4):
                        xops.setdefault(o.oth[lam] + k // o.rotrate, []).append(("rot", lam, d, m)); k += 1
                continue
            for r in range(3):
                owner, at = o.own[lam][r] if isinstance(o.own[lam], list) else o.own[lam]
                cold = owner == sl
                st = at + r // o.brate if cold else o.oth[lam] + r // o.orate
                wops.setdefault(st, []).append((lam, r, cold))
                xops.setdefault(st, []).append(("x", lam, r, cold))
            xops.setdefault(st, []).append(("h", lam, cold))
        if not o.barb:
            def mp(d):
                r = {}
                for k in sorted(d): r.setdefault(k if k <= 0 else (k + 1) // 2, []).extend(d[k])
                return r
            wops, xops = mp(wops), mp(xops)
        return wops, xops

    a.label("L_cons")
    pub_srd()
    a("s_cmp_lg_u32 s18, 0")
    a("s_cbranch_scc1 L_c_noclr")
    a.c("wave 0 clears this workgroup's hand-off words")
    a("v_lshlrev_b32 v142, 4, v129")
    a("s_mul_i32 s50, s22, 384")
    for i in range(4): a(f"v_mov_b32 v{40+i}, -1")
    if o.gate:
        a("s_mov_b64 exec, 0x1000000")
        a("v_mov_b32 v142, 16256")
        for i in range(4): a(f"v_mov_b32 v{40+i}, 0")
        a("s_cmp_eq_u32 s22, 0")
        a("s_mov_b32 s46, 0xffffff")
        a("s_cselect_b32 exec_lo, 0x1ffffff, s46")
        a("s_mov_b32 s38, 16384")
    else:
        a("s_mov_b64 exec, 0xffffff")
    a("buffer_store_dwordx4 v[40:43], v142, s[36:39], s50 offen sc1")
    a("s_mov_b64 exec, -1")
    a.label("L_c_noclr")
    a("v_and_b32 v139, 15, v129")
    a("v_mul_u32_u24 v140, 3, v139")
    a("v_mul_u32_u24 v141, 48, v130")
    a("v_add_u32 v140, v140, v141")
    a("v_and_b32 v141, 1, v140")
    a("v_lshrrev_b32 v142, 1, v140")
    a("v_cmp_eq_u32 vcc, 1, v141")
    for k in range(5):
        if k: a("v_add_u32 v142, 1, v142")
        a("v_and_b32 v143, 2, v142")
        a("v_xor_b32 v143, v143, v136")
        a("v_lshlrev_b32 v143, 4, v143")
        a(f"v_lshl_add_u32 v{100+k}, v142, 7, v143")
    a(f"v_mul_u32_u24 v105, {4*ARR+64}, v141")
    a(f"v_sub_u32 v106, {4*ARR+64}, v105")
    a(f"v_mul_u32_u24 v107, {5*ARR-64}, v141")
    a(f"v_sub_u32 v108, {5*ARR}, v107")
    a("v_add_u32 v107, 64, v107")
    for s in range(8):
        if s % 2 == 0:
            a(f"v_add_u32 v{112+s}, v{100+s//2}, v105")
            a(f"v_add_u32 v{120+s}, v{100+s//2}, v107")
        else:
            a(f"v_cndmask_b32 v143, v{100+s//2}, v{101+s//2}, vcc")
            a(f"v_add_u32 v{112+s}, v143, v106")
            a(f"v_add_u32 v{120+s}, v143, v108")
    a("v_lshrrev_b32 v141, 1, v136")
    a("v_lshlrev_b32 v141, 4, v141")
    a("v_and_b32 v142, 1, v136")
    a("v_lshl_add_u32 v141, v142, 2, v141")
    a("v_bfe_u32 v142, v129, 2, 2")
    a("v_add_u32 v141, v141, v142")
    a("v_mul_u32_u24 v141, 96, v141")
    a("v_and_b32 v142, 3, v129")
    a("v_lshl_add_u32 v141, v142, 3, v141")
    a(f"v_add_u32 v128, {WB}, v141")
    a(f"v_add_u32 v137, {ARR}, v141")
    a("v_mul_u32_u24 v141, 384, v130")
    a("v_and_b32 v143, 12, v139")
    a("v_lshl_add_u32 v142, v136, 5, v143")
    a("v_add_u32 v132, v141, v142")
    a(f"v_add_u32 v132, {PART}, v132")
    a("v_lshlrev_b32 v133, 4, v136")
    a(f"v_add_u32 v133, {AB}, v133")
    a(f"v_mov_b32 v134, {FLAG}")
    a("v_mul_u32_u24 v135, 288, v140")
    a("v_lshl_add_u32 v135, v136, 3, v135")
    C0 = -2.0 * 0.7978845608028654 * 1.4426950408889634
    C1 = C0 * 0.044715
    a(f"v_mov_b32 v144, {f2u(C0):#x}"); a(f"v_mov_b32 v145, {f2u(C0):#x}")
    a(f"v_mov_b32 v146, {f2u(C1):#x}"); a(f"v_mov_b32 v147, {f2u(C1):#x}")
    a("v_mov_b32 v148, 1.0"); a("v_mov_b32 v149, 1.0")
    a(f"s_mul_i32 s44, s21, {L}")
    a("s_mul_i32 s45, s22, 192")
    a("s_add_u32 s44, s44, s45")
    a("s_mul_i32 s44, s44, 288")
    a("s_add_u32 s44, s44, s43")
    a("s_add_u32 s32, s12, s44")
    a("s_addc_u32 s33, s13, 0")
    a(f"s_sub_u32 s34, {L}, s45")
    a("s_mul_i32 s34, s34, 288")
    a("s_sub_u32 s34, s34, s43")
    a("s_mov_b32 s35, 0x20000")
    for t in range(3):
        a(f"s_movk_i32 s46, {L - 41*192 - t}")
        a(f"v_cmp_le_u32 s[{70+2*t}:{71+2*t}], s46, v140")
    a("s_lshl_b32 s44, s23, 5")
    a("v_mov_b32 v141, s44")
    a("v_mov_b32 v142, 1")
    a("s_waitcnt vmcnt(1)")
    a("s_cmp_eq_u32 s18, 0")
    a("s_cbranch_scc1 L_c_p")
    a("s_waitcnt vmcnt(0)")
    a.label("L_c_p")
    if T: a("s_memtime s[84:85]")
    if o.prio & 1: a("s_setprio 3")
    a("s_barrier")
    if T: a("s_memtime s[86:87]"); a("s_waitcnt lgkmcnt(0)")

    lq = Q(a, "lgkmcnt", 15)
    nbar = [0]
    FREEB = {}
    XNEED = {}
    DEADB = {}
    def bar():
        for n in set(t[1] for t in lq.q[:lq.done] if t[0] == "W"):
            if n not in FREEB and n < NM and sum(1 for t in lq.q[:lq.done] if t[0] == "W" and t[1] == n) == 6: FREEB[n] = nbar[0]
        for lam in range(9):
            users = [c for c in CLASS_ORDER if lam in lam_of(c)]
            if lam not in DEADB and all(("F", c, nst(c) + 1) in lq.q[:lq.done] for c in users): DEADB[lam] = nbar[0]
        a("s_barrier"); nbar[0] += 1
    cl = CLASS_ORDER[-1]
    BB = 208
    two = STEPS[NM][0] != cl
    def freg(c, s): return (160 if (two and c == cl) else 36) + 4*s
    def wread(n, nt, d):
        b, off = ("v137", slot(n) - ARR) if n in XS else ("v128", slot(n) - WB)
        assert 0 <= off and off + 768 + 64 < 65536
        return [(f"ds_read_b64_tr_b16 v[{d+2*kh}:{d+2*kh+1}], {b} offset:{off + kh*768 + 32*nt}", ("W", n, nt)) for kh in range(2)]
    def xread(c, s):
        d = freg(c, s)
        return [(f"ds_read_b128 v[{d}:{d+3}], v{112 + 8*(c & 1) + (s & 7)} offset:{(c >> 1)*ARR + (512 if s >= 8 else 0)}", ("F", c, s))]
    first = NM % 2
    groups = ([[0]] if first else []) + [[n, n + 1] for n in range(first, NM, 2)]
    def wreg(g, k, nt): return BB + 24*(g % 2) + 12*k + 4*nt
    def ureg(u): return BB + 4*((u + 6*(len(groups) % 2)) % 12)
    def uread(u): return wread(TS[u % NT_], u // NT_, ureg(u)) if u < 3*NT_ else []
    tailF = []
    haveF = set()
    def reads_for(g):
        if g == len(groups):
            for n in TS:
                c, p = STEPS[n]
                for s in range(p, p + 3):
                    if (c, s) not in haveF: haveF.add((c, s)); tailF.append((c, s))
            busy = {freg(STEPS[n][0], STEPS[n][1] + t) for n in groups[-1] for t in range(3)}
            r = []
            while tailF and len(r) < 5 and freg(*tailF[0]) not in busy: r += xread(*tailF.pop(0))
            return r + sum([uread(u) for u in range(D)], [])
        r = []
        for n in groups[g]:
            c, p = STEPS[n]
            for s in range(p, p + 3):
                if (c, s) not in haveF: haveF.add((c, s)); r += xread(c, s)
        for nt in range(3):
            ks = list(range(len(groups[g])))
            for k in (ks if nt % 2 == 0 else ks[::-1]): r += wread(groups[g][k], nt, wreg(g, k, nt))
        return r
    def put(rd):
        t, tag = rd.pop(0); a(t); lq.issue(tag)
        if tag[0] == "W": WNEED.setdefault(tag[1], nbar[0] - 1)
        else:
            for lam in lam_of(tag[1]): XNEED.setdefault(lam, nbar[0] - 1)
    rd = reads_for(0)
    while rd:
        put(rd)
        if len(lq.q) == 12: lq.wait(lambda t: t == lq.q[3])
    for g, grp in enumerate(groups):
        a.c(f"steps {grp}: (class, tap pair) {[STEPS[n] for n in grp]}")
        rd = reads_for(g + 1)
        K_ = len(grp)
        for nt in range(3):
            lq.wait(lambda t: (t[0] == "W" and t[1] in grp and t[2] == nt) or (t[0] == "F" and any(t[1] == STEPS[n][0] and t[2] <= STEPS[n][1] + 2 for n in grp)))
            if nt == 0 or (nt == 2 and K_ == 2 and (o.barb or g >= len(groups) - o.blast)): bar()
            l = [(t, (k if t % 2 == 0 else K_ - 1 - k)) for t in range(3) for k in range(K_)]
            if nt % 2: l = l[::-1]
            seen = set()
            for (t, k) in l:
                c, p = STEPS[grp[k]]
                acc = 12*t + 4*nt
                f = freg(c, p + t); w = wreg(g, k, nt)
                cin = "0" if (g == 0 and t not in seen) else f"v[{acc}:{acc+3}]"
                seen.add(t)
                a.mfma(f"v_mfma_f32_16x16x32_bf16 v[{acc}:{acc+3}], v[{w}:{w+3}], v[{f}:{f+3}], {cin}", range(acc, acc+4))
                if rd: put(rd)
                if K_ == 1 and rd: put(rd)
        assert not rd
        if o.atomstep in grp:
            a("s_cmp_lg_u32 s18, 0")
            a("s_cbranch_scc1 L_c_noatom")
            a("s_waitcnt vmcnt(0)")
            a("s_mov_b64 exec, 1")
            a("global_atomic_add v141, v142, s[14:15]")
            a("s_mov_b64 exec, -1")
            a.label("L_c_noatom")
    a.label("L_epi")
    S1, S2, PQ, RR = 200, 204, 152, 156
    def pr(x): return f"v[{x}:{x+1}]"
    def stats_ops(nt, packed):
        ops = []
        A = [12*t + 4*nt for t in range(3)]
        def V(t, rd=(), wr=(), dpp=()): ops.append(lambda: a.valu(t, rd, wr, dpp))
        def mask():
            for k in range(3):
                for r in range(A[k], A[k]+4): a.pad(a.wm[r], 6)
            a("s_cmp_eq_u32 s22, 41")
            a(f"s_cbranch_scc1 L_c_mask{nt}")
            a.label(f"L_c_masked{nt}")
        ops.append(mask)
        if packed:
            for h in (0, 2): V(f"v_pk_mul_f32 {pr(S2+h)}, {pr(A[0]+h)}, {pr(A[0]+h)}", [A[0]+h, A[0]+h+1], [S2+h, S2+h+1])
            for h in (0, 2): V(f"v_pk_add_f32 {pr(S1+h)}, {pr(A[0]+h)}, {pr(A[1]+h)}", [A[1]+h, A[1]+h+1], [S1+h, S1+h+1])
            for h in (0, 2): V(f"v_pk_fma_f32 {pr(S2+h)}, {pr(A[1]+h)}, {pr(A[1]+h)}, {pr(S2+h)}", [], [S2+h, S2+h+1])
            for h in (0, 2): V(f"v_pk_add_f32 {pr(S1+h)}, {pr(S1+h)}, {pr(A[2]+h)}", [A[2]+h, A[2]+h+1], [S1+h, S1+h+1])
            for h in (0, 2): V(f"v_pk_fma_f32 {pr(S2+h)}, {pr(A[2]+h)}, {pr(A[2]+h)}, {pr(S2+h)}", [], [S2+h, S2+h+1])
        else:
            for h in range(4): V(f"v_mul_f32 v{S2+h}, v{A[0]+h}, v{A[0]+h}", [A[0]+h], [S2+h])
            for h in range(4): V(f"v_add_f32 v{S1+h}, v{A[0]+h}, v{A[1]+h}", [A[1]+h], [S1+h])
            for h in range(4): V(f"v_fmac_f32 v{S2+h}, v{A[1]+h}, v{A[1]+h}", [], [S2+h])
            for h in range(4): V(f"v_add_f32 v{S1+h}, v{S1+h}, v{A[2]+h}", [A[2]+h], [S1+h])
            for h in range(4): V(f"v_fmac_f32 v{S2+h}, v{A[2]+h}, v{A[2]+h}", [], [S2+h])
        for k, S in enumerate((S1, S2)):
            for m in range(2):
                d = PQ + 2*k + m
                V(f"v_add_f32_dpp v{d}, v{S+2*m}, v{S+2*m} row_shl:8 row_mask:0xf bank_mask:0x3", [], [d], [S+2*m])
                V(f"v_add_f32_dpp v{d}, v{S+2*m+1}, v{S+2*m+1} row_shr:8 row_mask:0xf bank_mask:0xc", [], [d], [S+2*m+1])
        for m in range(2): V(f"v_add_f32_dpp v{RR+m}, v{PQ+m}, v{PQ+m} row_shl:4 row_mask:0xf bank_mask:0x5", [], [RR+m], [PQ+m])
        for m in range(2): V(f"v_add_f32_dpp v{RR+m}, v{PQ+2+m}, v{PQ+2+m} row_shr:4 row_mask:0xf bank_mask:0xa", [], [RR+m], [PQ+2+m])
        for qp in ("[2,3,0,1]", "[1,0,3,2]"):
            for m in range(2): V(f"v_add_f32_dpp v{RR+m}, v{RR+m}, v{RR+m} quad_perm:{qp} row_mask:0xf bank_mask:0xf", [], [RR+m], [RR+m])
        def wr():
            a(f"ds_write2_b32 v132, v{RR}, v{RR+1} offset0:{32*nt} offset1:{32*nt+4}"); lq.issue(("S", nt))
        ops.append(wr)
        return ops
    pend = []; bar_due = None; ne1 = 0
    ugroups = []
    for nt in range(3):
        us = list(range(nt*NT_, (nt + 1)*NT_))
        if o.tpair:
            if len(us) % 2: ugroups.append([us.pop(0)])
            ugroups += [us[k:k+2] for k in range(0, len(us), 2)]
        else: ugroups += [[u] for u in us]
    flip = False
    for ug in ugroups:
        nt = ug[0] // NT_
        ns = [TS[u % NT_] for u in ug]
        a.c(f"column tile {nt}, steps {ns}")
        lq.wait(lambda t: (t[0] == "W" and t[1] in ns and t[2] == nt) or (t[0] == "F" and any(t[1] == STEPS[n][0] and t[2] <= STEPS[n][1] + 2 for n in ns)))
        if any(u in o.tbars for u in ug): bar()
        if bar_due is not None and bar_due[1] <= ug[0]:
            lq.wait(lambda t: t == ("S", bar_due[0])); a("s_barrier"); bar_due = None; ne1 += 1
        rd = []
        for u in ug:
            for _ in range(2 if (two and u < 4) else 1):
                if tailF: rd += xread(*tailF.pop(0))
        for u in ug: rd += uread(u + D)
        if nt > 0 and (nt*NT_ + 1) in ug: pend = pend + stats_ops(nt - 1, False)
        K_ = len(ug)
        l = [(t, (k if t % 2 == 0 else K_ - 1 - k)) for t in range(3) for k in range(K_)]
        if flip: l = [(2 - t, k) for (t, k) in l]
        flip = not flip
        for m, (t, k) in enumerate(l):
            c, p = STEPS[ns[k]]
            acc = 12*t + 4*nt
            f = freg(c, p + t); w = ureg(ug[k])
            a.mfma(f"v_mfma_f32_16x16x32_bf16 v[{acc}:{acc+3}], v[{w}:{w+3}], v[{f}:{f+3}], v[{acc}:{acc+3}]", range(acc, acc+4))
            n1 = a.n
            if rd: put(rd)
            if len(rd) > len(l) - 1 - m: put(rd)
            room = o.srate - (1 if m == len(l) - 1 else 0)
            while pend and a.n - n1 < room:
                pend.pop(0)()
                if lq.q[-1][0] == "S" and lq.q[-1][1] == ne1 and bar_due is None: bar_due = (ne1, ug[-1] + 2)
        assert not rd
    while pend: pend.pop(0)()
    while ne1 < 2:
        assert ("S", ne1) in lq.q
        lq.wait(lambda t: t == ("S", ne1)); a("s_barrier"); ne1 += 1
    for op in stats_ops(2, True): op()
    lq.wait(lambda t: t == ("S", 2))
    a("s_barrier")
    if o.pubfirst: a("s_barrier")
    NB = nbar[0]
    Y, U, O = 72, 84, 96
    for nt in range(3):
        a.label(f"L_c_wait{nt}")
        a(f"ds_read_b32 v48, v134 offset:{4*nt}")
        a(f"ds_read_b128 v[40:43], v133 offset:{64*nt}")
        a(f"ds_read_b128 v[44:47], v133 offset:{192 + 64*nt}")
        a("s_waitcnt lgkmcnt(0)")
        a("v_cmp_eq_u32 vcc, 0, v48")
        H = [12*(i // 2) + 4*nt + 2*(i % 2) for i in range(6)]
        a(f"v_pk_fma_f32 {pr(Y)}, {pr(H[0])}, v[40:41], v[44:45]")
        a(f"s_cbranch_vccnz L_c_wait{nt}")
        if T and nt == 2: a("s_memtime s[88:89]")
        for i in range(1, 6): a(f"v_pk_fma_f32 {pr(Y+2*i)}, {pr(H[i])}, {pr(40+2*(i%2))}, {pr(44+2*(i%2))}")
        for i in range(6): a(f"v_pk_mul_f32 {pr(U+2*i)}, {pr(Y+2*i)}, {pr(Y+2*i)}")
        for i in range(6): a(f"v_pk_fma_f32 {pr(U+2*i)}, {pr(U+2*i)}, v[146:147], v[144:145]")
        for i in range(6): a(f"v_pk_mul_f32 {pr(U+2*i)}, {pr(U+2*i)}, {pr(Y+2*i)}")
        for i in range(12): a(f"v_exp_f32 v{U+i}, v{U+i}")
        for i in range(6): a(f"v_pk_add_f32 {pr(U+2*i)}, {pr(U+2*i)}, v[148:149]")
        Ot = O + 6*nt
        for t in range(3):
            for i in range(4*t, 4*t+4): a(f"v_rcp_f32 v{U+i}, v{U+i}")
            if t > 0: a(f"buffer_store_dwordx2 v[{Ot+2*t-2}:{Ot+2*t-1}], v135, s[32:35], 0 offen offset:{288*(t-1) + 32*nt}{o.stflag}")
            else: a("s_nop 0")
            for i in (2*t, 2*t+1): a(f"v_pk_mul_f32 {pr(Y+2*i)}, {pr(Y+2*i)}, {pr(U+2*i)}")
            for i in (2*t, 2*t+1): a(f"v_cvt_pk_bf16_f32 v{Ot+i}, v{Y+2*i}, v{Y+2*i+1}")
        a(f"buffer_store_dwordx2 v[{Ot+4}:{Ot+5}], v135, s[32:35], 0 offen offset:{576 + 32*nt}{o.stflag}")
    if T:
        a("s_memtime s[64:65]")
        a("s_waitcnt vmcnt(0)")
        a("s_memtime s[66:67]")
        a("s_memrealtime s[68:69]")
        a("s_cmp_lg_u32 s18, 0")
        a("s_cbranch_scc1 L_end")
        a("s_waitcnt lgkmcnt(0)")
        a("s_lshl_b32 s44, s2, 7")
        a("s_add_u32 s44, s44, 0x100040")
        a("v_mov_b32 v40, s60"); a("v_mov_b32 v41, s62"); a("v_mov_b32 v42, s64"); a("v_mov_b32 v43, s66")
        a("v_mov_b32 v44, s68"); a("v_mov_b32 v45, s88")
        a("v_mov_b32 v48, s44")
        a("s_mov_b64 exec, 1")
        a("global_store_dwordx4 v48, v[40:43], s[16:17]")
        a("global_store_dwordx2 v48, v[44:45], s[16:17] offset:16")
        a("v_mov_b32 v52, s80"); a("v_mov_b32 v53, s82"); a("v_mov_b32 v54, s84"); a("v_mov_b32 v55, s86")
        a("global_store_dwordx4 v48, v[52:55], s[16:17] offset:48")
    if o.light:
        a("s_cmp_lg_u32 s18, 0")
        a("s_cbranch_scc1 L_end")
        a("s_waitcnt vmcnt(0)")
        a("s_memrealtime s[68:69]")
        a("s_lshl_b32 s44, s2, 7")
        a("s_add_u32 s44, s44, 0x100040")
        a("v_mov_b32 v48, s44")
        a("s_waitcnt lgkmcnt(0)")
        a("v_mov_b32 v40, s62"); a("v_mov_b32 v41, s68")
        a("s_mov_b64 exec, 1")
        a("global_store_dwordx2 v48, v[40:41], s[16:17]")
    if o.probe == "done":
        a("s_waitcnt vmcnt(0)"); probe("done"); probe_end("L_probe_c", 4)
    a("s_endpgm")
    for nt in range(3):
        a.label(f"L_c_mask{nt}")
        for t in range(3):
            a(f"s_mov_b64 exec, s[{70+2*t}:{71+2*t}]")
            for h in (0, 2): a(f"v_mov_b64 {pr(12*t + 4*nt + h)}, 0")
        a("s_mov_b64 exec, -1")
        a(f"s_branch L_c_masked{nt}")

    a.label("L_wepi")
    if o.prio & 2: a("s_setprio 3")
    a("v_and_b32 v140, 7, v129")
    a("v_lshlrev_b32 v140, 4, v140")
    a("s_lshl_b32 s44, s49, 7")
    a("v_add_u32 v140, s44, v140")
    a(f"v_add_u32 v141, {PART}, v140")
    a("v_lshrrev_b32 v142, 3, v129")
    a("v_mul_u32_u24 v142, 384, v142")
    a("v_add_u32 v142, v142, v140")
    a("s_mul_i32 s50, s22, 384")
    a("v_lshlrev_b32 v143, 2, v135")
    a(f"v_add_u32 v143, {AB}, v143")
    a("s_lshl_b32 s44, s49, 2")
    a(f"s_add_u32 s44, s44, {FLAG}")
    a("v_mov_b32 v144, s44")
    a("v_mov_b32 v145, 1")
    a(f"s_mov_b32 s44, {f2u(1.0/L):#x}")
    a("s_mov_b32 s45, 0")
    a("s_movk_i32 s46, 3072"); a("s_movk_i32 s47, 9216"); a("s_movk_i32 s48, 15360")
    a("s_waitcnt vmcnt(0)")
    a("v_lshlrev_b32 v137, 16, v137")
    a("v_lshlrev_b32 v138, 16, v138")
    if o.gate:
        a("s_lshl_b32 s42, s23, 14")
        a("s_add_u32 s42, s42, 16256")
        a("v_mov_b32 v149, s42")
    a("s_mov_b64 exec, 0xff")
    a("s_mov_b32 s42, 0")
    a.label("L_w_e1")
    a("s_barrier")
    if o.trace:
        a("s_memtime s[88:89]"); a("s_waitcnt lgkmcnt(0)"); a("s_sub_u32 s88, s88, s60")
        a("s_add_u32 m0, s42, 61"); a("v_writelane_b32 v150, s88, m0")
    a("s_cmp_lg_u32 s42, s49")
    a("s_cbranch_scc1 L_w_nopub")
    if T: a("s_memtime s[86:87]")
    if T and o.rt2: a("s_memrealtime s[98:99]")
    probe("E1")
    for w in range(4): a(f"ds_read_b128 v[{40+4*w}:{43+4*w}], v141 offset:{384*w}")
    a("s_waitcnt lgkmcnt(2)" if not T else "s_waitcnt lgkmcnt(0)")
    a("v_pk_add_f32 v[40:41], v[40:41], v[44:45]")
    a("v_pk_add_f32 v[42:43], v[42:43], v[46:47]")
    a("s_waitcnt lgkmcnt(0)")
    a("v_pk_add_f32 v[48:49], v[48:49], v[52:53]")
    a("v_pk_add_f32 v[50:51], v[50:51], v[54:55]")
    a("v_pk_add_f32 v[40:41], v[40:41], v[48:49]")
    a("v_pk_add_f32 v[42:43], v[42:43], v[50:51]")
    for i in range(4): a(f"v_min_u32 v{40+i}, -2, v{40+i}")
    a("buffer_store_dwordx4 v[40:43], v140, s[36:39], s50 offen sc1")
    so = ["0", "s46", "s46", "s47", "s47", "s48"]; io = [0, 0, 3072, 0, 3072, 0]
    def polls():
        for k in range(6): a(f"buffer_load_dwordx4 v[{44+4*k}:{47+4*k}], v142, s[36:39], {so[k]} offen offset:{io[k]} sc1")
    if o.early:
        a(f"s_cmp_ge_u32 s49, {o.early}")
        a("s_cbranch_scc1 L_w_nopub")
        a("s_mov_b64 exec, -1")
        polls()
    a.label("L_w_nopub")
    if o.gate:
        a("s_cmp_lg_u32 s42, 1")
        a("s_cbranch_scc1 L_w_nogate")
        a("global_load_dword v148, v149, s[16:17] sc1")
        a.label("L_w_nogate")
    a("s_add_u32 s42, s42, 1")
    a("s_cmp_lt_u32 s42, 3")
    a("s_cbranch_scc1 L_w_e1")
    a("s_mov_b64 exec, -1")
    if o.pubfirst == 2: a("s_waitcnt vmcnt(0)")
    if o.pubfirst:
        a("s_barrier")
    if o.pdelay:
        a("s_cmp_lg_u32 s49, 0")
        a("s_cbranch_scc1 L_nodelay")
        for _ in range(o.pdelay):
            a("ds_read_b32 v147, v144"); a("s_waitcnt lgkmcnt(0)")
        a.label("L_nodelay")
    if o.early:
        a(f"s_cmp_lt_u32 s49, {o.early}")
        a("s_cbranch_scc1 L_pollwait")
    if o.chain:
        a("s_cmp_eq_u32 s49, 0")
        a("s_cbranch_scc1 L_gate" if o.gate else "s_cbranch_scc1 L_poll")
        a(f"v_mov_b32 v146, {FLAG}")
        if o.chain == 2:
            a("s_lshl_b32 s42, s49, 2"); a("s_sub_u32 s42, s42, 4"); a("v_add_u32 v146, s42, v146")
        if o.chain == 3:
            a("s_cmp_eq_u32 s49, 1"); a("s_cbranch_scc1 L_poll"); a("v_add_u32 v146, 4, v146")
        if o.chain == 4:
            a("s_cmp_eq_u32 s49, 1"); a("s_cbranch_scc1 L_poll")
        a.label("L_chain")
        a("ds_read_b32 v147, v146")
        a("s_waitcnt lgkmcnt(0)")
        a("v_cmp_eq_u32 vcc, 0, v147")
        a("s_nop 0")
        a("s_cbranch_vccnz L_chain")
    a.label("L_poll")
    polls()
    a.label("L_pollwait")
    a("s_waitcnt vmcnt(4)")
    a("v_pk_add_f32 v[68:69], v[44:45], v[48:49]")
    a("v_pk_add_f32 v[70:71], v[46:47], v[50:51]")
    a("s_waitcnt vmcnt(2)")
    a("v_pk_add_f32 v[72:73], v[52:53], v[56:57]")
    a("v_pk_add_f32 v[74:75], v[54:55], v[58:59]")
    a("v_pk_add_f32 v[68:69], v[68:69], v[72:73]")
    a("v_pk_add_f32 v[70:71], v[70:71], v[74:75]")
    a("s_waitcnt vmcnt(0)")
    a("v_pk_add_f32 v[72:73], v[60:61], v[64:65]")
    a("v_pk_add_f32 v[74:75], v[62:63], v[66:67]")
    a("v_pk_add_f32 v[68:69], v[68:69], v[72:73]")
    a("v_pk_add_f32 v[70:71], v[70:71], v[74:75]")
    a("v_cmp_u_f32 vcc, v68, v69")
    a("v_cmp_u_f32 s[90:91], v70, v71")
    a("s_nop 0")
    a("s_or_b64 vcc, vcc, s[90:91]")
    a("s_cbranch_vccnz L_recheck")
    a.label("L_polled")
    probe("gath")
    if T and o.rt2: a("s_memrealtime s[100:101]")
    if T: a("s_memtime s[88:89]")
    a("v_permlane32_swap_b32 v68, v70")
    a("v_permlane32_swap_b32 v69, v71")
    a("v_add_f32 v68, v68, v70")
    a("v_add_f32 v69, v69, v71")
    a("s_nop 1")
    a("v_permlane16_swap_b32 v68, v69")
    a("v_add_f32 v68, v68, v69")
    a("s_nop 1")
    a("v_add_f32_dpp v68, v68, v68 row_ror:8 row_mask:0xf bank_mask:0xf")
    a("v_mul_f32 v68, s44, v68")
    a("v_mov_b32 v69, v68")
    a("s_nop 1")
    a("v_permlane16_swap_b32 v68, v69")
    a("v_fma_f32 v69, -v68, v68, v69")
    a("v_max_f32 v69, 0, v69")
    a(f"v_add_f32 v69, {f2u(1e-5):#x}, v69")
    a("v_rsq_f32 v69, v69")
    a("s_mov_b32 exec_lo, 0xff")
    a("s_mov_b32 exec_hi, 0xff")
    a("v_mul_f32 v69, v137, v69")
    a("v_fma_f32 v68, -v68, v69, v138")
    a("ds_write2_b32 v143, v69, v68 offset0:0 offset1:48")
    a("ds_write_b32 v144, v145")
    if T:
        a(f"s_cmp_lg_u32 s18, {o.twave}")
        a("s_cbranch_scc1 L_end")
        a("s_waitcnt lgkmcnt(0)")
        a("s_memtime s[90:91]")
        a("s_waitcnt lgkmcnt(0)")
        a("s_lshl_b32 s44, s2, 7")
        a("s_add_u32 s44, s44, 0x100000")
        regs = [60, 64] + list(range(66, 86, 2)) + [86, 88, 90, 62]
        for i, r in enumerate(regs): a(f"v_mov_b32 v{40+i}, s{r}")
        a("v_mov_b32 v60, s44")
        a("v_mov_b32 v62, s98"); a("v_mov_b32 v63, s100")
        a("s_mov_b64 exec, 1")
        for k in range(4): a(f"global_store_dwordx4 v60, v[{40+4*k}:{43+4*k}], s[16:17] offset:{16*k}")
        a("global_store_dwordx2 v60, v[62:63], s[16:17] offset:96")
        a("global_store_dword v60, v149, s[16:17] offset:108")
        if o.trace:
            a("s_mov_b64 exec, -1")
            a("s_lshl_b32 s44, s2, 9"); a("s_add_u32 s44, s44, 0x200000")
            a("v_lshlrev_b32 v60, 2, v129"); a("v_add_u32 v60, s44, v60")
            a("global_store_dword v60, v150, s[16:17]")
            a("global_store_dword v60, v151, s[16:17] offset:256")
    if o.probe and o.probe != "done": probe_end("L_probe_w", 0 if o.probe == "fixed" else 4)
    a("s_endpgm")
    if o.gate:
        a.label("L_gate")
        a.c("line 0 is first read once every workgroup of the group is close to its end")
        a("s_waitcnt vmcnt(0)")
        a("v_readfirstlane_b32 s42, v148")
        a("s_add_u32 s45, s45, 1")
        a("s_cmp_ge_u32 s42, 42")
        a("s_cbranch_scc1 L_poll")
        a("s_cmp_ge_u32 s45, 0x100000")
        a("s_cbranch_scc1 L_poll")
        a("global_load_dword v148, v149, s[16:17] sc1")
        a("s_branch L_gate")
    a.label("L_recheck")
    a.c("a NaN sum: a word not yet written, or a genuine NaN")
    for k in range(8): a(f"v_max3_u32 v{72+k}, v{44+3*k}, v{45+3*k}, v{46+3*k}")
    a("v_max3_u32 v72, v72, v73, v74"); a("v_max3_u32 v75, v75, v76, v77")
    a("v_max3_u32 v72, v72, v78, v79"); a("v_max_u32 v72, v72, v75")
    a("v_cmp_eq_u32 vcc, -1, v72")
    a("s_add_u32 s45, s45, 1")
    a("s_cmp_ge_u32 s45, 0x100000")
    a("s_cbranch_scc1 L_polled")
    a("s_cbranch_vccnz L_poll")
    a("s_branch L_polled")
    a.label("L_epi_end")

    def canissue(m, n): return DEADB[XS[m][0]] <= n if m in XS else (m < R or FREEB[m - R] <= n)
    XT = o.xt if o.xslots else FREEB[NS - 1 - R]
    assert NB - 1 >= XT and XT >= max(XNEED.values())
    if o.verbose: print('WNEED', WNEED, 'FREEB', FREEB, 'XNEED', XNEED, 'DEADB', DEADB, 'NB', NB, 'XT', XT)
    qw0, nxt0, qx0 = qw, nxt, qx
    for sl in range(3):
        wops, xops = schedule(sl)
        qw = qw0.copy(); nxt = nxt0
        a.label(f"L_wmain{sl}")
        def run_wops(n):
            for op in wops.pop(n, []): xround(qw, *op)
        run_wops(-2)
        if T:
            a("s_waitcnt lgkmcnt(0)"); a("s_sub_u32 s90, s90, s60"); a("v_mov_b32 v149, s90")
        qw.wait(lambda t: t == ("W", 0))
        while nxt < o.winit0: wload(qw, nxt); nxt += 1
        qw.wait(lambda t: isinstance(t, tuple) and WNEED[t[1]] < 0)
        while nxt < o.winitp: wload(qw, nxt); nxt += 1
        if T: a("s_memtime s[64:65]")
        probe("P0")
        a("s_barrier")
        probe("P")
        while nxt < o.winit2: wload(qw, nxt); nxt += 1
        run_wops(-1)
        assert all(m < nxt for m in WNEED if WNEED[m] <= 0)
        qw.wait(lambda t: isinstance(t, tuple) and WNEED[t[1]] <= 0)
        stamp = 66
        for n in range(NB):
            a("s_barrier")
            if T and n in o.stamps:
                a(f"s_memtime s[{stamp}:{stamp+1}]"); stamp += 2
                if n == 0 and not o.rt2: a("s_memrealtime s[98:99]")
                if n == o.stamps[-1] and not o.rt2: a("s_memrealtime s[100:101]")
            probe(f"b{n}")
            if o.trace and n >= NB - o.trace:
                a("s_memtime s[88:89]"); a("s_waitcnt lgkmcnt(0)"); a("s_sub_u32 s88, s88, s60")
                a(f"v_writelane_b32 v150, s88, {61 - (NB - n)}")
            busy = len(wops.get(n, []))
            run_wops(n)
            k = 0
            while nxt < NS and canissue(nxt, n) and (k < o.wrate - busy * o.bw or nxt <= (n if o.barb else 2*n) + o.wmin):
                wload(qw, nxt); nxt += 1; k += 1
            if n == XT:
                assert nxt == NS, (n, nxt)
                a("buffer_load_ushort v137, v134, s[52:55], 0 offen"); qw.issue("gb")
                a("buffer_load_ushort v138, v134, s[56:59], 0 offen"); qw.issue("gb")
            if n < NB - 1:
                assert all(m < nxt for m in WNEED if WNEED[m] <= n + 1), (n, nxt)
                qw.wait(lambda t: (WNEED[t[1]] <= n + 1) if isinstance(t, tuple) else (t in XNEED and XNEED[t] <= n + 1))
        assert not wops, wops
        assert nxt == NS
        a("s_branch L_wepi")

        qx = qx0.copy()
        a.label(f"L_xmain{sl}")
        def run_xops(n):
            for op in xops.pop(n, []):
                if op[0] == "x": xround(qx, *op[1:])
                elif op[0] == "rot": xrot(qx, *op[1:])
                else: xhalf(qx, *op[1:])
        run_xops(-2)
        if T: a("s_memtime s[66:67]"); a("s_memtime s[68:69]")
        a("s_barrier")
        run_xops(-1)
        for n in range(XT + 1):
            qx.wait(lambda t: t in XNEED and XNEED[t] <= n)
            a("s_barrier")
            run_xops(n)
        assert not xops, xops
        if sl < 2: a("s_branch L_xtail")
    a.label("L_xtail")
    a("s_lshl_b32 s44, s23, 5")
    a("v_mov_b32 v140, s44")
    a("global_load_dword v142, v140, s[14:15] sc1")
    if o.codepf:
        a("s_getpc_b64 s[56:57]")
        a.label("L_pc")
        a(f"s_sub_u32 s56, s56, L_pc-L_epi")
        a("s_subb_u32 s57, s57, 0")
        a("s_and_b32 s56, s56, 0xffffff80")
        a(f"s_mov_b32 s58, L_epi_end-L_epi+128")
        a("s_mov_b32 s59, 0x20000")
        a("v_lshlrev_b32 v147, 7, v129")
        a("buffer_load_dword v148, v147, s[56:59], 0 offen")
    for n in range(XT + 1, NB - (1 if o.gate == 2 else 0)): a("s_barrier")
    a("s_mov_b32 s45, 0")
    a.label("L_cnt_wait")
    a("s_waitcnt vmcnt(0)")
    a("v_readfirstlane_b32 s44, v142")
    a("s_add_u32 s45, s45, 1")
    a("s_cmp_ge_u32 s44, 42")
    a("s_cbranch_scc1 L_cnt_ok")
    a("s_cmp_ge_u32 s45, 0x100000")
    a("s_cbranch_scc1 L_cnt_ok")
    a("global_load_dword v142, v140, s[14:15] sc1")
    a("s_branch L_cnt_wait")
    a.label("L_cnt_ok")
    if o.gate:
        a("s_lshl_b32 s44, s23, 14")
        a("s_add_u32 s44, s44, 16256")
        a("v_mov_b32 v140, s44")
        a("v_mov_b32 v141, 1")
        a("s_mov_b64 exec, 1")
        a("global_atomic_add v140, v141, s[16:17]")
    if o.gate == 2: a("s_barrier")
    a("s_barrier")
    if T:
        a("s_waitcnt lgkmcnt(0)")
        a("s_lshl_b32 s44, s2, 7")
        a("s_add_u32 s44, s44, 0x100000")
        a("s_sub_u32 s64, s64, s60"); a("s_sub_u32 s66, s66, s60"); a("s_sub_u32 s68, s68, s60")
        a("v_mov_b32 v40, s64"); a("v_mov_b32 v41, s66"); a("v_mov_b32 v42, s68"); a("v_mov_b32 v43, s44")
        a("s_mov_b64 exec, 1")
        a("global_store_dwordx2 v43, v[40:41], s[16:17] offset:88")
        a("global_store_dword v43, v42, s[16:17] offset:104")
    a.label("L_end")
    a("s_endpgm")

    hdr = f"""; Fused strided conv1d (im2col GEMM on MFMA) + per-channel norm over time + tanh-GELU, one launch.
; @launch grid=(256,1,1) block=(512,1,1) lds={LDS}
.amdgcn_target "amdgcn-amd-amdhsa--gfx950"
.text
.globl {NAME}_kernel
.p2align 8
.type {NAME}_kernel,@function
{NAME}_kernel:
"""
    ftr = f""".section .rodata,"a"
.p2align 6
.amdhsa_kernel {NAME}_kernel
  .amdhsa_next_free_vgpr 256
  .amdhsa_next_free_sgpr 102
  .amdhsa_accum_offset 256
  .amdhsa_group_segment_fixed_size 0
  .amdhsa_kernarg_size 56
  .amdhsa_float_denorm_mode_32 3
  .amdhsa_user_sgpr_count 2
  .amdhsa_user_sgpr_kernarg_segment_ptr 1
  .amdhsa_system_sgpr_workgroup_id_x 1
.end_amdhsa_kernel
"""
    return hdr + a.text() + ftr

def options(argv=None):
    ap = argparse.ArgumentParser()
    ap.add_argument("-o", default=f"cdna_kernels/{NAME}.s")
    ap.add_argument("--timing", action="store_true")
    ap.add_argument("--probe", default="")
    ap.add_argument("--stamps", default="[0, 4, 8, 16, 24, 32, 40, 46, 50, 53]")
    for k, d in dict(light=0, trace=0, ring=15, x_nt=0, wpreq=2, winit=2, winit0=4, winitp=0, winit2=7, wrate=4, wmin=7,
                     brate=2, orate=2, rotrate=4, codepf=1, tpair=0, tn=0, xt=26, blast=1, barb=0, bw=1, verbose=0, pdelay=0, gate=0, prio=0, rt2=0, twave=6, chain=1, early=0, tsnake=1, kc=2, tdist=4, srate=3, wp0=1, atomstep=8, pubfirst=1).items():
        ap.add_argument("--" + k, type=int, default=d)
    ap.add_argument("--stflag", default="")
    ap.add_argument("--wflag", default="")
    ap.add_argument("--xflag", default="")
    ap.add_argument("--xcflag", default="")
    ap.add_argument("--tbars", default="[0,4,8]")
    ap.add_argument("--xslots", default="[]")
    ap.add_argument("--b1", default="[2,6,7]")
    ap.add_argument("--own", default="{1:(0,-1),3:(1,9),5:(2,17),8:(0,24),0:(1,32),4:(2,39)}")
    ap.add_argument("--oth", default="{7:-1,1:7,3:15,5:22,8:30,0:37,4:45}")
    o = ap.parse_args(argv)
    for k in ("b1", "own", "oth", "stamps", "tbars", "xslots"): setattr(o, k, eval(getattr(o, k)))
    for k in ("stflag", "wflag", "xflag", "xcflag"):
        if getattr(o, k): setattr(o, k, " " + getattr(o, k))
    return o

if __name__ == "__main__":
    o = options()
    open(o.o, "w").write(gen(o))
```

```python
import sys, struct, argparse, re

NAME = "standalone__self_sup_conv_stem_wavlm__speech"
L = 7993
ARR = 12800
WB = 9 * ARR
import os
CLASS_ORDER = eval(os.environ.get('CORDER', '[4, 5, 3, 6, 2, 7, 1, 8, 0]'))
def nst(c): return 8 if c <= 4 else 7
STEPS = [(c, p) for c in CLASS_ORDER for p in range(8 if c <= 4 else 7)]
NS = len(STEPS)
def f2u(x): return struct.unpack('<I', struct.pack('<f', x))[0]
def lam_of(c): return (c >> 1, 4 + ((c + 1) >> 1))
NEED = {}
_n = 0
for _c in CLASS_ORDER:
    for _l in lam_of(_c): NEED.setdefault(_l, _n - 2)
    _n += 8 if _c <= 4 else 7
LAM_ORDER = sorted(NEED, key=lambda l: NEED[l])
class Asm:
    def __init__(s): s.lines = []; s.n = 0; s.wv = {}; s.wm = {}
    def __call__(s, t):
        s.lines.append("  " + t)
        m = re.match(r"s_nop (\d+)", t)
        s.n += int(m.group(1)) + 1 if m else 1
    def label(s, t): s.lines.append(t + ":")
    def c(s, t): s.lines.append("  ; " + t)
    def text(s): return "\n".join(s.lines) + "\n"
    def pad(s, since, need):
        d = s.n - since - 1
        if d < need: s(f"s_nop {need - d - 1}")
    def mfma(s, t, dst):
        s(t)
        for r in dst: s.wm[r] = s.n - 1
    def valu(s, t, rd=(), wr=(), dpp=()):
        for r in list(rd) + list(wr) + list(dpp):
            if r in s.wm: s.pad(s.wm[r] - 0, 8)
        for r in dpp:
            if r in s.wv: s.pad(s.wv[r], 2)
        s(t)
        for r in wr: s.wv[r] = s.n - 1

class Q:
    def __init__(s, a, name, cap): s.a = a; s.q = []; s.done = 0; s.name = name; s.cap = cap
    def copy(s):
        t = Q(s.a, s.name, s.cap); t.q = list(s.q); t.done = s.done; return t
    def issue(s, tag):
        s.q.append(tag)
        if s.name == "vmcnt": assert len(s.q) - s.done <= s.cap, "vmcnt overflow"
    def wait(s, pred):
        last = -1
        for i, t in enumerate(s.q):
            if pred(t): last = i
        if last < s.done: return
        s.a(f"s_waitcnt {s.name}({min(len(s.q) - 1 - last, s.cap)})")
        s.done = last + 1

def gen(o):
    R = o.ring
    NM = NS - (o.tn or sum(nst(c) for c in CLASS_ORDER[-o.kc:]))
    TS = list(range(NM, NS)); NT_ = len(TS); D = o.tdist
    assert R >= NT_
    WNEED = {}
    XS = {NS - 12 + 4*i + k: (lam, lam*ARR + 3072*k) for i, lam in enumerate(o.xslots) for k in range(4)} if o.xslots else {}
    def slot(n): return XS[n][1] if n in XS else WB + (n % R)*3072
    PART = WB + R * 3072
    AB = PART + 1536
    FLAG = AB + 384
    LDS = FLAG + 16
    assert LDS <= 163840
    a = Asm()
    xnt = " nt" if o.x_nt else o.xcflag
    T = o.timing
    def probe(tag):
        if o.probe == tag: a("s_memrealtime s[98:99]"); a("s_waitcnt lgkmcnt(0)")
    def probe_end(lbl, mult):
        a("s_waitcnt lgkmcnt(0)")
        if mult:
            a("s_sub_u32 s44, s98, s62"); a(f"s_mul_i32 s44, s44, {mult}")
        else: a("s_mov_b32 s44, 0")
        a("s_add_u32 s44, s44, 3000")
        a.label(lbl)
        a("s_memrealtime s[46:47]"); a("s_waitcnt lgkmcnt(0)"); a("s_sub_u32 s46, s46, s62")
        a("s_cmp_lt_u32 s46, s44"); a(f"s_cbranch_scc1 {lbl}")
    a("s_load_dwordx8 s[4:11], s[0:1], 0")
    a("s_load_dwordx4 s[12:15], s[0:1], 32")
    a("s_load_dwordx2 s[16:17], s[0:1], 48")
    if T: a("s_memtime s[60:61]")
    if T or o.probe or o.light: a("s_memrealtime s[62:63]")
    a("s_cmp_ge_u32 s2, 256")
    a("s_cbranch_scc1 L_end")
    a("v_lshrrev_b32 v130, 6, v0")
    a("v_and_b32 v129, 63, v0")
    a("v_readfirstlane_b32 s18, v130")
    a("s_and_b32 s3, s2, 7")
    a("s_lshr_b32 s49, s2, 3")
    a("s_lshl_b32 s46, s3, 1")
    a("s_add_u32 s46, s46, s49")
    a("s_sub_u32 s46, s46, 30")
    a("s_mul_i32 s47, s3, 10")
    a("s_cmp_lt_u32 s49, 30")
    a("s_cselect_b32 s46, s49, s46")
    a("s_cselect_b32 s47, s47, 80")
    a("s_cselect_b32 s48, 0, s46")
    a("s_cmp_ge_u32 s48, 12")
    a("s_cbranch_scc1 L_end")
    a("s_mul_i32 s48, s46, 43")
    a("s_lshr_b32 s48, s48, 7")
    a("s_add_u32 s19, s47, s48")
    a("s_mul_i32 s48, s48, 3")
    a("s_sub_u32 s20, s46, s48")
    a("s_cmp_ge_u32 s19, 42")
    a("s_cselect_b32 s21, 1, 0")
    a("s_cselect_b32 s48, 42, 0")
    a("s_cselect_b32 s23, 3, 0")
    a("s_cselect_b32 s44, 4608000, 0")
    a("s_sub_u32 s22, s19, s48")
    a("s_add_u32 s23, s23, s20")
    a("s_mul_i32 s45, s22, 110592")
    a("s_add_u32 s44, s44, s45")
    a("s_sub_u32 s26, 4607712, s45")
    a("s_mov_b32 s27, 0x20000")
    a("v_lshrrev_b32 v136, 4, v129")
    a("v_lshrrev_b32 v132, 3, v129")
    a("v_and_b32 v133, 2, v132")
    a("v_and_b32 v134, 7, v129")
    a("v_xor_b32 v133, v133, v134")
    a("v_lshlrev_b32 v133, 4, v133")
    a("v_mul_u32_u24 v131, 1152, v132")
    a("v_add_u32 v131, v131, v133")
    a("s_mul_i32 s43, s20, 96")
    a("s_cmp_ge_u32 s18, 7")
    a("s_cselect_b32 s48, 0, s18")
    a("s_cmp_ge_u32 s48, 4")
    a("s_cbranch_scc1 L_wpro")
    a("s_add_u32 s46, s20, 1")
    a("s_cmp_eq_u32 s46, 3")
    a("s_cselect_b32 s46, 0, s46")
    a("s_add_u32 s47, s20, s46")
    a("s_sub_u32 s47, 3, s47")
    a("s_lshl_b32 s92, s20, 10"); a("s_lshl_b32 s93, s46, 10"); a("s_lshl_b32 s94, s47, 10")
    a("s_mul_i32 s95, s20, 9216"); a("s_mul_i32 s96, s46, 9216"); a("s_mul_i32 s97, s47, 9216")
    a("s_cmp_eq_u32 s18, 7")
    a("s_cbranch_scc1 L_xpro")

    def x_srd():
        a("s_add_u32 s24, s4, s44")
        a("s_addc_u32 s25, s5, 0")
    def pub_srd():
        a("s_lshl_b32 s44, s23, 14")
        a("s_add_u32 s36, s16, s44")
        a("s_addc_u32 s37, s17, 0")
        a("s_mov_b32 s38, 16128")
        a("s_mov_b32 s39, 0x20000")

    a.c("consumer prologue: wave w loads piece m = w of the first arrays")
    a("s_mul_i32 s46, s18, 3072")
    a("s_mul_i32 s47, s18, 27648")
    for d in range(3):
        a(f"s_add_u32 s{92+d}, s{92+d}, s46")
        a(f"s_add_u32 s{95+d}, s{95+d}, s47")
    for k, lam in enumerate(o.b1[:4]):
        a(f"s_cmp_eq_u32 s18, {3-k}")
        a(f"s_cselect_b32 s46, {lam*ARR + 12*1024}, s46")
        a(f"s_cselect_b32 s47, {12*9216 + lam*128}, s47")
    a("s_waitcnt lgkmcnt(0)")
    if T: a("s_memtime s[80:81]")
    x_srd()
    def cload(lam, d):
        a(f"s_add_u32 m0, s{92+d}, {lam*ARR}")
        a(f"s_add_u32 s50, s{95+d}, {lam*128}")
        a(f"buffer_load_dwordx4 v131, s[24:27], s50 offen{xnt if d == 0 else o.xflag} lds")
    for lam in o.b1[:2]: cload(lam, 0)
    a(f"s_cmp_lt_u32 s18, {4 - len(o.b1[:4])}")
    a("s_cbranch_scc1 L_c_nohalf")
    a("s_mov_b32 m0, s46")
    a("s_mov_b32 exec_hi, 0")
    a(f"buffer_load_dwordx4 v131, s[24:27], s47 offen{xnt} lds")
    a("s_mov_b32 exec_hi, -1")
    a.label("L_c_nohalf")
    for lam in o.b1[2:]: cload(lam, 0)
    if T: a("s_memtime s[82:83]")
    for d in (1, 2):
        for lam in LAM_ORDER[:2]: cload(lam, d)
    a("s_branch L_cons")

    a.label("L_wpro")
    qw = Q(a, "vmcnt", 63)
    a("v_subrev_u32 v140, 256, v0")
    a("v_mul_u32_u24 v141, 171, v140")
    a("v_lshrrev_b32 v141, 10, v141")
    a("v_mul_u32_u24 v142, 6, v141")
    a("v_sub_u32 v142, v140, v142")
    a("v_and_b32 v143, 0x13, v141")
    a("v_and_b32 v144, 4, v141")
    a("v_lshl_add_u32 v143, v144, 1, v143")
    a("v_and_b32 v144, 8, v141")
    a("v_lshrrev_b32 v144, 1, v144")
    a("v_add_u32 v143, v143, v144")
    a("v_mul_u32_u24 v143, 288, v143")
    a("v_lshl_add_u32 v139, v142, 4, v143")
    a("s_sub_u32 s49, s18, 4")
    a("s_lshl_b32 s51, s49, 10")
    a("s_sub_u32 s30, 622080, s43")
    a("s_mov_b32 s31, 0x20000")
    a("s_waitcnt lgkmcnt(0)")
    a("s_add_u32 s28, s6, s43")
    a("s_addc_u32 s29, s7, 0")
    probe("K")
    if o.prio & 4: a("s_setprio 3")
    def wload(q, n):
        c, p = STEPS[n]
        a(f"s_add_u32 m0, s51, {slot(n)}")
        a(f"s_mov_b32 s50, {(288*p + 32*c)*288}")
        a(f"buffer_load_dwordx4 v139, s[28:31], s50 offen{o.wflag} lds")
        q.issue(("W", n))
    nxt = 0
    while nxt < o.wpreq: wload(qw, nxt); nxt += 1
    a("s_mov_b32 s92, s51")
    a("s_mul_i32 s95, s49, 9216")
    x_srd()
    a("v_and_b32 v135, 7, v129")
    a("v_lshlrev_b32 v135, 1, v135")
    a("v_lshrrev_b32 v134, 5, v129")
    a("v_add_u32 v135, v135, v134")
    a("s_lshl_b32 s44, s49, 4")
    a("v_add_u32 v135, s44, v135")
    a("v_lshlrev_b32 v134, 1, v135")
    a("v_add_u32 v134, s43, v134")
    a("s_mov_b32 s52, s8"); a("s_mov_b32 s53, s9"); a("s_mov_b32 s54, 288"); a("s_mov_b32 s55, 0x20000")
    a("s_mov_b32 s56, s10"); a("s_mov_b32 s57, s11"); a("s_mov_b32 s58, 288"); a("s_mov_b32 s59, 0x20000")
    pub_srd()
    while nxt < o.winit: wload(qw, nxt); nxt += 1
    if T: a("s_memtime s[90:91]")
    a("s_cmp_eq_u32 s20, 1")
    a("s_cbranch_scc1 L_wmain1")
    a("s_cmp_eq_u32 s20, 2")
    a("s_cbranch_scc1 L_wmain2")
    a("s_branch L_wmain0")

    a.label("L_xpro")
    qx = Q(a, "vmcnt", 63)
    a("s_mov_b32 s30, 622080")
    a("s_mov_b32 s31, 0x20000")
    a("v_lshlrev_b32 v100, 8, v129")
    a("v_add_u32 v100, s2, v100")
    a("v_lshlrev_b32 v100, 7, v100")
    if o.wp0:
        a("v_lshl_add_u32 v141, v129, 5, s49")
        a("v_mul_u32_u24 v142, 911, v141")
        a("v_lshrrev_b32 v142, 16, v142")
        a("v_mul_u32_u24 v143, 73728, v142")
        a("v_lshl_add_u32 v143, v141, 7, v143")
        a(f"v_add_u32 v101, {CLASS_ORDER[0]*9216}, v143")
    def xround(q, lam, r, cold):
        a(f"s_add_u32 m0, s92, {lam*ARR + r*4096}")
        a(f"s_add_u32 s50, s95, {lam*128 + r*36864}")
        a(f"buffer_load_dwordx4 v131, s[24:27], s50 offen{xnt if cold else o.xflag} lds")
        q.issue(lam)
    def xrot(q, lam, d, m):
        a(f"s_add_u32 m0, s{80+d}, {lam*ARR + m*3072}")
        a(f"s_add_u32 s50, s{83+d}, {lam*128 + m*27648}")
        a(f"buffer_load_dwordx4 v131, s[24:27], s50 offen{o.xflag} lds")
        q.issue(lam)
    def xhalf(q, lam, cold=True):
        a(f"s_mov_b32 m0, {lam*ARR + 12*1024}")
        a(f"s_mov_b32 s50, {12*9216 + lam*128}")
        a("s_mov_b32 exec_hi, 0")
        a(f"buffer_load_dwordx4 v131, s[24:27], s50 offen{xnt if cold else o.xflag} lds")
        a("s_mov_b32 exec_hi, -1")
        q.issue(lam)
    a("s_waitcnt lgkmcnt(0)")
    a("s_mov_b32 s28, s6")
    a("s_mov_b32 s29, s7")
    if o.wp0:
        a("s_mov_b64 exec, 0x3ffff")
        a("buffer_load_dword v146, v101, s[28:31], 0 offen"); qx.issue("wp")
    a("s_mov_b64 exec, 0x7ffff")
    a("buffer_load_dword v146, v100, s[28:31], 0 offen"); qx.issue("wm")
    a("s_mov_b64 exec, -1")
    x_srd()
    for d in range(3):
        a(f"s_mov_b32 s{80+d}, s{92+d}"); a(f"s_mov_b32 s{83+d}, s{95+d}")
    a("s_movk_i32 s92, 3072")
    a("s_movk_i32 s95, 27648")
    a(f"v_mov_b32 v140, {FLAG}")
    for i in range(4): a(f"v_mov_b32 v{40+i}, 0")
    a("ds_write_b128 v140, v[40:43]")
    a("s_waitcnt lgkmcnt(0)")
    if T: a("s_memtime s[64:65]")
    a("s_cmp_eq_u32 s20, 1")
    a("s_cbranch_scc1 L_xmain1")
    a("s_cmp_eq_u32 s20, 2")
    a("s_cbranch_scc1 L_xmain2")
    a("s_branch L_xmain0")

    def schedule(sl):
        wops = {}; xops = {}
        for lam in LAM_ORDER[2:]:
            if lam in o.b1:
                k = 0
                for d in (1, 2):
                    for m in range(4):
                        xops.setdefault(o.oth[lam] + k // o.rotrate, []).append(("rot", lam, d, m)); k += 1
                continue
            for r in range(3):
                owner, at = o.own[lam][r] if isinstance(o.own[lam], list) else o.own[lam]
                cold = owner == sl
                st = at + r // o.brate if cold else o.oth[lam] + r // o.orate
                wops.setdefault(st, []).append((lam, r, cold))
                xops.setdefault(st, []).append(("x", lam, r, cold))
            xops.setdefault(st, []).append(("h", lam, cold))
        if not o.barb:
            def mp(d):
                r = {}
                for k in sorted(d): r.setdefault(k if k <= 0 else gof[k], []).extend(d[k])
                return r
            wops, xops = mp(wops), mp(xops)
        return wops, xops

    a.label("L_cons")
    pub_srd()
    a("s_cmp_lg_u32 s18, 0")
    a("s_cbranch_scc1 L_c_noclr")
    a.c("wave 0 clears this workgroup's hand-off words")
    a("v_lshlrev_b32 v142, 4, v129")
    a("s_mul_i32 s50, s22, 384")
    for i in range(4): a(f"v_mov_b32 v{40+i}, -1")
    if o.gate:
        a("s_mov_b64 exec, 0x1000000")
        a("v_mov_b32 v142, 16256")
        for i in range(4): a(f"v_mov_b32 v{40+i}, 0")
        a("s_cmp_eq_u32 s22, 0")
        a("s_mov_b32 s46, 0xffffff")
        a("s_cselect_b32 exec_lo, 0x1ffffff, s46")
        a("s_mov_b32 s38, 16384")
    else:
        a("s_mov_b64 exec, 0xffffff")
    a("buffer_store_dwordx4 v[40:43], v142, s[36:39], s50 offen sc1")
    a("s_mov_b64 exec, -1")
    a.label("L_c_noclr")
    a("v_and_b32 v139, 15, v129")
    a("v_mul_u32_u24 v140, 3, v139")
    a("v_mul_u32_u24 v141, 48, v130")
    a("v_add_u32 v140, v140, v141")
    a("v_and_b32 v141, 1, v140")
    a("v_lshrrev_b32 v142, 1, v140")
    a("v_cmp_eq_u32 vcc, 1, v141")
    for k in range(5):
        if k: a("v_add_u32 v142, 1, v142")
        a("v_and_b32 v143, 2, v142")
        a("v_xor_b32 v143, v143, v136")
        a("v_lshlrev_b32 v143, 4, v143")
        a(f"v_lshl_add_u32 v{100+k}, v142, 7, v143")
    a(f"v_mul_u32_u24 v105, {4*ARR+64}, v141")
    a(f"v_sub_u32 v106, {4*ARR+64}, v105")
    a(f"v_mul_u32_u24 v107, {5*ARR-64}, v141")
    a(f"v_sub_u32 v108, {5*ARR}, v107")
    a("v_add_u32 v107, 64, v107")
    for s in range(8):
        if s % 2 == 0:
            a(f"v_add_u32 v{112+s}, v{100+s//2}, v105")
            a(f"v_add_u32 v{120+s}, v{100+s//2}, v107")
        else:
            a(f"v_cndmask_b32 v143, v{100+s//2}, v{101+s//2}, vcc")
            a(f"v_add_u32 v{112+s}, v143, v106")
            a(f"v_add_u32 v{120+s}, v143, v108")
    a("v_lshrrev_b32 v141, 1, v136")
    a("v_lshlrev_b32 v141, 4, v141")
    a("v_and_b32 v142, 1, v136")
    a("v_lshl_add_u32 v141, v142, 2, v141")
    a("v_bfe_u32 v142, v129, 2, 2")
    a("v_add_u32 v141, v141, v142")
    a("v_mul_u32_u24 v141, 96, v141")
    a("v_and_b32 v142, 3, v129")
    a("v_lshl_add_u32 v141, v142, 3, v141")
    a(f"v_add_u32 v128, {WB}, v141")
    a(f"v_add_u32 v137, {ARR}, v141")
    a("v_mul_u32_u24 v141, 384, v130")
    a("v_and_b32 v143, 12, v139")
    a("v_lshl_add_u32 v142, v136, 5, v143")
    a("v_add_u32 v132, v141, v142")
    a(f"v_add_u32 v132, {PART}, v132")
    a("v_lshlrev_b32 v133, 4, v136")
    a(f"v_add_u32 v133, {AB}, v133")
    a(f"v_mov_b32 v134, {FLAG}")
    a("v_mul_u32_u24 v135, 288, v140")
    a("v_lshl_add_u32 v135, v136, 3, v135")
    C0 = -2.0 * 0.7978845608028654 * 1.4426950408889634
    C1 = C0 * 0.044715
    a(f"v_mov_b32 v144, {f2u(C0):#x}"); a(f"v_mov_b32 v145, {f2u(C0):#x}")
    a(f"v_mov_b32 v146, {f2u(C1):#x}"); a(f"v_mov_b32 v147, {f2u(C1):#x}")
    a("v_mov_b32 v148, 1.0"); a("v_mov_b32 v149, 1.0")
    a(f"s_mul_i32 s44, s21, {L}")
    a("s_mul_i32 s45, s22, 192")
    a("s_add_u32 s44, s44, s45")
    a("s_mul_i32 s44, s44, 288")
    a("s_add_u32 s44, s44, s43")
    a("s_add_u32 s32, s12, s44")
    a("s_addc_u32 s33, s13, 0")
    a(f"s_sub_u32 s34, {L}, s45")
    a("s_mul_i32 s34, s34, 288")
    a("s_sub_u32 s34, s34, s43")
    a("s_mov_b32 s35, 0x20000")
    for t in range(3):
        a(f"s_movk_i32 s46, {L - 41*192 - t}")
        a(f"v_cmp_le_u32 s[{70+2*t}:{71+2*t}], s46, v140")
    a("s_lshl_b32 s44, s23, 5")
    a("v_mov_b32 v141, s44")
    a("v_mov_b32 v142, 1")
    a("s_waitcnt vmcnt(1)")
    a("s_cmp_eq_u32 s18, 0")
    a("s_cbranch_scc1 L_c_p")
    a("s_waitcnt vmcnt(0)")
    a.label("L_c_p")
    if T: a("s_memtime s[84:85]")
    if o.prio & 1: a("s_setprio 3")
    a("s_barrier")
    if T: a("s_memtime s[86:87]"); a("s_waitcnt lgkmcnt(0)")

    lq = Q(a, "lgkmcnt", 15)
    nbar = [0]
    FREEB = {}
    XNEED = {}
    DEADB = {}
    def bar():
        for n in set(t[1] for t in lq.q[:lq.done] if t[0] == "W"):
            if n not in FREEB and n < NM and sum(1 for t in lq.q[:lq.done] if t[0] == "W" and t[1] == n) == 6: FREEB[n] = nbar[0]
        for lam in range(9):
            users = [c for c in CLASS_ORDER if lam in lam_of(c)]
            if lam not in DEADB and all(("F", c, nst(c) + 1) in lq.q[:lq.done] for c in users): DEADB[lam] = nbar[0]
        a("s_barrier"); nbar[0] += 1
    cl = CLASS_ORDER[-1]
    BB = 208
    two = STEPS[NM][0] != cl
    def freg(c, s): return (160 if (two and c == cl) else 36) + 4*s
    def wread(n, nt, d):
        b, off = ("v137", slot(n) - ARR) if n in XS else ("v128", slot(n) - WB)
        assert 0 <= off and off + 768 + 64 < 65536
        return [(f"ds_read_b64_tr_b16 v[{d+2*kh}:{d+2*kh+1}], {b} offset:{off + kh*768 + 32*nt}", ("W", n, nt)) for kh in range(2)]
    def xread(c, s):
        d = freg(c, s)
        return [(f"ds_read_b128 v[{d}:{d+3}], v{112 + 8*(c & 1) + (s & 7)} offset:{(c >> 1)*ARR + (512 if s >= 8 else 0)}", ("F", c, s))]
    first = NM % 2 + o.nsingle
    groups = [[n] for n in range(first)] + [[n, n + 1] for n in range(first, NM, 2)]
    gof = {n: g for g, grp in enumerate(groups) for n in grp}
    def wreg(g, k, nt): return BB + 24*(g % 2) + 12*k + 4*nt
    def ureg(u): return BB + 4*((u + 6*(len(groups) % 2)) % 12)
    def uread(u): return wread(TS[u % NT_], u // NT_, ureg(u)) if u < 3*NT_ else []
    tailF = []
    haveF = set()
    def reads_for(g):
        if g == len(groups):
            for n in TS:
                c, p = STEPS[n]
                for s in range(p, p + 3):
                    if (c, s) not in haveF: haveF.add((c, s)); tailF.append((c, s))
            busy = {freg(STEPS[n][0], STEPS[n][1] + t) for n in groups[-1] for t in range(3)}
            r = []
            while tailF and len(r) < 5 and freg(*tailF[0]) not in busy: r += xread(*tailF.pop(0))
            return r + sum([uread(u) for u in range(D)], [])
        r = []
        for n in groups[g]:
            c, p = STEPS[n]
            for s in range(p, p + 3):
                if (c, s) not in haveF: haveF.add((c, s)); r += xread(c, s)
        for nt in range(3):
            ks = list(range(len(groups[g])))
            for k in (ks if nt % 2 == 0 else ks[::-1]): r += wread(groups[g][k], nt, wreg(g, k, nt))
        return r
    def put(rd):
        t, tag = rd.pop(0); a(t); lq.issue(tag)
        if tag[0] == "W": WNEED.setdefault(tag[1], nbar[0] - 1)
        else:
            for lam in lam_of(tag[1]): XNEED.setdefault(lam, nbar[0] - 1)
    rd = reads_for(0)
    while rd:
        put(rd)
        if len(lq.q) == 12: lq.wait(lambda t: t == lq.q[3])
    for g, grp in enumerate(groups):
        a.c(f"steps {grp}: (class, tap pair) {[STEPS[n] for n in grp]}")
        rd = reads_for(g + 1)
        K_ = len(grp)
        for nt in range(3):
            lq.wait(lambda t: (t[0] == "W" and t[1] in grp and t[2] == nt) or (t[0] == "F" and any(t[1] == STEPS[n][0] and t[2] <= STEPS[n][1] + 2 for n in grp)))
            if nt == 0 or (nt == 2 and K_ == 2 and (o.barb or g >= len(groups) - o.blast)): bar()
            l = [(t, (k if t % 2 == 0 else K_ - 1 - k)) for t in range(3) for k in range(K_)]
            if nt % 2: l = l[::-1]
            seen = set()
            for (t, k) in l:
                c, p = STEPS[grp[k]]
                acc = 12*t + 4*nt
                f = freg(c, p + t); w = wreg(g, k, nt)
                cin = "0" if (g == 0 and t not in seen) else f"v[{acc}:{acc+3}]"
                seen.add(t)
                a.mfma(f"v_mfma_f32_16x16x32_bf16 v[{acc}:{acc+3}], v[{w}:{w+3}], v[{f}:{f+3}], {cin}", range(acc, acc+4))
                if rd: put(rd)
                if K_ == 1 and rd: put(rd)
        assert not rd
        if o.atomstep in grp:
            a("s_cmp_lg_u32 s18, 0")
            a("s_cbranch_scc1 L_c_noatom")
            a("s_waitcnt vmcnt(0)")
            a("s_mov_b64 exec, 1")
            a("global_atomic_add v141, v142, s[14:15]")
            a("s_mov_b64 exec, -1")
            a.label("L_c_noatom")
    a.label("L_epi")
    S1, S2, PQ, RR = 200, 204, 152, 156
    def pr(x): return f"v[{x}:{x+1}]"
    def stats_ops(nt, packed):
        ops = []
        A = [12*t + 4*nt for t in range(3)]
        def V(t, rd=(), wr=(), dpp=()): ops.append(lambda: a.valu(t, rd, wr, dpp))
        def mask():
            for k in range(3):
                for r in range(A[k], A[k]+4): a.pad(a.wm[r], 6)
            a("s_cmp_eq_u32 s22, 41")
            a(f"s_cbranch_scc1 L_c_mask{nt}")
            a.label(f"L_c_masked{nt}")
        ops.append(mask)
        if packed:
            for h in (0, 2): V(f"v_pk_mul_f32 {pr(S2+h)}, {pr(A[0]+h)}, {pr(A[0]+h)}", [A[0]+h, A[0]+h+1], [S2+h, S2+h+1])
            for h in (0, 2): V(f"v_pk_add_f32 {pr(S1+h)}, {pr(A[0]+h)}, {pr(A[1]+h)}", [A[1]+h, A[1]+h+1], [S1+h, S1+h+1])
            for h in (0, 2): V(f"v_pk_fma_f32 {pr(S2+h)}, {pr(A[1]+h)}, {pr(A[1]+h)}, {pr(S2+h)}", [], [S2+h, S2+h+1])
            for h in (0, 2): V(f"v_pk_add_f32 {pr(S1+h)}, {pr(S1+h)}, {pr(A[2]+h)}", [A[2]+h, A[2]+h+1], [S1+h, S1+h+1])
            for h in (0, 2): V(f"v_pk_fma_f32 {pr(S2+h)}, {pr(A[2]+h)}, {pr(A[2]+h)}, {pr(S2+h)}", [], [S2+h, S2+h+1])
        else:
            for h in range(4): V(f"v_mul_f32 v{S2+h}, v{A[0]+h}, v{A[0]+h}", [A[0]+h], [S2+h])
            for h in range(4): V(f"v_add_f32 v{S1+h}, v{A[0]+h}, v{A[1]+h}", [A[1]+h], [S1+h])
            for h in range(4): V(f"v_fmac_f32 v{S2+h}, v{A[1]+h}, v{A[1]+h}", [], [S2+h])
            for h in range(4): V(f"v_add_f32 v{S1+h}, v{S1+h}, v{A[2]+h}", [A[2]+h], [S1+h])
            for h in range(4): V(f"v_fmac_f32 v{S2+h}, v{A[2]+h}, v{A[2]+h}", [], [S2+h])
        for k, S in enumerate((S1, S2)):
            for m in range(2):
                d = PQ + 2*k + m
                V(f"v_add_f32_dpp v{d}, v{S+2*m}, v{S+2*m} row_shl:8 row_mask:0xf bank_mask:0x3", [], [d], [S+2*m])
                V(f"v_add_f32_dpp v{d}, v{S+2*m+1}, v{S+2*m+1} row_shr:8 row_mask:0xf bank_mask:0xc", [], [d], [S+2*m+1])
        for m in range(2): V(f"v_add_f32_dpp v{RR+m}, v{PQ+m}, v{PQ+m} row_shl:4 row_mask:0xf bank_mask:0x5", [], [RR+m], [PQ+m])
        for m in range(2): V(f"v_add_f32_dpp v{RR+m}, v{PQ+2+m}, v{PQ+2+m} row_shr:4 row_mask:0xf bank_mask:0xa", [], [RR+m], [PQ+2+m])
        for qp in ("[2,3,0,1]", "[1,0,3,2]"):
            for m in range(2): V(f"v_add_f32_dpp v{RR+m}, v{RR+m}, v{RR+m} quad_perm:{qp} row_mask:0xf bank_mask:0xf", [], [RR+m], [RR+m])
        def wr():
            a(f"ds_write2_b32 v132, v{RR}, v{RR+1} offset0:{32*nt} offset1:{32*nt+4}"); lq.issue(("S", nt))
        ops.append(wr)
        return ops
    pend = []; bar_due = None; ne1 = 0
    ugroups = []
    for nt in range(3):
        us = list(range(nt*NT_, (nt + 1)*NT_))
        if o.tpair:
            if len(us) % 2: ugroups.append([us.pop(0)])
            ugroups += [us[k:k+2] for k in range(0, len(us), 2)]
        else: ugroups += [[u] for u in us]
    flip = False
    for ug in ugroups:
        nt = ug[0] // NT_
        ns = [TS[u % NT_] for u in ug]
        a.c(f"column tile {nt}, steps {ns}")
        lq.wait(lambda t: (t[0] == "W" and t[1] in ns and t[2] == nt) or (t[0] == "F" and any(t[1] == STEPS[n][0] and t[2] <= STEPS[n][1] + 2 for n in ns)))
        if any(u in o.tbars for u in ug): bar()
        if bar_due is not None and bar_due[1] <= ug[0]:
            lq.wait(lambda t: t == ("S", bar_due[0])); a("s_barrier"); bar_due = None; ne1 += 1
        rd = []
        for u in ug:
            for _ in range(2 if (two and u < 4) else 1):
                if tailF: rd += xread(*tailF.pop(0))
        for u in ug: rd += uread(u + D)
        if nt > 0 and (nt*NT_ + 1) in ug: pend = pend + stats_ops(nt - 1, False)
        K_ = len(ug)
        l = [(t, (k if t % 2 == 0 else K_ - 1 - k)) for t in range(3) for k in range(K_)]
        if flip: l = [(2 - t, k) for (t, k) in l]
        flip = not flip
        for m, (t, k) in enumerate(l):
            c, p = STEPS[ns[k]]
            acc = 12*t + 4*nt
            f = freg(c, p + t); w = ureg(ug[k])
            a.mfma(f"v_mfma_f32_16x16x32_bf16 v[{acc}:{acc+3}], v[{w}:{w+3}], v[{f}:{f+3}], v[{acc}:{acc+3}]", range(acc, acc+4))
            n1 = a.n
            if rd: put(rd)
            if len(rd) > len(l) - 1 - m: put(rd)
            room = o.srate - (1 if m == len(l) - 1 else 0)
            while pend and a.n - n1 < room:
                pend.pop(0)()
                if lq.q[-1][0] == "S" and lq.q[-1][1] == ne1 and bar_due is None: bar_due = (ne1, ug[-1] + 2)
        assert not rd
    while pend: pend.pop(0)()
    while ne1 < 2:
        assert ("S", ne1) in lq.q
        lq.wait(lambda t: t == ("S", ne1)); a("s_barrier"); ne1 += 1
    for op in stats_ops(2, True): op()
    lq.wait(lambda t: t == ("S", 2))
    a("s_barrier")
    if o.pubfirst: a("s_barrier")
    NB = nbar[0]
    Y, U, O = 72, 84, 96
    for nt in range(3):
        a.label(f"L_c_wait{nt}")
        a(f"ds_read_b32 v48, v134 offset:{4*nt}")
        a(f"ds_read_b128 v[40:43], v133 offset:{64*nt}")
        a(f"ds_read_b128 v[44:47], v133 offset:{192 + 64*nt}")
        a("s_waitcnt lgkmcnt(0)")
        a("v_cmp_eq_u32 vcc, 0, v48")
        H = [12*(i // 2) + 4*nt + 2*(i % 2) for i in range(6)]
        a(f"v_pk_fma_f32 {pr(Y)}, {pr(H[0])}, v[40:41], v[44:45]")
        a(f"s_cbranch_vccnz L_c_wait{nt}")
        if T and nt == 2: a("s_memtime s[88:89]")
        for i in range(1, 6): a(f"v_pk_fma_f32 {pr(Y+2*i)}, {pr(H[i])}, {pr(40+2*(i%2))}, {pr(44+2*(i%2))}")
        for i in range(6): a(f"v_pk_mul_f32 {pr(U+2*i)}, {pr(Y+2*i)}, {pr(Y+2*i)}")
        for i in range(6): a(f"v_pk_fma_f32 {pr(U+2*i)}, {pr(U+2*i)}, v[146:147], v[144:145]")
        for i in range(6): a(f"v_pk_mul_f32 {pr(U+2*i)}, {pr(U+2*i)}, {pr(Y+2*i)}")
        for i in range(12): a(f"v_exp_f32 v{U+i}, v{U+i}")
        for i in range(6): a(f"v_pk_add_f32 {pr(U+2*i)}, {pr(U+2*i)}, v[148:149]")
        Ot = O + 6*nt
        for t in range(3):
            for i in range(4*t, 4*t+4): a(f"v_rcp_f32 v{U+i}, v{U+i}")
            if t > 0: a(f"buffer_store_dwordx2 v[{Ot+2*t-2}:{Ot+2*t-1}], v135, s[32:35], 0 offen offset:{288*(t-1) + 32*nt}{o.stflag}")
            else: a("s_nop 0")
            for i in (2*t, 2*t+1): a(f"v_pk_mul_f32 {pr(Y+2*i)}, {pr(Y+2*i)}, {pr(U+2*i)}")
            for i in (2*t, 2*t+1): a(f"v_cvt_pk_bf16_f32 v{Ot+i}, v{Y+2*i}, v{Y+2*i+1}")
        a(f"buffer_store_dwordx2 v[{Ot+4}:{Ot+5}], v135, s[32:35], 0 offen offset:{576 + 32*nt}{o.stflag}")
    if T:
        a("s_memtime s[64:65]")
        a("s_waitcnt vmcnt(0)")
        a("s_memtime s[66:67]")
        a("s_memrealtime s[68:69]")
        a("s_cmp_lg_u32 s18, 0")
        a("s_cbranch_scc1 L_end")
        a("s_waitcnt lgkmcnt(0)")
        a("s_lshl_b32 s44, s2, 7")
        a("s_add_u32 s44, s44, 0x100040")
        a("v_mov_b32 v40, s60"); a("v_mov_b32 v41, s62"); a("v_mov_b32 v42, s64"); a("v_mov_b32 v43, s66")
        a("v_mov_b32 v44, s68"); a("v_mov_b32 v45, s88")
        a("v_mov_b32 v48, s44")
        a("s_mov_b64 exec, 1")
        a("global_store_dwordx4 v48, v[40:43], s[16:17]")
        a("global_store_dwordx2 v48, v[44:45], s[16:17] offset:16")
        a("v_mov_b32 v52, s80"); a("v_mov_b32 v53, s82"); a("v_mov_b32 v54, s84"); a("v_mov_b32 v55, s86")
        a("global_store_dwordx4 v48, v[52:55], s[16:17] offset:48")
    if o.light:
        a("s_cmp_lg_u32 s18, 0")
        a("s_cbranch_scc1 L_end")
        a("s_waitcnt vmcnt(0)")
        a("s_memrealtime s[68:69]")
        a("s_lshl_b32 s44, s2, 7")
        a("s_add_u32 s44, s44, 0x100040")
        a("v_mov_b32 v48, s44")
        a("s_waitcnt lgkmcnt(0)")
        a("v_mov_b32 v40, s62"); a("v_mov_b32 v41, s68")
        a("s_mov_b64 exec, 1")
        a("global_store_dwordx2 v48, v[40:41], s[16:17]")
    if o.probe == "done":
        a("s_waitcnt vmcnt(0)"); probe("done"); probe_end("L_probe_c", 4)
    a("s_endpgm")
    for nt in range(3):
        a.label(f"L_c_mask{nt}")
        for t in range(3):
            a(f"s_mov_b64 exec, s[{70+2*t}:{71+2*t}]")
            for h in (0, 2): a(f"v_mov_b64 {pr(12*t + 4*nt + h)}, 0")
        a("s_mov_b64 exec, -1")
        a(f"s_branch L_c_masked{nt}")

    a.label("L_wepi")
    if o.prio & 2: a("s_setprio 3")
    a("v_and_b32 v140, 7, v129")
    a("v_lshlrev_b32 v140, 4, v140")
    a("s_lshl_b32 s44, s49, 7")
    a("v_add_u32 v140, s44, v140")
    a(f"v_add_u32 v141, {PART}, v140")
    a("v_lshrrev_b32 v142, 3, v129")
    a("v_mul_u32_u24 v142, 384, v142")
    a("v_add_u32 v142, v142, v140")
    a("s_mul_i32 s50, s22, 384")
    a("v_lshlrev_b32 v143, 2, v135")
    a(f"v_add_u32 v143, {AB}, v143")
    a("s_lshl_b32 s44, s49, 2")
    a(f"s_add_u32 s44, s44, {FLAG}")
    a("v_mov_b32 v144, s44")
    a("v_mov_b32 v145, 1")
    a(f"s_mov_b32 s44, {f2u(1.0/L):#x}")
    a("s_mov_b32 s45, 0")
    a("s_movk_i32 s46, 3072"); a("s_movk_i32 s47, 9216"); a("s_movk_i32 s48, 15360")
    a("s_waitcnt vmcnt(0)")
    a("v_lshlrev_b32 v137, 16, v137")
    a("v_lshlrev_b32 v138, 16, v138")
    if o.gate:
        a("s_lshl_b32 s42, s23, 14")
        a("s_add_u32 s42, s42, 16256")
        a("v_mov_b32 v149, s42")
    a("s_mov_b64 exec, 0xff")
    a("s_mov_b32 s42, 0")
    a.label("L_w_e1")
    a("s_barrier")
    if o.trace:
        a("s_memtime s[88:89]"); a("s_waitcnt lgkmcnt(0)"); a("s_sub_u32 s88, s88, s60")
        a("s_add_u32 m0, s42, 61"); a("v_writelane_b32 v150, s88, m0")
    a("s_cmp_lg_u32 s42, s49")
    a("s_cbranch_scc1 L_w_nopub")
    if T: a("s_memtime s[86:87]")
    if T and o.rt2: a("s_memrealtime s[98:99]")
    probe("E1")
    for w in range(4): a(f"ds_read_b128 v[{40+4*w}:{43+4*w}], v141 offset:{384*w}")
    a("s_waitcnt lgkmcnt(2)" if not T else "s_waitcnt lgkmcnt(0)")
    a("v_pk_add_f32 v[40:41], v[40:41], v[44:45]")
    a("v_pk_add_f32 v[42:43], v[42:43], v[46:47]")
    a("s_waitcnt lgkmcnt(0)")
    a("v_pk_add_f32 v[48:49], v[48:49], v[52:53]")
    a("v_pk_add_f32 v[50:51], v[50:51], v[54:55]")
    a("v_pk_add_f32 v[40:41], v[40:41], v[48:49]")
    a("v_pk_add_f32 v[42:43], v[42:43], v[50:51]")
    for i in range(4): a(f"v_min_u32 v{40+i}, -2, v{40+i}")
    a("buffer_store_dwordx4 v[40:43], v140, s[36:39], s50 offen sc1")
    so = ["0", "s46", "s46", "s47", "s47", "s48"]; io = [0, 0, 3072, 0, 3072, 0]
    def polls():
        for k in range(6): a(f"buffer_load_dwordx4 v[{44+4*k}:{47+4*k}], v142, s[36:39], {so[k]} offen offset:{io[k]} sc1")
    if o.early:
        a(f"s_cmp_ge_u32 s49, {o.early}")
        a("s_cbranch_scc1 L_w_nopub")
        a("s_mov_b64 exec, -1")
        polls()
    a.label("L_w_nopub")
    if o.gate:
        a("s_cmp_lg_u32 s42, 1")
        a("s_cbranch_scc1 L_w_nogate")
        a("global_load_dword v148, v149, s[16:17] sc1")
        a.label("L_w_nogate")
    a("s_add_u32 s42, s42, 1")
    a("s_cmp_lt_u32 s42, 3")
    a("s_cbranch_scc1 L_w_e1")
    a("s_mov_b64 exec, -1")
    if o.pubfirst == 2: a("s_waitcnt vmcnt(0)")
    if o.pubfirst:
        a("s_barrier")
    if o.pdelay:
        a("s_cmp_lg_u32 s49, 0")
        a("s_cbranch_scc1 L_nodelay")
        for _ in range(o.pdelay):
            a("ds_read_b32 v147, v144"); a("s_waitcnt lgkmcnt(0)")
        a.label("L_nodelay")
    if o.early:
        a(f"s_cmp_lt_u32 s49, {o.early}")
        a("s_cbranch_scc1 L_pollwait")
    if o.chain:
        a("s_cmp_eq_u32 s49, 0")
        a("s_cbranch_scc1 L_gate" if o.gate else "s_cbranch_scc1 L_poll")
        a(f"v_mov_b32 v146, {FLAG}")
        if o.chain == 2:
            a("s_lshl_b32 s42, s49, 2"); a("s_sub_u32 s42, s42, 4"); a("v_add_u32 v146, s42, v146")
        if o.chain == 3:
            a("s_cmp_eq_u32 s49, 1"); a("s_cbranch_scc1 L_poll"); a("v_add_u32 v146, 4, v146")
        if o.chain == 4:
            a("s_cmp_eq_u32 s49, 1"); a("s_cbranch_scc1 L_poll")
        a.label("L_chain")
        a("ds_read_b32 v147, v146")
        a("s_waitcnt lgkmcnt(0)")
        a("v_cmp_eq_u32 vcc, 0, v147")
        a("s_nop 0")
        a("s_cbranch_vccnz L_chain")
    a.label("L_poll")
    polls()
    a.label("L_pollwait")
    a("s_waitcnt vmcnt(4)")
    a("v_pk_add_f32 v[68:69], v[44:45], v[48:49]")
    a("v_pk_add_f32 v[70:71], v[46:47], v[50:51]")
    a("s_waitcnt vmcnt(2)")
    a("v_pk_add_f32 v[72:73], v[52:53], v[56:57]")
    a("v_pk_add_f32 v[74:75], v[54:55], v[58:59]")
    a("v_pk_add_f32 v[68:69], v[68:69], v[72:73]")
    a("v_pk_add_f32 v[70:71], v[70:71], v[74:75]")
    a("s_waitcnt vmcnt(0)")
    a("v_pk_add_f32 v[72:73], v[60:61], v[64:65]")
    a("v_pk_add_f32 v[74:75], v[62:63], v[66:67]")
    a("v_pk_add_f32 v[68:69], v[68:69], v[72:73]")
    a("v_pk_add_f32 v[70:71], v[70:71], v[74:75]")
    a("v_cmp_u_f32 vcc, v68, v69")
    a("v_cmp_u_f32 s[90:91], v70, v71")
    a("s_nop 0")
    a("s_or_b64 vcc, vcc, s[90:91]")
    a("s_cbranch_vccnz L_recheck")
    a.label("L_polled")
    probe("gath")
    if T and o.rt2: a("s_memrealtime s[100:101]")
    if T: a("s_memtime s[88:89]")
    a("v_permlane32_swap_b32 v68, v70")
    a("v_permlane32_swap_b32 v69, v71")
    a("v_add_f32 v68, v68, v70")
    a("v_add_f32 v69, v69, v71")
    a("s_nop 1")
    a("v_permlane16_swap_b32 v68, v69")
    a("v_add_f32 v68, v68, v69")
    a("s_nop 1")
    a("v_add_f32_dpp v68, v68, v68 row_ror:8 row_mask:0xf bank_mask:0xf")
    a("v_mul_f32 v68, s44, v68")
    a("v_mov_b32 v69, v68")
    a("s_nop 1")
    a("v_permlane16_swap_b32 v68, v69")
    a("v_fma_f32 v69, -v68, v68, v69")
    a("v_max_f32 v69, 0, v69")
    a(f"v_add_f32 v69, {f2u(1e-5):#x}, v69")
    a("v_rsq_f32 v69, v69")
    a("s_mov_b32 exec_lo, 0xff")
    a("s_mov_b32 exec_hi, 0xff")
    a("v_mul_f32 v69, v137, v69")
    a("v_fma_f32 v68, -v68, v69, v138")
    a("ds_write2_b32 v143, v69, v68 offset0:0 offset1:48")
    a("ds_write_b32 v144, v145")
    if T:
        a(f"s_cmp_lg_u32 s18, {o.twave}")
        a("s_cbranch_scc1 L_end")
        a("s_waitcnt lgkmcnt(0)")
        a("s_memtime s[90:91]")
        a("s_waitcnt lgkmcnt(0)")
        a("s_lshl_b32 s44, s2, 7")
        a("s_add_u32 s44, s44, 0x100000")
        regs = [60, 64] + list(range(66, 86, 2)) + [86, 88, 90, 62]
        for i, r in enumerate(regs): a(f"v_mov_b32 v{40+i}, s{r}")
        a("v_mov_b32 v60, s44")
        a("v_mov_b32 v62, s98"); a("v_mov_b32 v63, s100")
        a("s_mov_b64 exec, 1")
        for k in range(4): a(f"global_store_dwordx4 v60, v[{40+4*k}:{43+4*k}], s[16:17] offset:{16*k}")
        a("global_store_dwordx2 v60, v[62:63], s[16:17] offset:96")
        a("global_store_dword v60, v149, s[16:17] offset:108")
        if o.trace:
            a("s_mov_b64 exec, -1")
            a("s_lshl_b32 s44, s2, 9"); a("s_add_u32 s44, s44, 0x200000")
            a("v_lshlrev_b32 v60, 2, v129"); a("v_add_u32 v60, s44, v60")
            a("global_store_dword v60, v150, s[16:17]")
            a("global_store_dword v60, v151, s[16:17] offset:256")
    if o.probe and o.probe != "done": probe_end("L_probe_w", 0 if o.probe == "fixed" else 4)
    a("s_endpgm")
    if o.gate:
        a.label("L_gate")
        a.c("line 0 is first read once every workgroup of the group is close to its end")
        a("s_waitcnt vmcnt(0)")
        a("v_readfirstlane_b32 s42, v148")
        a("s_add_u32 s45, s45, 1")
        a("s_cmp_ge_u32 s42, 42")
        a("s_cbranch_scc1 L_poll")
        a("s_cmp_ge_u32 s45, 0x100000")
        a("s_cbranch_scc1 L_poll")
        a("global_load_dword v148, v149, s[16:17] sc1")
        a("s_branch L_gate")
    a.label("L_recheck")
    a.c("a NaN sum: a word not yet written, or a genuine NaN")
    for k in range(8): a(f"v_max3_u32 v{72+k}, v{44+3*k}, v{45+3*k}, v{46+3*k}")
    a("v_max3_u32 v72, v72, v73, v74"); a("v_max3_u32 v75, v75, v76, v77")
    a("v_max3_u32 v72, v72, v78, v79"); a("v_max_u32 v72, v72, v75")
    a("v_cmp_eq_u32 vcc, -1, v72")
    a("s_add_u32 s45, s45, 1")
    a("s_cmp_ge_u32 s45, 0x100000")
    a("s_cbranch_scc1 L_polled")
    a("s_cbranch_vccnz L_poll")
    a("s_branch L_polled")
    a.label("L_epi_end")

    def canissue(m, n): return DEADB[XS[m][0]] <= n if m in XS else (m < R or FREEB[m - R] <= n)
    XT = o.xt if o.xslots else FREEB[NS - 1 - R]
    assert NB - 1 >= XT and XT >= max(XNEED.values())
    if o.verbose: print('WNEED', WNEED, 'FREEB', FREEB, 'XNEED', XNEED, 'DEADB', DEADB, 'NB', NB, 'XT', XT)
    qw0, nxt0, qx0 = qw, nxt, qx
    for sl in range(3):
        wops, xops = schedule(sl)
        qw = qw0.copy(); nxt = nxt0
        a.label(f"L_wmain{sl}")
        def run_wops(n):
            for op in wops.pop(n, []): xround(qw, *op)
        run_wops(-2)
        if T:
            a("s_waitcnt lgkmcnt(0)"); a("s_sub_u32 s90, s90, s60"); a("v_mov_b32 v149, s90")
        qw.wait(lambda t: t == ("W", 0))
        while nxt < o.winit0: wload(qw, nxt); nxt += 1
        qw.wait(lambda t: isinstance(t, tuple) and WNEED[t[1]] < 0)
        while nxt < o.winitp: wload(qw, nxt); nxt += 1
        if T: a("s_memtime s[64:65]")
        probe("P0")
        a("s_barrier")
        probe("P")
        while nxt < o.winit2: wload(qw, nxt); nxt += 1
        run_wops(-1)
        assert all(m < nxt for m in WNEED if WNEED[m] <= 0)
        qw.wait(lambda t: isinstance(t, tuple) and WNEED[t[1]] <= 0)
        stamp = 66
        for n in range(NB):
            a("s_barrier")
            if T and n in o.stamps:
                a(f"s_memtime s[{stamp}:{stamp+1}]"); stamp += 2
                if n == 0 and not o.rt2: a("s_memrealtime s[98:99]")
                if n == o.stamps[-1] and not o.rt2: a("s_memrealtime s[100:101]")
            probe(f"b{n}")
            if o.trace and n >= NB - o.trace:
                a("s_memtime s[88:89]"); a("s_waitcnt lgkmcnt(0)"); a("s_sub_u32 s88, s88, s60")
                a(f"v_writelane_b32 v150, s88, {61 - (NB - n)}")
            busy = len(wops.get(n, []))
            run_wops(n)
            k = 0
            while nxt < NS and canissue(nxt, n) and (k < o.wrate - busy * o.bw or nxt <= (n if o.barb else groups[min(n, len(groups)-1)][0] + 1) + o.wmin):
                wload(qw, nxt); nxt += 1; k += 1
            if n == XT:
                assert nxt == NS, (n, nxt)
                a("buffer_load_ushort v137, v134, s[52:55], 0 offen"); qw.issue("gb")
                a("buffer_load_ushort v138, v134, s[56:59], 0 offen"); qw.issue("gb")
            if n < NB - 1:
                assert all(m < nxt for m in WNEED if WNEED[m] <= n + 1), (n, nxt)
                qw.wait(lambda t: (WNEED[t[1]] <= n + 1) if isinstance(t, tuple) else (t in XNEED and XNEED[t] <= n + 1))
        assert not wops, wops
        assert nxt == NS
        a("s_branch L_wepi")

        qx = qx0.copy()
        a.label(f"L_xmain{sl}")
        def run_xops(n):
            for op in xops.pop(n, []):
                if op[0] == "x": xround(qx, *op[1:])
                elif op[0] == "rot": xrot(qx, *op[1:])
                else: xhalf(qx, *op[1:])
        run_xops(-2)
        if T: a("s_memtime s[66:67]"); a("s_memtime s[68:69]")
        a("s_barrier")
        run_xops(-1)
        for n in range(XT + 1):
            qx.wait(lambda t: t in XNEED and XNEED[t] <= n)
            a("s_barrier")
            run_xops(n)
        assert not xops, xops
        if sl < 2: a("s_branch L_xtail")
    a.label("L_xtail")
    a("s_lshl_b32 s44, s23, 5")
    a("v_mov_b32 v140, s44")
    a("global_load_dword v142, v140, s[14:15] sc1")
    if o.codepf:
        a("s_getpc_b64 s[56:57]")
        a.label("L_pc")
        a(f"s_sub_u32 s56, s56, L_pc-L_epi")
        a("s_subb_u32 s57, s57, 0")
        a("s_and_b32 s56, s56, 0xffffff80")
        a(f"s_mov_b32 s58, L_epi_end-L_epi+128")
        a("s_mov_b32 s59, 0x20000")
        a("v_lshlrev_b32 v147, 7, v129")
        a("buffer_load_dword v148, v147, s[56:59], 0 offen")
    for n in range(XT + 1, NB - (1 if o.gate == 2 else 0)): a("s_barrier")
    a("s_mov_b32 s45, 0")
    a.label("L_cnt_wait")
    a("s_waitcnt vmcnt(0)")
    a("v_readfirstlane_b32 s44, v142")
    a("s_add_u32 s45, s45, 1")
    a("s_cmp_ge_u32 s44, 42")
    a("s_cbranch_scc1 L_cnt_ok")
    a("s_cmp_ge_u32 s45, 0x100000")
    a("s_cbranch_scc1 L_cnt_ok")
    a("global_load_dword v142, v140, s[14:15] sc1")
    a("s_branch L_cnt_wait")
    a.label("L_cnt_ok")
    if o.gate:
        a("s_lshl_b32 s44, s23, 14")
        a("s_add_u32 s44, s44, 16256")
        a("v_mov_b32 v140, s44")
        a("v_mov_b32 v141, 1")
        a("s_mov_b64 exec, 1")
        a("global_atomic_add v140, v141, s[16:17]")
    if o.gate == 2: a("s_barrier")
    a("s_barrier")
    if T:
        a("s_waitcnt lgkmcnt(0)")
        a("s_lshl_b32 s44, s2, 7")
        a("s_add_u32 s44, s44, 0x100000")
        a("s_sub_u32 s64, s64, s60"); a("s_sub_u32 s66, s66, s60"); a("s_sub_u32 s68, s68, s60")
        a("v_mov_b32 v40, s64"); a("v_mov_b32 v41, s66"); a("v_mov_b32 v42, s68"); a("v_mov_b32 v43, s44")
        a("s_mov_b64 exec, 1")
        a("global_store_dwordx2 v43, v[40:41], s[16:17] offset:88")
        a("global_store_dword v43, v42, s[16:17] offset:104")
    a.label("L_end")
    a("s_endpgm")

    hdr = f"""; Fused strided conv1d (im2col GEMM on MFMA) + per-channel norm over time + tanh-GELU, one launch.
; @launch grid=(256,1,1) block=(512,1,1) lds={LDS}
.amdgcn_target "amdgcn-amd-amdhsa--gfx950"
.text
.globl {NAME}_kernel
.p2align 8
.type {NAME}_kernel,@function
{NAME}_kernel:
"""
    ftr = f""".section .rodata,"a"
.p2align 6
.amdhsa_kernel {NAME}_kernel
  .amdhsa_next_free_vgpr 256
  .amdhsa_next_free_sgpr 102
  .amdhsa_accum_offset 256
  .amdhsa_group_segment_fixed_size 0
  .amdhsa_kernarg_size 56
  .amdhsa_float_denorm_mode_32 3
  .amdhsa_user_sgpr_count 2
  .amdhsa_user_sgpr_kernarg_segment_ptr 1
  .amdhsa_system_sgpr_workgroup_id_x 1
.end_amdhsa_kernel
"""
    return hdr + a.text() + ftr

def options(argv=None):
    ap = argparse.ArgumentParser()
    ap.add_argument("-o", default=f"cdna_kernels/{NAME}.s")
    ap.add_argument("--timing", action="store_true")
    ap.add_argument("--probe", default="")
    ap.add_argument("--stamps", default="[0, 4, 8, 16, 24, 32, 40, 46, 50, 53]")
    for k, d in dict(light=0, trace=0, ring=15, x_nt=0, wpreq=2, winit=2, winit0=4, winitp=0, winit2=7, wrate=5, wmin=9,
                     brate=2, orate=2, rotrate=4, codepf=1, nsingle=0, tpair=0, tn=0, xt=26, blast=1, barb=0, bw=1, verbose=0, pdelay=0, gate=0, prio=0, rt2=0, twave=6, chain=1, early=0, tsnake=1, kc=2, tdist=4, srate=3, wp0=1, atomstep=8, pubfirst=1).items():
        ap.add_argument("--" + k, type=int, default=d)
    ap.add_argument("--stflag", default="")
    ap.add_argument("--wflag", default="")
    ap.add_argument("--xflag", default="")
    ap.add_argument("--xcflag", default="")
    ap.add_argument("--tbars", default="[0,4,8]")
    ap.add_argument("--xslots", default="[]")
    ap.add_argument("--b1", default="[2,6,7]")
    ap.add_argument("--own", default="{1:(0,-1),3:(1,9),5:(2,17),8:(0,24),0:(1,32),4:(2,39)}")
    ap.add_argument("--oth", default="{7:-1,1:7,3:15,5:22,8:30,0:37,4:45}")
    o = ap.parse_args(argv)
    for k in ("b1", "own", "oth", "stamps", "tbars", "xslots"): setattr(o, k, eval(getattr(o, k)))
    for k in ("stflag", "wflag", "xflag", "xcflag"):
        if getattr(o, k): setattr(o, k, " " + getattr(o, k))
    return o

if __name__ == "__main__":
    o = options()
    open(o.o, "w").write(gen(o))
```

```python
import sys, struct, argparse, re

NAME = "standalone__self_sup_conv_stem_wavlm__speech"
L = 7993
ARR = 12800
WB = 9 * ARR
import os
CLASS_ORDER = eval(os.environ.get('CORDER', '[4, 5, 3, 6, 2, 7, 1, 8, 0]'))
def nst(c): return 8 if c <= 4 else 7
STEPS = [(c, p) for c in CLASS_ORDER for p in range(8 if c <= 4 else 7)]
NS = len(STEPS)
def f2u(x): return struct.unpack('<I', struct.pack('<f', x))[0]
def lam_of(c): return (c >> 1, 4 + ((c + 1) >> 1))
NEED = {}
_n = 0
for _c in CLASS_ORDER:
    for _l in lam_of(_c): NEED.setdefault(_l, _n - 2)
    _n += 8 if _c <= 4 else 7
LAM_ORDER = sorted(NEED, key=lambda l: NEED[l])
class Asm:
    def __init__(s): s.lines = []; s.n = 0; s.wv = {}; s.wm = {}
    def __call__(s, t):
        s.lines.append("  " + t)
        m = re.match(r"s_nop (\d+)", t)
        s.n += int(m.group(1)) + 1 if m else 1
    def label(s, t): s.lines.append(t + ":")
    def c(s, t): s.lines.append("  ; " + t)
    def text(s): return "\n".join(s.lines) + "\n"
    def pad(s, since, need):
        d = s.n - since - 1
        if d < need: s(f"s_nop {need - d - 1}")
    def mfma(s, t, dst):
        s(t)
        for r in dst: s.wm[r] = s.n - 1
    def valu(s, t, rd=(), wr=(), dpp=()):
        for r in list(rd) + list(wr) + list(dpp):
            if r in s.wm: s.pad(s.wm[r] - 0, 8)
        for r in dpp:
            if r in s.wv: s.pad(s.wv[r], 2)
        s(t)
        for r in wr: s.wv[r] = s.n - 1

class Q:
    def __init__(s, a, name, cap): s.a = a; s.q = []; s.done = 0; s.name = name; s.cap = cap
    def copy(s):
        t = Q(s.a, s.name, s.cap); t.q = list(s.q); t.done = s.done; return t
    def issue(s, tag):
        s.q.append(tag)
        if s.name == "vmcnt": assert len(s.q) - s.done <= s.cap, "vmcnt overflow"
    def wait(s, pred):
        last = -1
        for i, t in enumerate(s.q):
            if pred(t): last = i
        if last < s.done: return
        s.a(f"s_waitcnt {s.name}({min(len(s.q) - 1 - last, s.cap)})")
        s.done = last + 1

def gen(o):
    R = o.ring
    NM = NS - (o.tn or sum(nst(c) for c in CLASS_ORDER[-o.kc:]))
    TS = list(range(NM, NS)); NT_ = len(TS); D = o.tdist
    assert R >= NT_
    WNEED = {}
    XS = {NS - 12 + 4*i + k: (lam, lam*ARR + 3072*k) for i, lam in enumerate(o.xslots) for k in range(4)} if o.xslots else {}
    def slot(n): return XS[n][1] if n in XS else WB + (n % R)*3072
    PART = WB + R * 3072
    AB = PART + 1536
    FLAG = AB + 384
    LDS = FLAG + 16
    assert LDS <= 163840
    a = Asm()
    xnt = " nt" if o.x_nt else o.xcflag
    T = o.timing
    def probe(tag):
        if o.probe == tag: a("s_memrealtime s[98:99]"); a("s_waitcnt lgkmcnt(0)")
    def probe_end(lbl, mult):
        a("s_waitcnt lgkmcnt(0)")
        if mult:
            a("s_sub_u32 s44, s98, s62"); a(f"s_mul_i32 s44, s44, {mult}")
        else: a("s_mov_b32 s44, 0")
        a("s_add_u32 s44, s44, 3000")
        a.label(lbl)
        a("s_memrealtime s[46:47]"); a("s_waitcnt lgkmcnt(0)"); a("s_sub_u32 s46, s46, s62")
        a("s_cmp_lt_u32 s46, s44"); a(f"s_cbranch_scc1 {lbl}")
    a("s_load_dwordx8 s[4:11], s[0:1], 0")
    a("s_load_dwordx4 s[12:15], s[0:1], 32")
    a("s_load_dwordx2 s[16:17], s[0:1], 48")
    if T: a("s_memtime s[60:61]")
    if T or o.probe or o.light: a("s_memrealtime s[62:63]")
    a("s_cmp_ge_u32 s2, 256")
    a("s_cbranch_scc1 L_end")
    a("v_lshrrev_b32 v130, 6, v0")
    a("v_and_b32 v129, 63, v0")
    a("v_readfirstlane_b32 s18, v130")
    a("s_and_b32 s3, s2, 7")
    a("s_lshr_b32 s49, s2, 3")
    a("s_lshl_b32 s46, s3, 1")
    a("s_add_u32 s46, s46, s49")
    a("s_sub_u32 s46, s46, 30")
    a("s_mul_i32 s47, s3, 10")
    a("s_cmp_lt_u32 s49, 30")
    a("s_cselect_b32 s46, s49, s46")
    a("s_cselect_b32 s47, s47, 80")
    a("s_cselect_b32 s48, 0, s46")
    a("s_cmp_ge_u32 s48, 12")
    a("s_cbranch_scc1 L_end")
    a("s_mul_i32 s48, s46, 43")
    a("s_lshr_b32 s48, s48, 7")
    a("s_add_u32 s19, s47, s48")
    a("s_mul_i32 s48, s48, 3")
    a("s_sub_u32 s20, s46, s48")
    a("s_cmp_ge_u32 s19, 42")
    a("s_cselect_b32 s21, 1, 0")
    a("s_cselect_b32 s48, 42, 0")
    a("s_cselect_b32 s23, 3, 0")
    a("s_cselect_b32 s44, 4608000, 0")
    a("s_sub_u32 s22, s19, s48")
    a("s_add_u32 s23, s23, s20")
    a("s_mul_i32 s45, s22, 110592")
    a("s_add_u32 s44, s44, s45")
    a("s_sub_u32 s26, 4607712, s45")
    a("s_mov_b32 s27, 0x20000")
    a("v_lshrrev_b32 v136, 4, v129")
    a("v_lshrrev_b32 v132, 3, v129")
    a("v_and_b32 v133, 2, v132")
    a("v_and_b32 v134, 7, v129")
    a("v_xor_b32 v133, v133, v134")
    a("v_lshlrev_b32 v133, 4, v133")
    a("v_mul_u32_u24 v131, 1152, v132")
    a("v_add_u32 v131, v131, v133")
    a("s_mul_i32 s43, s20, 96")
    a("s_cmp_ge_u32 s18, 7")
    a("s_cselect_b32 s48, 0, s18")
    a("s_cmp_ge_u32 s48, 4")
    a("s_cbranch_scc1 L_wpro")
    a("s_add_u32 s46, s20, 1")
    a("s_cmp_eq_u32 s46, 3")
    a("s_cselect_b32 s46, 0, s46")
    a("s_add_u32 s47, s20, s46")
    a("s_sub_u32 s47, 3, s47")
    a("s_lshl_b32 s92, s20, 10"); a("s_lshl_b32 s93, s46, 10"); a("s_lshl_b32 s94, s47, 10")
    a("s_mul_i32 s95, s20, 9216"); a("s_mul_i32 s96, s46, 9216"); a("s_mul_i32 s97, s47, 9216")
    a("s_cmp_eq_u32 s18, 7")
    a("s_cbranch_scc1 L_xpro")

    def x_srd():
        a("s_add_u32 s24, s4, s44")
        a("s_addc_u32 s25, s5, 0")
    def pub_srd():
        a("s_lshl_b32 s44, s23, 14")
        a("s_add_u32 s36, s16, s44")
        a("s_addc_u32 s37, s17, 0")
        a("s_mov_b32 s38, 16128")
        a("s_mov_b32 s39, 0x20000")

    a.c("consumer prologue: wave w loads piece m = w of the first arrays")
    a("s_mul_i32 s46, s18, 3072")
    a("s_mul_i32 s47, s18, 27648")
    for d in range(3):
        a(f"s_add_u32 s{92+d}, s{92+d}, s46")
        a(f"s_add_u32 s{95+d}, s{95+d}, s47")
    for k, lam in enumerate(o.b1[:4]):
        a(f"s_cmp_eq_u32 s18, {3-k}")
        a(f"s_cselect_b32 s46, {lam*ARR + 12*1024}, s46")
        a(f"s_cselect_b32 s47, {12*9216 + lam*128}, s47")
    a("s_waitcnt lgkmcnt(0)")
    if T: a("s_memtime s[80:81]")
    x_srd()
    def cload(lam, d):
        a(f"s_add_u32 m0, s{92+d}, {lam*ARR}")
        a(f"s_add_u32 s50, s{95+d}, {lam*128}")
        a(f"buffer_load_dwordx4 v131, s[24:27], s50 offen{xnt if d == 0 else o.xflag} lds")
    for lam in o.b1[:2]: cload(lam, 0)
    a(f"s_cmp_lt_u32 s18, {4 - len(o.b1[:4])}")
    a("s_cbranch_scc1 L_c_nohalf")
    a("s_mov_b32 m0, s46")
    a("s_mov_b32 exec_hi, 0")
    a(f"buffer_load_dwordx4 v131, s[24:27], s47 offen{xnt} lds")
    a("s_mov_b32 exec_hi, -1")
    a.label("L_c_nohalf")
    for lam in o.b1[2:]: cload(lam, 0)
    if T: a("s_memtime s[82:83]")
    for d in (1, 2):
        for lam in LAM_ORDER[:2]: cload(lam, d)
    a("s_branch L_cons")

    a.label("L_wpro")
    qw = Q(a, "vmcnt", 63)
    a("v_subrev_u32 v140, 256, v0")
    a("v_mul_u32_u24 v141, 171, v140")
    a("v_lshrrev_b32 v141, 10, v141")
    a("v_mul_u32_u24 v142, 6, v141")
    a("v_sub_u32 v142, v140, v142")
    a("v_and_b32 v143, 0x13, v141")
    a("v_and_b32 v144, 4, v141")
    a("v_lshl_add_u32 v143, v144, 1, v143")
    a("v_and_b32 v144, 8, v141")
    a("v_lshrrev_b32 v144, 1, v144")
    a("v_add_u32 v143, v143, v144")
    a("v_mul_u32_u24 v143, 288, v143")
    a("v_lshl_add_u32 v139, v142, 4, v143")
    a("s_sub_u32 s49, s18, 4")
    a("s_lshl_b32 s51, s49, 10")
    a("s_sub_u32 s30, 622080, s43")
    a("s_mov_b32 s31, 0x20000")
    a("s_waitcnt lgkmcnt(0)")
    a("s_add_u32 s28, s6, s43")
    a("s_addc_u32 s29, s7, 0")
    probe("K")
    if o.prio & 4: a("s_setprio 3")
    def wload(q, n):
        c, p = STEPS[n]
        a(f"s_add_u32 m0, s51, {slot(n)}")
        a(f"s_mov_b32 s50, {(288*p + 32*c)*288}")
        a(f"buffer_load_dwordx4 v139, s[28:31], s50 offen{o.wflag} lds")
        q.issue(("W", n))
    nxt = 0
    while nxt < o.wpreq: wload(qw, nxt); nxt += 1
    a("s_mov_b32 s92, s51")
    a("s_mul_i32 s95, s49, 9216")
    x_srd()
    a("v_and_b32 v135, 7, v129")
    a("v_lshlrev_b32 v135, 1, v135")
    a("v_lshrrev_b32 v134, 5, v129")
    a("v_add_u32 v135, v135, v134")
    a("s_lshl_b32 s44, s49, 4")
    a("v_add_u32 v135, s44, v135")
    a("v_lshlrev_b32 v134, 1, v135")
    a("v_add_u32 v134, s43, v134")
    a("s_mov_b32 s52, s8"); a("s_mov_b32 s53, s9"); a("s_mov_b32 s54, 288"); a("s_mov_b32 s55, 0x20000")
    a("s_mov_b32 s56, s10"); a("s_mov_b32 s57, s11"); a("s_mov_b32 s58, 288"); a("s_mov_b32 s59, 0x20000")
    pub_srd()
    while nxt < o.winit: wload(qw, nxt); nxt += 1
    if T: a("s_memtime s[90:91]")
    a("s_cmp_eq_u32 s20, 1")
    a("s_cbranch_scc1 L_wmain1")
    a("s_cmp_eq_u32 s20, 2")
    a("s_cbranch_scc1 L_wmain2")
    a("s_branch L_wmain0")

    a.label("L_xpro")
    qx = Q(a, "vmcnt", 63)
    a("s_mov_b32 s30, 622080")
    a("s_mov_b32 s31, 0x20000")
    a("v_lshlrev_b32 v100, 8, v129")
    a("v_add_u32 v100, s2, v100")
    a("v_lshlrev_b32 v100, 7, v100")
    if o.wp0:
        a("v_lshl_add_u32 v141, v129, 5, s49")
        a("v_mul_u32_u24 v142, 911, v141")
        a("v_lshrrev_b32 v142, 16, v142")
        a("v_mul_u32_u24 v143, 73728, v142")
        a("v_lshl_add_u32 v143, v141, 7, v143")
        a(f"v_add_u32 v101, {CLASS_ORDER[0]*9216}, v143")
    def xround(q, lam, r, cold):
        a(f"s_add_u32 m0, s92, {lam*ARR + r*4096}")
        a(f"s_add_u32 s50, s95, {lam*128 + r*36864}")
        a(f"buffer_load_dwordx4 v131, s[24:27], s50 offen{xnt if cold else o.xflag} lds")
        q.issue(lam)
    def xrot(q, lam, d, m):
        a(f"s_add_u32 m0, s{80+d}, {lam*ARR + m*3072}")
        a(f"s_add_u32 s50, s{83+d}, {lam*128 + m*27648}")
        a(f"buffer_load_dwordx4 v131, s[24:27], s50 offen{o.xflag} lds")
        q.issue(lam)
    def xhalf(q, lam, cold=True):
        a(f"s_mov_b32 m0, {lam*ARR + 12*1024}")
        a(f"s_mov_b32 s50, {12*9216 + lam*128}")
        a("s_mov_b32 exec_hi, 0")
        a(f"buffer_load_dwordx4 v131, s[24:27], s50 offen{xnt if cold else o.xflag} lds")
        a("s_mov_b32 exec_hi, -1")
        q.issue(lam)
    a("s_waitcnt lgkmcnt(0)")
    a("s_mov_b32 s28, s6")
    a("s_mov_b32 s29, s7")
    if o.wp0:
        a("s_mov_b64 exec, 0x3ffff")
        a("buffer_load_dword v146, v101, s[28:31], 0 offen"); qx.issue("wp")
    a("s_mov_b64 exec, 0x7ffff")
    a("buffer_load_dword v146, v100, s[28:31], 0 offen"); qx.issue("wm")
    a("s_mov_b64 exec, -1")
    x_srd()
    for d in range(3):
        a(f"s_mov_b32 s{80+d}, s{92+d}"); a(f"s_mov_b32 s{83+d}, s{95+d}")
    a("s_movk_i32 s92, 3072")
    a("s_movk_i32 s95, 27648")
    a(f"v_mov_b32 v140, {FLAG}")
    for i in range(4): a(f"v_mov_b32 v{40+i}, 0")
    a("ds_write_b128 v140, v[40:43]")
    a("s_waitcnt lgkmcnt(0)")
    if T: a("s_memtime s[64:65]")
    a("s_cmp_eq_u32 s20, 1")
    a("s_cbranch_scc1 L_xmain1")
    a("s_cmp_eq_u32 s20, 2")
    a("s_cbranch_scc1 L_xmain2")
    a("s_branch L_xmain0")

    def schedule(sl):
        wops = {}; xops = {}
        for lam in LAM_ORDER[2:]:
            if lam in o.b1:
                k = 0
                for d in (1, 2):
                    for m in range(4):
                        xops.setdefault(o.oth[lam] + k // o.rotrate, []).append(("rot", lam, d, m)); k += 1
                continue
            for r in range(3):
                owner, at = o.own[lam][r] if isinstance(o.own[lam], list) else o.own[lam]
                cold = owner == sl
                st = at + r // o.brate if cold else o.oth[lam] + r // o.orate
                wops.setdefault(st, []).append((lam, r, cold))
                xops.setdefault(st, []).append(("x", lam, r, cold))
            xops.setdefault(st, []).append(("h", lam, cold))
        if not o.barb:
            def mp(d):
                r = {}
                for k in sorted(d): r.setdefault(k if k <= 0 else gof[k], []).extend(d[k])
                return r
            wops, xops = mp(wops), mp(xops)
        return wops, xops

    a.label("L_cons")
    pub_srd()
    a("s_cmp_lg_u32 s18, 0")
    a("s_cbranch_scc1 L_c_noclr")
    a.c("wave 0 clears this workgroup's hand-off words")
    a("v_lshlrev_b32 v142, 4, v129")
    a("s_mul_i32 s50, s22, 384")
    for i in range(4): a(f"v_mov_b32 v{40+i}, -1")
    if o.gate:
        a("s_mov_b64 exec, 0x1000000")
        a("v_mov_b32 v142, 16256")
        for i in range(4): a(f"v_mov_b32 v{40+i}, 0")
        a("s_cmp_eq_u32 s22, 0")
        a("s_mov_b32 s46, 0xffffff")
        a("s_cselect_b32 exec_lo, 0x1ffffff, s46")
        a("s_mov_b32 s38, 16384")
    else:
        a("s_mov_b64 exec, 0xffffff")
    a("buffer_store_dwordx4 v[40:43], v142, s[36:39], s50 offen sc1")
    a("s_mov_b64 exec, -1")
    a.label("L_c_noclr")
    a("v_and_b32 v139, 15, v129")
    a("v_mul_u32_u24 v140, 3, v139")
    a("v_mul_u32_u24 v141, 48, v130")
    a("v_add_u32 v140, v140, v141")
    a("v_and_b32 v141, 1, v140")
    a("v_lshrrev_b32 v142, 1, v140")
    a("v_cmp_eq_u32 vcc, 1, v141")
    for k in range(5):
        if k: a("v_add_u32 v142, 1, v142")
        a("v_and_b32 v143, 2, v142")
        a("v_xor_b32 v143, v143, v136")
        a("v_lshlrev_b32 v143, 4, v143")
        a(f"v_lshl_add_u32 v{100+k}, v142, 7, v143")
    a(f"v_mul_u32_u24 v105, {4*ARR+64}, v141")
    a(f"v_sub_u32 v106, {4*ARR+64}, v105")
    a(f"v_mul_u32_u24 v107, {5*ARR-64}, v141")
    a(f"v_sub_u32 v108, {5*ARR}, v107")
    a("v_add_u32 v107, 64, v107")
    for s in range(8):
        if s % 2 == 0:
            a(f"v_add_u32 v{112+s}, v{100+s//2}, v105")
            a(f"v_add_u32 v{120+s}, v{100+s//2}, v107")
        else:
            a(f"v_cndmask_b32 v143, v{100+s//2}, v{101+s//2}, vcc")
            a(f"v_add_u32 v{112+s}, v143, v106")
            a(f"v_add_u32 v{120+s}, v143, v108")
    a("v_lshrrev_b32 v141, 1, v136")
    a("v_lshlrev_b32 v141, 4, v141")
    a("v_and_b32 v142, 1, v136")
    a("v_lshl_add_u32 v141, v142, 2, v141")
    a("v_bfe_u32 v142, v129, 2, 2")
    a("v_add_u32 v141, v141, v142")
    a("v_mul_u32_u24 v141, 96, v141")
    a("v_and_b32 v142, 3, v129")
    a("v_lshl_add_u32 v141, v142, 3, v141")
    a(f"v_add_u32 v128, {WB}, v141")
    a(f"v_add_u32 v137, {ARR}, v141")
    a("v_mul_u32_u24 v141, 384, v130")
    a("v_and_b32 v143, 12, v139")
    a("v_lshl_add_u32 v142, v136, 5, v143")
    a("v_add_u32 v132, v141, v142")
    a(f"v_add_u32 v132, {PART}, v132")
    a("v_lshlrev_b32 v133, 4, v136")
    a(f"v_add_u32 v133, {AB}, v133")
    a(f"v_mov_b32 v134, {FLAG}")
    a("v_mul_u32_u24 v135, 288, v140")
    a("v_lshl_add_u32 v135, v136, 3, v135")
    C0 = -2.0 * 0.7978845608028654 * 1.4426950408889634
    C1 = C0 * 0.044715
    a(f"v_mov_b32 v144, {f2u(C0):#x}"); a(f"v_mov_b32 v145, {f2u(C0):#x}")
    a(f"v_mov_b32 v146, {f2u(C1):#x}"); a(f"v_mov_b32 v147, {f2u(C1):#x}")
    a("v_mov_b32 v148, 1.0"); a("v_mov_b32 v149, 1.0")
    a(f"s_mul_i32 s44, s21, {L}")
    a("s_mul_i32 s45, s22, 192")
    a("s_add_u32 s44, s44, s45")
    a("s_mul_i32 s44, s44, 288")
    a("s_add_u32 s44, s44, s43")
    a("s_add_u32 s32, s12, s44")
    a("s_addc_u32 s33, s13, 0")
    a(f"s_sub_u32 s34, {L}, s45")
    a("s_mul_i32 s34, s34, 288")
    a("s_sub_u32 s34, s34, s43")
    a("s_mov_b32 s35, 0x20000")
    for t in range(3):
        a(f"s_movk_i32 s46, {L - 41*192 - t}")
        a(f"v_cmp_le_u32 s[{70+2*t}:{71+2*t}], s46, v140")
    a("s_lshl_b32 s44, s23, 5")
    a("v_mov_b32 v141, s44")
    a("v_mov_b32 v142, 1")
    a("s_waitcnt vmcnt(1)")
    a("s_cmp_eq_u32 s18, 0")
    a("s_cbranch_scc1 L_c_p")
    a("s_waitcnt vmcnt(0)")
    a.label("L_c_p")
    if T: a("s_memtime s[84:85]")
    if o.prio & 1: a("s_setprio 3")
    a("s_barrier")
    if T: a("s_memtime s[86:87]"); a("s_waitcnt lgkmcnt(0)")

    lq = Q(a, "lgkmcnt", 15)
    nbar = [0]
    FREEB = {}
    XNEED = {}
    DEADB = {}
    def bar():
        for n in set(t[1] for t in lq.q[:lq.done] if t[0] == "W"):
            if n not in FREEB and n < NM and sum(1 for t in lq.q[:lq.done] if t[0] == "W" and t[1] == n) == 6: FREEB[n] = nbar[0]
        for lam in range(9):
            users = [c for c in CLASS_ORDER if lam in lam_of(c)]
            if lam not in DEADB and all(("F", c, nst(c) + 1) in lq.q[:lq.done] for c in users): DEADB[lam] = nbar[0]
        a("s_barrier"); nbar[0] += 1
    cl = CLASS_ORDER[-1]
    BB = 208
    two = STEPS[NM][0] != cl
    def freg(c, s): return (160 if (two and c == cl) else 36) + 4*s
    def wread(n, nt, d):
        b, off = ("v137", slot(n) - ARR) if n in XS else ("v128", slot(n) - WB)
        assert 0 <= off and off + 768 + 64 < 65536
        return [(f"ds_read_b64_tr_b16 v[{d+2*kh}:{d+2*kh+1}], {b} offset:{off + kh*768 + 32*nt}", ("W", n, nt)) for kh in range(2)]
    def xread(c, s):
        d = freg(c, s)
        return [(f"ds_read_b128 v[{d}:{d+3}], v{112 + 8*(c & 1) + (s & 7)} offset:{(c >> 1)*ARR + (512 if s >= 8 else 0)}", ("F", c, s))]
    first = NM % 2 + o.nsingle
    groups = [[n] for n in range(first)] + [[n, n + 1] for n in range(first, NM, 2)]
    gof = {n: g for g, grp in enumerate(groups) for n in grp}
    def wreg(g, k, nt): return BB + 24*(g % 2) + 12*k + 4*nt
    def ureg(u): return BB + 4*((u + 6*(len(groups) % 2)) % 12)
    def uread(u): return wread(TS[u % NT_], u // NT_, ureg(u)) if u < 3*NT_ else []
    tailF = []
    haveF = set()
    def reads_for(g):
        if g == len(groups):
            for n in TS:
                c, p = STEPS[n]
                for s in range(p, p + 3):
                    if (c, s) not in haveF: haveF.add((c, s)); tailF.append((c, s))
            busy = {freg(STEPS[n][0], STEPS[n][1] + t) for n in groups[-1] for t in range(3)}
            r = []
            while tailF and len(r) < 5 and freg(*tailF[0]) not in busy: r += xread(*tailF.pop(0))
            return r + sum([uread(u) for u in range(D)], [])
        r = []
        for n in groups[g]:
            c, p = STEPS[n]
            for s in range(p, p + 3):
                if (c, s) not in haveF: haveF.add((c, s)); r += xread(c, s)
        for nt in range(3):
            ks = list(range(len(groups[g])))
            for k in (ks if nt % 2 == 0 else ks[::-1]): r += wread(groups[g][k], nt, wreg(g, k, nt))
        return r
    def put(rd):
        t, tag = rd.pop(0); a(t); lq.issue(tag)
        if tag[0] == "W": WNEED.setdefault(tag[1], nbar[0] - 1)
        else:
            for lam in lam_of(tag[1]): XNEED.setdefault(lam, nbar[0] - 1)
    rd = reads_for(0)
    while rd:
        put(rd)
        if len(lq.q) == 12: lq.wait(lambda t: t == lq.q[3])
    for g, grp in enumerate(groups):
        a.c(f"steps {grp}: (class, tap pair) {[STEPS[n] for n in grp]}")
        rd = reads_for(g + 1)
        K_ = len(grp)
        for nt in range(3):
            lq.wait(lambda t: (t[0] == "W" and t[1] in grp and t[2] == nt) or (t[0] == "F" and any(t[1] == STEPS[n][0] and t[2] <= STEPS[n][1] + 2 for n in grp)))
            if nt == 0 or (nt == 2 and K_ == 2 and (o.barb or g >= len(groups) - o.blast)): bar()
            l = [(t, (k if t % 2 == 0 else K_ - 1 - k)) for t in range(3) for k in range(K_)]
            if nt % 2: l = l[::-1]
            seen = set()
            for (t, k) in l:
                c, p = STEPS[grp[k]]
                acc = 12*t + 4*nt
                f = freg(c, p + t); w = wreg(g, k, nt)
                cin = "0" if (g == 0 and t not in seen) else f"v[{acc}:{acc+3}]"
                seen.add(t)
                a.mfma(f"v_mfma_f32_16x16x32_bf16 v[{acc}:{acc+3}], v[{w}:{w+3}], v[{f}:{f+3}], {cin}", range(acc, acc+4))
                if rd: put(rd)
                if K_ == 1 and rd: put(rd)
        assert not rd
        if o.atomstep in grp:
            a("s_cmp_lg_u32 s18, 0")
            a("s_cbranch_scc1 L_c_noatom")
            a("s_waitcnt vmcnt(0)")
            a("s_mov_b64 exec, 1")
            a("global_atomic_add v141, v142, s[14:15]")
            a("s_mov_b64 exec, -1")
            a.label("L_c_noatom")
    a.label("L_epi")
    S1, S2, PQ, RR = 200, 204, 152, 156
    def pr(x): return f"v[{x}:{x+1}]"
    def stats_ops(nt, packed):
        ops = []
        A = [12*t + 4*nt for t in range(3)]
        def V(t, rd=(), wr=(), dpp=()): ops.append(lambda: a.valu(t, rd, wr, dpp))
        def mask():
            for k in range(3):
                for r in range(A[k], A[k]+4): a.pad(a.wm[r], 6)
            a("s_cmp_eq_u32 s22, 41")
            a(f"s_cbranch_scc1 L_c_mask{nt}")
            a.label(f"L_c_masked{nt}")
        ops.append(mask)
        if packed:
            for h in (0, 2): V(f"v_pk_mul_f32 {pr(S2+h)}, {pr(A[0]+h)}, {pr(A[0]+h)}", [A[0]+h, A[0]+h+1], [S2+h, S2+h+1])
            for h in (0, 2): V(f"v_pk_add_f32 {pr(S1+h)}, {pr(A[0]+h)}, {pr(A[1]+h)}", [A[1]+h, A[1]+h+1], [S1+h, S1+h+1])
            for h in (0, 2): V(f"v_pk_fma_f32 {pr(S2+h)}, {pr(A[1]+h)}, {pr(A[1]+h)}, {pr(S2+h)}", [], [S2+h, S2+h+1])
            for h in (0, 2): V(f"v_pk_add_f32 {pr(S1+h)}, {pr(S1+h)}, {pr(A[2]+h)}", [A[2]+h, A[2]+h+1], [S1+h, S1+h+1])
            for h in (0, 2): V(f"v_pk_fma_f32 {pr(S2+h)}, {pr(A[2]+h)}, {pr(A[2]+h)}, {pr(S2+h)}", [], [S2+h, S2+h+1])
        else:
            for h in range(4): V(f"v_mul_f32 v{S2+h}, v{A[0]+h}, v{A[0]+h}", [A[0]+h], [S2+h])
            for h in range(4): V(f"v_add_f32 v{S1+h}, v{A[0]+h}, v{A[1]+h}", [A[1]+h], [S1+h])
            for h in range(4): V(f"v_fmac_f32 v{S2+h}, v{A[1]+h}, v{A[1]+h}", [], [S2+h])
            for h in range(4): V(f"v_add_f32 v{S1+h}, v{S1+h}, v{A[2]+h}", [A[2]+h], [S1+h])
            for h in range(4): V(f"v_fmac_f32 v{S2+h}, v{A[2]+h}, v{A[2]+h}", [], [S2+h])
        for k, S in enumerate((S1, S2)):
            for m in range(2):
                d = PQ + 2*k + m
                V(f"v_add_f32_dpp v{d}, v{S+2*m}, v{S+2*m} row_shl:8 row_mask:0xf bank_mask:0x3", [], [d], [S+2*m])
                V(f"v_add_f32_dpp v{d}, v{S+2*m+1}, v{S+2*m+1} row_shr:8 row_mask:0xf bank_mask:0xc", [], [d], [S+2*m+1])
        for m in range(2): V(f"v_add_f32_dpp v{RR+m}, v{PQ+m}, v{PQ+m} row_shl:4 row_mask:0xf bank_mask:0x5", [], [RR+m], [PQ+m])
        for m in range(2): V(f"v_add_f32_dpp v{RR+m}, v{PQ+2+m}, v{PQ+2+m} row_shr:4 row_mask:0xf bank_mask:0xa", [], [RR+m], [PQ+2+m])
        for qp in ("[2,3,0,1]", "[1,0,3,2]"):
            for m in range(2): V(f"v_add_f32_dpp v{RR+m}, v{RR+m}, v{RR+m} quad_perm:{qp} row_mask:0xf bank_mask:0xf", [], [RR+m], [RR+m])
        def wr():
            a(f"ds_write2_b32 v132, v{RR}, v{RR+1} offset0:{32*nt} offset1:{32*nt+4}"); lq.issue(("S", nt))
        ops.append(wr)
        return ops
    pend = []; bar_due = None; ne1 = 0
    ugroups = []
    for nt in range(3):
        us = list(range(nt*NT_, (nt + 1)*NT_))
        if o.tpair:
            if len(us) % 2: ugroups.append([us.pop(0)])
            ugroups += [us[k:k+2] for k in range(0, len(us), 2)]
        else: ugroups += [[u] for u in us]
    flip = False
    for ug in ugroups:
        nt = ug[0] // NT_
        ns = [TS[u % NT_] for u in ug]
        a.c(f"column tile {nt}, steps {ns}")
        lq.wait(lambda t: (t[0] == "W" and t[1] in ns and t[2] == nt) or (t[0] == "F" and any(t[1] == STEPS[n][0] and t[2] <= STEPS[n][1] + 2 for n in ns)))
        if any(u in o.tbars for u in ug): bar()
        if bar_due is not None and bar_due[1] <= ug[0]:
            lq.wait(lambda t: t == ("S", bar_due[0])); a("s_barrier"); bar_due = None; ne1 += 1
        rd = []
        for u in ug:
            for _ in range(2 if (two and u < 4) else 1):
                if tailF: rd += xread(*tailF.pop(0))
        for u in ug: rd += uread(u + D)
        if nt > 0 and (nt*NT_ + 1) in ug: pend = pend + stats_ops(nt - 1, False)
        K_ = len(ug)
        l = [(t, (k if t % 2 == 0 else K_ - 1 - k)) for t in range(3) for k in range(K_)]
        if flip: l = [(2 - t, k) for (t, k) in l]
        flip = not flip
        for m, (t, k) in enumerate(l):
            c, p = STEPS[ns[k]]
            acc = 12*t + 4*nt
            f = freg(c, p + t); w = ureg(ug[k])
            a.mfma(f"v_mfma_f32_16x16x32_bf16 v[{acc}:{acc+3}], v[{w}:{w+3}], v[{f}:{f+3}], v[{acc}:{acc+3}]", range(acc, acc+4))
            n1 = a.n
            if rd: put(rd)
            if len(rd) > len(l) - 1 - m: put(rd)
            room = o.srate - (1 if m == len(l) - 1 else 0)
            while pend and a.n - n1 < room:
                pend.pop(0)()
                if lq.q[-1][0] == "S" and lq.q[-1][1] == ne1 and bar_due is None: bar_due = (ne1, ug[-1] + 2)
        assert not rd
    while pend: pend.pop(0)()
    while ne1 < 2:
        assert ("S", ne1) in lq.q
        lq.wait(lambda t: t == ("S", ne1)); a("s_barrier"); ne1 += 1
    for op in stats_ops(2, True): op()
    lq.wait(lambda t: t == ("S", 2))
    a("s_barrier")
    if o.pubfirst: a("s_barrier")
    NB = nbar[0]
    Y, U, O = 72, 84, 96
    for nt in range(3):
        a.label(f"L_c_wait{nt}")
        a(f"ds_read_b32 v48, v134 offset:{4*nt}")
        a(f"ds_read_b128 v[40:43], v133 offset:{64*nt}")
        a(f"ds_read_b128 v[44:47], v133 offset:{192 + 64*nt}")
        a("s_waitcnt lgkmcnt(0)")
        a("v_cmp_eq_u32 vcc, 0, v48")
        H = [12*(i // 2) + 4*nt + 2*(i % 2) for i in range(6)]
        a(f"v_pk_fma_f32 {pr(Y)}, {pr(H[0])}, v[40:41], v[44:45]")
        a(f"s_cbranch_vccnz L_c_wait{nt}")
        if T and nt == 2: a("s_memtime s[88:89]")
        for i in range(1, 6): a(f"v_pk_fma_f32 {pr(Y+2*i)}, {pr(H[i])}, {pr(40+2*(i%2))}, {pr(44+2*(i%2))}")
        for i in range(6): a(f"v_pk_mul_f32 {pr(U+2*i)}, {pr(Y+2*i)}, {pr(Y+2*i)}")
        for i in range(6): a(f"v_pk_fma_f32 {pr(U+2*i)}, {pr(U+2*i)}, v[146:147], v[144:145]")
        for i in range(6): a(f"v_pk_mul_f32 {pr(U+2*i)}, {pr(U+2*i)}, {pr(Y+2*i)}")
        for i in range(12): a(f"v_exp_f32 v{U+i}, v{U+i}")
        for i in range(6): a(f"v_pk_add_f32 {pr(U+2*i)}, {pr(U+2*i)}, v[148:149]")
        Ot = O + 6*nt
        for t in range(3):
            for i in range(4*t, 4*t+4): a(f"v_rcp_f32 v{U+i}, v{U+i}")
            if t > 0: a(f"buffer_store_dwordx2 v[{Ot+2*t-2}:{Ot+2*t-1}], v135, s[32:35], 0 offen offset:{288*(t-1) + 32*nt}{o.stflag}")
            else: a("s_nop 0")
            for i in (2*t, 2*t+1): a(f"v_pk_mul_f32 {pr(Y+2*i)}, {pr(Y+2*i)}, {pr(U+2*i)}")
            for i in (2*t, 2*t+1): a(f"v_cvt_pk_bf16_f32 v{Ot+i}, v{Y+2*i}, v{Y+2*i+1}")
        a(f"buffer_store_dwordx2 v[{Ot+4}:{Ot+5}], v135, s[32:35], 0 offen offset:{576 + 32*nt}{o.stflag}")
    if T:
        a("s_memtime s[64:65]")
        a("s_waitcnt vmcnt(0)")
        a("s_memtime s[66:67]")
        a("s_memrealtime s[68:69]")
        a("s_cmp_lg_u32 s18, 0")
        a("s_cbranch_scc1 L_end")
        a("s_waitcnt lgkmcnt(0)")
        a("s_lshl_b32 s44, s2, 7")
        a("s_add_u32 s44, s44, 0x100040")
        a("v_mov_b32 v40, s60"); a("v_mov_b32 v41, s62"); a("v_mov_b32 v42, s64"); a("v_mov_b32 v43, s66")
        a("v_mov_b32 v44, s68"); a("v_mov_b32 v45, s88")
        a("v_mov_b32 v48, s44")
        a("s_mov_b64 exec, 1")
        a("global_store_dwordx4 v48, v[40:43], s[16:17]")
        a("global_store_dwordx2 v48, v[44:45], s[16:17] offset:16")
        a("v_mov_b32 v52, s80"); a("v_mov_b32 v53, s82"); a("v_mov_b32 v54, s84"); a("v_mov_b32 v55, s86")
        a("global_store_dwordx4 v48, v[52:55], s[16:17] offset:48")
    if o.light:
        a("s_cmp_lg_u32 s18, 0")
        a("s_cbranch_scc1 L_end")
        a("s_waitcnt vmcnt(0)")
        a("s_memrealtime s[68:69]")
        a("s_lshl_b32 s44, s2, 7")
        a("s_add_u32 s44, s44, 0x100040")
        a("v_mov_b32 v48, s44")
        a("s_waitcnt lgkmcnt(0)")
        a("v_mov_b32 v40, s62"); a("v_mov_b32 v41, s68")
        a("s_mov_b64 exec, 1")
        a("global_store_dwordx2 v48, v[40:41], s[16:17]")
    if o.probe == "done":
        a("s_waitcnt vmcnt(0)"); probe("done"); probe_end("L_probe_c", 4)
    a("s_endpgm")
    for nt in range(3):
        a.label(f"L_c_mask{nt}")
        for t in range(3):
            a(f"s_mov_b64 exec, s[{70+2*t}:{71+2*t}]")
            for h in (0, 2): a(f"v_mov_b64 {pr(12*t + 4*nt + h)}, 0")
        a("s_mov_b64 exec, -1")
        a(f"s_branch L_c_masked{nt}")

    a.label("L_wepi")
    if o.prio & 2: a("s_setprio 3")
    a("v_and_b32 v140, 7, v129")
    a("v_lshlrev_b32 v140, 4, v140")
    a("s_lshl_b32 s44, s49, 7")
    a("v_add_u32 v140, s44, v140")
    a(f"v_add_u32 v141, {PART}, v140")
    a("v_lshrrev_b32 v142, 3, v129")
    a("v_mul_u32_u24 v142, 384, v142")
    a("v_add_u32 v142, v142, v140")
    a("s_mul_i32 s50, s22, 384")
    a("v_lshlrev_b32 v143, 2, v135")
    a(f"v_add_u32 v143, {AB}, v143")
    a("s_lshl_b32 s44, s49, 2")
    a(f"s_add_u32 s44, s44, {FLAG}")
    a("v_mov_b32 v144, s44")
    a("v_mov_b32 v145, 1")
    a(f"s_mov_b32 s44, {f2u(1.0/L):#x}")
    a("s_mov_b32 s45, 0")
    a("s_movk_i32 s46, 3072"); a("s_movk_i32 s47, 9216"); a("s_movk_i32 s48, 15360")
    a("s_waitcnt vmcnt(0)")
    a("v_lshlrev_b32 v137, 16, v137")
    a("v_lshlrev_b32 v138, 16, v138")
    if o.gate:
        a("s_lshl_b32 s42, s23, 14")
        a("s_add_u32 s42, s42, 16256")
        a("v_mov_b32 v149, s42")
    a("s_mov_b64 exec, 0xff")
    a("s_mov_b32 s42, 0")
    a.label("L_w_e1")
    a("s_barrier")
    if o.trace:
        a("s_memtime s[88:89]"); a("s_waitcnt lgkmcnt(0)"); a("s_sub_u32 s88, s88, s60")
        a("s_add_u32 m0, s42, 61"); a("v_writelane_b32 v150, s88, m0")
    a("s_cmp_lg_u32 s42, s49")
    a("s_cbranch_scc1 L_w_nopub")
    if T: a("s_memtime s[86:87]")
    if T and o.rt2: a("s_memrealtime s[98:99]")
    probe("E1")
    for w in range(4): a(f"ds_read_b128 v[{40+4*w}:{43+4*w}], v141 offset:{384*w}")
    a("s_waitcnt lgkmcnt(2)" if not T else "s_waitcnt lgkmcnt(0)")
    a("v_pk_add_f32 v[40:41], v[40:41], v[44:45]")
    a("v_pk_add_f32 v[42:43], v[42:43], v[46:47]")
    a("s_waitcnt lgkmcnt(0)")
    a("v_pk_add_f32 v[48:49], v[48:49], v[52:53]")
    a("v_pk_add_f32 v[50:51], v[50:51], v[54:55]")
    a("v_pk_add_f32 v[40:41], v[40:41], v[48:49]")
    a("v_pk_add_f32 v[42:43], v[42:43], v[50:51]")
    for i in range(4): a(f"v_min_u32 v{40+i}, -2, v{40+i}")
    a("buffer_store_dwordx4 v[40:43], v140, s[36:39], s50 offen sc1")
    so = ["0", "s46", "s46", "s47", "s47", "s48"]; io = [0, 0, 3072, 0, 3072, 0]
    def polls():
        for k in range(6): a(f"buffer_load_dwordx4 v[{44+4*k}:{47+4*k}], v142, s[36:39], {so[k]} offen offset:{io[k]} sc1")
    if o.early:
        a(f"s_cmp_ge_u32 s49, {o.early}")
        a("s_cbranch_scc1 L_w_nopub")
        a("s_mov_b64 exec, -1")
        polls()
    a.label("L_w_nopub")
    if o.gate:
        a("s_cmp_lg_u32 s42, 1")
        a("s_cbranch_scc1 L_w_nogate")
        a("global_load_dword v148, v149, s[16:17] sc1")
        a.label("L_w_nogate")
    a("s_add_u32 s42, s42, 1")
    a("s_cmp_lt_u32 s42, 3")
    a("s_cbranch_scc1 L_w_e1")
    a("s_mov_b64 exec, -1")
    if o.pubfirst == 2: a("s_waitcnt vmcnt(0)")
    if o.pubfirst:
        a("s_barrier")
    if o.pdelay:
        a("s_cmp_lg_u32 s49, 0")
        a("s_cbranch_scc1 L_nodelay")
        for _ in range(o.pdelay):
            a("ds_read_b32 v147, v144"); a("s_waitcnt lgkmcnt(0)")
        a.label("L_nodelay")
    if o.early:
        a(f"s_cmp_lt_u32 s49, {o.early}")
        a("s_cbranch_scc1 L_pollwait")
    if o.chain:
        a("s_cmp_eq_u32 s49, 0")
        a("s_cbranch_scc1 L_gate" if o.gate else "s_cbranch_scc1 L_poll")
        a(f"v_mov_b32 v146, {FLAG}")
        if o.chain == 2:
            a("s_lshl_b32 s42, s49, 2"); a("s_sub_u32 s42, s42, 4"); a("v_add_u32 v146, s42, v146")
        if o.chain == 3:
            a("s_cmp_eq_u32 s49, 1"); a("s_cbranch_scc1 L_poll"); a("v_add_u32 v146, 4, v146")
        if o.chain == 4:
            a("s_cmp_eq_u32 s49, 1"); a("s_cbranch_scc1 L_poll")
        a.label("L_chain")
        a("ds_read_b32 v147, v146")
        a("s_waitcnt lgkmcnt(0)")
        a("v_cmp_eq_u32 vcc, 0, v147")
        a("s_nop 0")
        a("s_cbranch_vccnz L_chain")
        if o.cdelay:
            a("s_cmp_lg_u32 s49, 2")
            a("s_cbranch_scc1 L_poll")
            for _ in range(o.cdelay):
                a("ds_read_b32 v147, v146"); a("s_waitcnt lgkmcnt(0)")
    a.label("L_poll")
    polls()
    a.label("L_pollwait")
    a("s_waitcnt vmcnt(4)")
    a("v_pk_add_f32 v[68:69], v[44:45], v[48:49]")
    a("v_pk_add_f32 v[70:71], v[46:47], v[50:51]")
    a("s_waitcnt vmcnt(2)")
    a("v_pk_add_f32 v[72:73], v[52:53], v[56:57]")
    a("v_pk_add_f32 v[74:75], v[54:55], v[58:59]")
    a("v_pk_add_f32 v[68:69], v[68:69], v[72:73]")
    a("v_pk_add_f32 v[70:71], v[70:71], v[74:75]")
    a("s_waitcnt vmcnt(0)")
    a("v_pk_add_f32 v[72:73], v[60:61], v[64:65]")
    a("v_pk_add_f32 v[74:75], v[62:63], v[66:67]")
    a("v_pk_add_f32 v[68:69], v[68:69], v[72:73]")
    a("v_pk_add_f32 v[70:71], v[70:71], v[74:75]")
    a("v_cmp_u_f32 vcc, v68, v69")
    a("v_cmp_u_f32 s[90:91], v70, v71")
    a("s_nop 0")
    a("s_or_b64 vcc, vcc, s[90:91]")
    a("s_cbranch_vccnz L_recheck")
    a.label("L_polled")
    probe("gath")
    if T and o.rt2: a("s_memrealtime s[100:101]")
    if T: a("s_memtime s[88:89]")
    a("v_permlane32_swap_b32 v68, v70")
    a("v_permlane32_swap_b32 v69, v71")
    a("v_add_f32 v68, v68, v70")
    a("v_add_f32 v69, v69, v71")
    a("s_nop 1")
    a("v_permlane16_swap_b32 v68, v69")
    a("v_add_f32 v68, v68, v69")
    a("s_nop 1")
    a("v_add_f32_dpp v68, v68, v68 row_ror:8 row_mask:0xf bank_mask:0xf")
    a("v_mul_f32 v68, s44, v68")
    a("v_mov_b32 v69, v68")
    a("s_nop 1")
    a("v_permlane16_swap_b32 v68, v69")
    a("v_fma_f32 v69, -v68, v68, v69")
    a("v_max_f32 v69, 0, v69")
    a(f"v_add_f32 v69, {f2u(1e-5):#x}, v69")
    a("v_rsq_f32 v69, v69")
    a("s_mov_b32 exec_lo, 0xff")
    a("s_mov_b32 exec_hi, 0xff")
    a("v_mul_f32 v69, v137, v69")
    a("v_fma_f32 v68, -v68, v69, v138")
    a("ds_write2_b32 v143, v69, v68 offset0:0 offset1:48")
    a("ds_write_b32 v144, v145")
    if T:
        a(f"s_cmp_lg_u32 s18, {o.twave}")
        a("s_cbranch_scc1 L_end")
        a("s_waitcnt lgkmcnt(0)")
        a("s_memtime s[90:91]")
        a("s_waitcnt lgkmcnt(0)")
        a("s_lshl_b32 s44, s2, 7")
        a("s_add_u32 s44, s44, 0x100000")
        regs = [60, 64] + list(range(66, 86, 2)) + [86, 88, 90, 62]
        for i, r in enumerate(regs): a(f"v_mov_b32 v{40+i}, s{r}")
        a("v_mov_b32 v60, s44")
        a("v_mov_b32 v62, s98"); a("v_mov_b32 v63, s100")
        a("s_mov_b64 exec, 1")
        for k in range(4): a(f"global_store_dwordx4 v60, v[{40+4*k}:{43+4*k}], s[16:17] offset:{16*k}")
        a("global_store_dwordx2 v60, v[62:63], s[16:17] offset:96")
        a("global_store_dword v60, v149, s[16:17] offset:108")
        if o.trace:
            a("s_mov_b64 exec, -1")
            a("s_lshl_b32 s44, s2, 9"); a("s_add_u32 s44, s44, 0x200000")
            a("v_lshlrev_b32 v60, 2, v129"); a("v_add_u32 v60, s44, v60")
            a("global_store_dword v60, v150, s[16:17]")
            a("global_store_dword v60, v151, s[16:17] offset:256")
    if o.probe and o.probe != "done": probe_end("L_probe_w", 0 if o.probe == "fixed" else 4)
    a("s_endpgm")
    if o.gate:
        a.label("L_gate")
        a.c("line 0 is first read once every workgroup of the group is close to its end")
        a("s_waitcnt vmcnt(0)")
        a("v_readfirstlane_b32 s42, v148")
        a("s_add_u32 s45, s45, 1")
        a("s_cmp_ge_u32 s42, 42")
        a("s_cbranch_scc1 L_poll")
        a("s_cmp_ge_u32 s45, 0x100000")
        a("s_cbranch_scc1 L_poll")
        a("global_load_dword v148, v149, s[16:17] sc1")
        a("s_branch L_gate")
    a.label("L_recheck")
    a.c("a NaN sum: a word not yet written, or a genuine NaN")
    for k in range(8): a(f"v_max3_u32 v{72+k}, v{44+3*k}, v{45+3*k}, v{46+3*k}")
    a("v_max3_u32 v72, v72, v73, v74"); a("v_max3_u32 v75, v75, v76, v77")
    a("v_max3_u32 v72, v72, v78, v79"); a("v_max_u32 v72, v72, v75")
    a("v_cmp_eq_u32 vcc, -1, v72")
    a("s_add_u32 s45, s45, 1")
    a("s_cmp_ge_u32 s45, 0x100000")
    a("s_cbranch_scc1 L_polled")
    a("s_cbranch_vccnz L_poll")
    a("s_branch L_polled")
    a.label("L_epi_end")

    def canissue(m, n): return DEADB[XS[m][0]] <= n if m in XS else (m < R or FREEB[m - R] <= n)
    XT = o.xt if o.xslots else FREEB[NS - 1 - R]
    assert NB - 1 >= XT and XT >= max(XNEED.values())
    if o.verbose: print('WNEED', WNEED, 'FREEB', FREEB, 'XNEED', XNEED, 'DEADB', DEADB, 'NB', NB, 'XT', XT)
    qw0, nxt0, qx0 = qw, nxt, qx
    for sl in range(3):
        wops, xops = schedule(sl)
        qw = qw0.copy(); nxt = nxt0
        a.label(f"L_wmain{sl}")
        def run_wops(n):
            for op in wops.pop(n, []): xround(qw, *op)
        run_wops(-2)
        if T:
            a("s_waitcnt lgkmcnt(0)"); a("s_sub_u32 s90, s90, s60"); a("v_mov_b32 v149, s90")
        qw.wait(lambda t: t == ("W", 0))
        while nxt < o.winit0: wload(qw, nxt); nxt += 1
        qw.wait(lambda t: isinstance(t, tuple) and WNEED[t[1]] < 0)
        while nxt < o.winitp: wload(qw, nxt); nxt += 1
        if T: a("s_memtime s[64:65]")
        probe("P0")
        a("s_barrier")
        probe("P")
        while nxt < o.winit2: wload(qw, nxt); nxt += 1
        run_wops(-1)
        assert all(m < nxt for m in WNEED if WNEED[m] <= 0)
        qw.wait(lambda t: isinstance(t, tuple) and WNEED[t[1]] <= 0)
        stamp = 66
        for n in range(NB):
            a("s_barrier")
            if T and n in o.stamps:
                a(f"s_memtime s[{stamp}:{stamp+1}]"); stamp += 2
                if n == 0 and not o.rt2: a("s_memrealtime s[98:99]")
                if n == o.stamps[-1] and not o.rt2: a("s_memrealtime s[100:101]")
            probe(f"b{n}")
            if o.trace and n >= NB - o.trace:
                a("s_memtime s[88:89]"); a("s_waitcnt lgkmcnt(0)"); a("s_sub_u32 s88, s88, s60")
                a(f"v_writelane_b32 v150, s88, {61 - (NB - n)}")
            busy = len(wops.get(n, []))
            run_wops(n)
            k = 0
            while nxt < NS and canissue(nxt, n) and (k < o.wrate - busy * o.bw or nxt <= (n if o.barb else groups[min(n, len(groups)-1)][0] + 1) + o.wmin):
                wload(qw, nxt); nxt += 1; k += 1
            if n == XT:
                assert nxt == NS, (n, nxt)
                a("buffer_load_ushort v137, v134, s[52:55], 0 offen"); qw.issue("gb")
                a("buffer_load_ushort v138, v134, s[56:59], 0 offen"); qw.issue("gb")
            if n < NB - 1:
                assert all(m < nxt for m in WNEED if WNEED[m] <= n + 1), (n, nxt)
                qw.wait(lambda t: (WNEED[t[1]] <= n + 1) if isinstance(t, tuple) else (t in XNEED and XNEED[t] <= n + 1))
        assert not wops, wops
        assert nxt == NS
        a("s_branch L_wepi")

        qx = qx0.copy()
        a.label(f"L_xmain{sl}")
        def run_xops(n):
            for op in xops.pop(n, []):
                if op[0] == "x": xround(qx, *op[1:])
                elif op[0] == "rot": xrot(qx, *op[1:])
                else: xhalf(qx, *op[1:])
        run_xops(-2)
        if T: a("s_memtime s[66:67]"); a("s_memtime s[68:69]")
        a("s_barrier")
        run_xops(-1)
        for n in range(XT + 1):
            qx.wait(lambda t: t in XNEED and XNEED[t] <= n)
            a("s_barrier")
            run_xops(n)
        assert not xops, xops
        if sl < 2: a("s_branch L_xtail")
    a.label("L_xtail")
    a("s_lshl_b32 s44, s23, 5")
    a("v_mov_b32 v140, s44")
    a("global_load_dword v142, v140, s[14:15] sc1")
    if o.codepf:
        a("s_getpc_b64 s[56:57]")
        a.label("L_pc")
        a(f"s_sub_u32 s56, s56, L_pc-L_epi")
        a("s_subb_u32 s57, s57, 0")
        a("s_and_b32 s56, s56, 0xffffff80")
        a(f"s_mov_b32 s58, L_epi_end-L_epi+128")
        a("s_mov_b32 s59, 0x20000")
        a("v_lshlrev_b32 v147, 7, v129")
        a("buffer_load_dword v148, v147, s[56:59], 0 offen")
    for n in range(XT + 1, NB - (1 if o.gate == 2 else 0)): a("s_barrier")
    a("s_mov_b32 s45, 0")
    a.label("L_cnt_wait")
    a("s_waitcnt vmcnt(0)")
    a("v_readfirstlane_b32 s44, v142")
    a("s_add_u32 s45, s45, 1")
    a("s_cmp_ge_u32 s44, 42")
    a("s_cbranch_scc1 L_cnt_ok")
    a("s_cmp_ge_u32 s45, 0x100000")
    a("s_cbranch_scc1 L_cnt_ok")
    a("global_load_dword v142, v140, s[14:15] sc1")
    a("s_branch L_cnt_wait")
    a.label("L_cnt_ok")
    if o.gate:
        a("s_lshl_b32 s44, s23, 14")
        a("s_add_u32 s44, s44, 16256")
        a("v_mov_b32 v140, s44")
        a("v_mov_b32 v141, 1")
        a("s_mov_b64 exec, 1")
        a("global_atomic_add v140, v141, s[16:17]")
    if o.gate == 2: a("s_barrier")
    a("s_barrier")
    if T:
        a("s_waitcnt lgkmcnt(0)")
        a("s_lshl_b32 s44, s2, 7")
        a("s_add_u32 s44, s44, 0x100000")
        a("s_sub_u32 s64, s64, s60"); a("s_sub_u32 s66, s66, s60"); a("s_sub_u32 s68, s68, s60")
        a("v_mov_b32 v40, s64"); a("v_mov_b32 v41, s66"); a("v_mov_b32 v42, s68"); a("v_mov_b32 v43, s44")
        a("s_mov_b64 exec, 1")
        a("global_store_dwordx2 v43, v[40:41], s[16:17] offset:88")
        a("global_store_dword v43, v42, s[16:17] offset:104")
    a.label("L_end")
    a("s_endpgm")

    hdr = f"""; Fused strided conv1d (im2col GEMM on MFMA) + per-channel norm over time + tanh-GELU, one launch.
; @launch grid=(256,1,1) block=(512,1,1) lds={LDS}
.amdgcn_target "amdgcn-amd-amdhsa--gfx950"
.text
.globl {NAME}_kernel
.p2align 8
.type {NAME}_kernel,@function
{NAME}_kernel:
"""
    ftr = f""".section .rodata,"a"
.p2align 6
.amdhsa_kernel {NAME}_kernel
  .amdhsa_next_free_vgpr 256
  .amdhsa_next_free_sgpr 102
  .amdhsa_accum_offset 256
  .amdhsa_group_segment_fixed_size 0
  .amdhsa_kernarg_size 56
  .amdhsa_float_denorm_mode_32 3
  .amdhsa_user_sgpr_count 2
  .amdhsa_user_sgpr_kernarg_segment_ptr 1
  .amdhsa_system_sgpr_workgroup_id_x 1
.end_amdhsa_kernel
"""
    return hdr + a.text() + ftr

def options(argv=None):
    ap = argparse.ArgumentParser()
    ap.add_argument("-o", default=f"cdna_kernels/{NAME}.s")
    ap.add_argument("--timing", action="store_true")
    ap.add_argument("--probe", default="")
    ap.add_argument("--stamps", default="[0, 4, 8, 16, 24, 32, 40, 46, 50, 53]")
    for k, d in dict(light=0, trace=0, ring=15, x_nt=0, wpreq=2, winit=2, winit0=4, winitp=0, winit2=7, wrate=5, wmin=9,
                     brate=2, orate=2, rotrate=4, codepf=1, cdelay=0, nsingle=0, tpair=0, tn=0, xt=26, blast=1, barb=0, bw=1, verbose=0, pdelay=0, gate=0, prio=0, rt2=0, twave=6, chain=1, early=0, tsnake=1, kc=2, tdist=4, srate=3, wp0=1, atomstep=8, pubfirst=1).items():
        ap.add_argument("--" + k, type=int, default=d)
    ap.add_argument("--stflag", default="")
    ap.add_argument("--wflag", default="")
    ap.add_argument("--xflag", default="")
    ap.add_argument("--xcflag", default="")
    ap.add_argument("--tbars", default="[0,4,8]")
    ap.add_argument("--xslots", default="[]")
    ap.add_argument("--b1", default="[2,6,7]")
    ap.add_argument("--own", default="{1:(0,-1),3:(1,9),5:(2,17),8:(0,24),0:(1,32),4:(2,39)}")
    ap.add_argument("--oth", default="{7:-1,1:7,3:15,5:22,8:30,0:37,4:45}")
    o = ap.parse_args(argv)
    for k in ("b1", "own", "oth", "stamps", "tbars", "xslots"): setattr(o, k, eval(getattr(o, k)))
    for k in ("stflag", "wflag", "xflag", "xcflag"):
        if getattr(o, k): setattr(o, k, " " + getattr(o, k))
    return o

if __name__ == "__main__":
    o = options()
    open(o.o, "w").write(gen(o))
```
